```python
import torch

def _softmax(x, axis=-1):
    return torch.softmax(x, dim=axis)
def _gelu(x):
    return torch.nn.functional.gelu(x, approximate="tanh")
def _silu(x):
    return torch.nn.functional.silu(x)
def _sigmoid(x):
    return torch.sigmoid(x)
def _layernorm(x, axis=-1, eps=1e-5):
    m = x.mean(dim=axis, keepdim=True)
    v = x.var(dim=axis, keepdim=True, unbiased=False)
    return (x - m) / torch.sqrt(v + eps)
def _scatter_add(tgt, idx, src, axis=0):
    return tgt.clone().index_add_(axis, idx, src)
def _segment_sum(src, seg, n):
    out = torch.zeros((n,) + src.shape[1:], dtype=src.dtype)
    return out.index_add_(0, seg, src)
def _pad(x, pw):
    flat = tuple(v for pair in reversed(pw) for v in pair)
    return torch.nn.functional.pad(x, flat)

kernel_name = 'recurrent_scan__ssm_conv_h3__dense_activation_squared_relu__prompt'

def setup_inputs():

    _w = (lambda a: (lambda t: t.to(torch.bfloat16) if t.is_floating_point() else t)(torch.as_tensor(a)))
    def _A_setup():
        B, S, D = 1, 2048, 512
        ks = 4
        return {
            "q": _w((lambda *s: torch.randn(*s, dtype=torch.bfloat16) * 0.05)(B, S, D)),
            "k": _w((lambda *s: torch.randn(*s, dtype=torch.bfloat16) * 0.2)(B, S, D)),
            "v": _w((lambda *s: torch.randn(*s, dtype=torch.bfloat16) * 0.2)(B, S, D)),
            "shift_k": _w((lambda *s: torch.randn(*s, dtype=torch.bfloat16) * 0.2)(D, ks) * 0.5),
            "ssm_k": _w((lambda *s: torch.randn(*s, dtype=torch.bfloat16) * 0.2)(D, S) * (1.0 / S ** 0.5)),
            "ssm_D": _w((lambda *s: torch.randn(*s, dtype=torch.bfloat16) * 0.2)(D)),
        }
    _A_in = _A_setup()

    def _B_setup():
        B, S, D, F = 1, 2048, 512, 1792
        return {
            "x": _w((lambda *s: torch.randn(*s, dtype=torch.bfloat16) * 0.05)(B, S, D)),
            "w1": _w((lambda *s: torch.randn(*s, dtype=torch.bfloat16) * 0.1)(D, F)),
            "b1": _w((lambda *s: torch.randn(*s, dtype=torch.bfloat16) * 0.8)(F)),
            "w2": _w((lambda *s: torch.randn(*s, dtype=torch.bfloat16) * 0.1)(F, D)),
            "b2": _w((lambda *s: torch.randn(*s, dtype=torch.bfloat16) * 6.4)(D)),
        }
    _B_in = _B_setup()

    return {
        "A_q": _A_in["q"],
        "A_k": _A_in["k"],
        "A_v": _A_in["v"],
        "A_shift_k": _A_in["shift_k"],
        "A_ssm_k": _A_in["ssm_k"],
        "A_ssm_D": _A_in["ssm_D"],
        "B_x": _B_in["x"],
        "B_w1": _B_in["w1"],
        "B_b1": _B_in["b1"],
        "B_w2": _B_in["w2"],
        "B_b2": _B_in["b2"],
    }

def reference(A_q, A_k, A_v, A_shift_k, A_ssm_k, A_ssm_D, B_x, B_w1, B_b1, B_w2, B_b2):
    def _A_ref(q, k, v, shift_k, ssm_k, ssm_D):
        B, S, D = q.shape
        ks = shift_k.shape[-1]
        k_pad = _pad(k, ((0, 0), (ks - 1, 0), (0, 0)))
        k_shift = torch.zeros_like(k)
        for t in range(ks):
            k_shift = k_shift + k_pad[:, t:t + S, :] * shift_k[:, ks - 1 - t][None, None, :]
        kv = k_shift * v
        L = 2 * S
        kv_pad = _pad(kv, ((0, 0), (0, S), (0, 0)))
        kf_pad = _pad(ssm_k, ((0, 0), (0, S)))
        kv_f = (lambda x, axes=(-2,-1): torch.fft.rfft2(x.float(), dim=axes))(kv_pad[:, None, :, :], axes=(1, 2))
        kf_f = (lambda x, axes=(-2,-1): torch.fft.rfft2(x.float(), dim=axes))(kf_pad[:, None, :], axes=(1, 2))
        kf_f = (lambda x, *d: x.permute(*d))(kf_f, 1, 2, 0)
        y_f = kv_f * kf_f[None, :, :, :]
        y = (lambda x, s, axes=(-2,-1): torch.fft.irfft2(x, s=s, dim=axes).to(torch.bfloat16))(y_f, (1, L), axes=(1, 2))[:, 0, :S, :]
        y = y + kv * ssm_D[None, None, :]
        return q * y

    def _B_ref(x, w1, b1, w2, b2):
        h = torch.einsum("bsd,df->bsf", x, w1) + b1
        zero = torch.zeros_like(h)
        r = torch.where(h > zero, h, zero)
        h = r * r
        out = torch.einsum("bsf,fd->bsd", h, w2) + b2
        return out

    x = A_q
    xn = _layernorm(x, axis=-1)
    s = _A_ref(xn, A_k, A_v, A_shift_k, A_ssm_k, A_ssm_D)
    g = _silu(_B_ref(xn, B_w1, B_b1, B_w2, B_b2))
    return x + s * g
```

```python
import re
REG = re.compile(r'\b([vas])\[(\d+):(\d+)\]|\b([vas])(\d+)\b|\b(vcc|exec|m0|scc)\b')
def regs_of(tok):
    out = set()
    for m in REG.finditer(tok):
        if m.group(1):
            for i in range(int(m.group(2)), int(m.group(3)) + 1): out.add(m.group(1) + str(i))
        elif m.group(4): out.add(m.group(4) + m.group(5))
        else: out.add(m.group(6))
    return out
def split_ops(s):
    ops, depth, cur = [], 0, ''
    for ch in s:
        if ch == '[': depth += 1
        if ch == ']': depth -= 1
        if ch == ',' and depth == 0: ops.append(cur.strip()); cur = ''
        else: cur += ch
    if cur.strip(): ops.append(cur.strip())
    return ops
TRANS = ('v_exp_f32', 'v_log_f32', 'v_rcp_f32', 'v_rsq_f32', 'v_sqrt_f32', 'v_sin_f32', 'v_cos_f32')
class Ins:
    def __init__(self, text):
        self.text = text
        t = text.split(';')[0].strip()
        self.is_label = t.endswith(':')
        self.is_dir = t.startswith('.')
        self.mn = t.split()[0] if t and not self.is_label else ''
        rest = t[len(self.mn):].strip() if self.mn else ''
        self.ops = split_ops(rest)
        mn = self.mn
        self.valu = mn.startswith('v_') and not mn.startswith('v_mfma')
        self.mfma = mn.startswith('v_mfma')
        self.salu = mn.startswith('s_') and not mn.startswith(('s_load', 's_waitcnt', 's_nop', 's_barrier', 's_branch', 's_cbranch', 's_endpgm', 's_sleep', 's_memtime', 's_memrealtime', 's_setprio'))
        self.ds = mn.startswith('ds_')
        self.vmem = mn.startswith(('buffer_', 'global_', 'flat_'))
        self.smem = mn.startswith(('s_load', 's_memtime', 's_memrealtime'))
        self.trans = mn.replace('_e32', '').replace('_e64', '') in TRANS
        self.dpp = ('row_shr' in t or 'row_shl' in t or 'row_bcast' in t or 'quad_perm' in t or 'row_ror' in t or 'wave_sh' in t or 'row_mirror' in t or 'row_half_mirror' in t or 'row_newbcast' in t)
        self.lds_dma = self.vmem and (' lds' in t + ' ' and (t.endswith(' lds') or ' lds ' in t) or 'load_lds' in mn)
        self.wr, self.rd = set(), set()
        o = self.ops
        def R(x): return regs_of(x)
        if self.is_label or self.is_dir or not mn: return
        if self.mfma:
            self.wr = R(o[0]); self.srcA = R(o[1]); self.srcB = R(o[2]); self.srcC = R(o[3].split()[0]); self.rd = self.srcA | self.srcB | self.srcC
            self.passes = 8 if '32x32' in mn else 4
        elif self.valu:
            if mn.startswith('v_cmp'):
                self.wr = R(o[0]); self.rd = set().union(*[R(x) for x in o[1:]])
                if mn.startswith('v_cmpx'): self.wr |= {'exec'}
            elif mn.startswith('v_permlane') and 'swap' in mn:
                self.wr = R(o[0]) | R(o[1]); self.rd = set(self.wr)
            elif mn.startswith(('v_add_co', 'v_sub_co', 'v_addc_co', 'v_subb_co')):
                self.wr = R(o[0]) | R(o[1]); self.rd = set().union(*[R(x) for x in o[2:]])
            else:
                self.wr = R(o[0]); self.rd = set().union(*[R(x) for x in o[1:]]) if len(o) > 1 else set()
                if mn.startswith(('v_fmac', 'v_dot2c', 'v_mac')) or self.dpp or mn.startswith('v_writelane'): self.rd |= self.wr
                if mn.startswith('v_cndmask') and len(o) == 3: self.rd.add('vcc')
        elif self.ds:
            if mn.startswith(('ds_read', 'ds_bpermute', 'ds_swizzle', 'ds_permute')):
                self.wr = R(o[0]); self.rd = set().union(*[R(x) for x in o[1:]])
            else:
                self.rd = set().union(*[R(x) for x in o])
        elif self.vmem:
            if 'store' in mn or self.lds_dma or mn.startswith(('buffer_wbl2', 'buffer_inv')):
                self.rd = set().union(*[R(x) for x in o]) if o else set()
                if self.lds_dma: self.rd.add('m0')
            elif 'atomic' in mn:
                self.rd = set().union(*[R(x) for x in o])
                if 'sc0' in t: self.wr = R(o[0])
            else:
                self.wr = R(o[0]); self.rd = set().union(*[R(x) for x in o[1:]])
            self.store_wide = ('store' in mn and ('x4' in mn or 'x3' in mn))
            if self.store_wide:
                self.sdata = R(o[0]) if mn.startswith('buffer_') else R(o[1])
        elif self.smem:
            self.wr = R(o[0]); self.rd = set().union(*[R(x) for x in o[1:]]) if len(o) > 1 else set()
        elif self.salu:
            if mn.startswith(('s_cmp', 's_bitcmp')):
                self.rd = set().union(*[R(x) for x in o]); self.wr = {'scc'}
            else:
                self.wr = R(o[0]) if o else set(); self.rd = set().union(*[R(x) for x in o[1:]]) if len(o) > 1 else set()
                if 'saveexec' in mn: self.wr |= {'exec'}
    def states(self):
        if self.mn == 's_nop': return int(self.ops[0], 0) + 1
        if self.is_label or self.is_dir or not self.mn: return 0
        return 1
def isv(r): return r[0] in 'va' and r not in ('vcc',)
def required(p, c):
    need = 0
    if p.valu:
        wv = {r for r in p.wr if isv(r)}
        ws = {r for r in p.wr if not isv(r)}
        if c.mfma and wv & c.rd: need = max(need, 2)
        if c.valu and c.dpp and wv & c.rd: need = max(need, 2)
        if c.valu and c.mn.startswith(('v_readlane', 'v_readfirstlane')) and wv & c.rd: need = max(need, 1)
        if c.valu and c.mn.startswith('v_permlane') and wv & c.rd: need = max(need, 2)
        if p.trans and c.valu and not c.trans and wv & c.rd: need = max(need, 1)
        if p.trans and (c.mfma) and wv & c.rd: need = max(need, 2)
        if ws:
            if c.valu and ws & c.rd: need = max(need, 4 if c.mn.startswith(('v_readlane', 'v_writelane')) else 2)
            if c.vmem and ws & c.rd: need = max(need, 5)
            if c.salu and ws & c.rd: need = max(need, 2)
            if 'exec' in ws and (c.mfma): need = max(need, 4)
            if 'exec' in ws and c.valu and c.dpp: need = max(need, 5)
    if p.mfma:
        big = {8: 12, 4: 8}[p.passes]
        if c.mfma:
            if p.wr & (c.srcA | c.srcB): need = max(need, big)
            if p.wr & c.srcC:
                if not (p.wr == c.srcC and p.passes == c.passes): need = max(need, {8: 10, 4: 6}[p.passes])
            if p.wr & c.wr and not (p.wr == c.wr and p.wr == c.srcC and p.passes == c.passes):
                need = max(need, big)
        elif c.valu or c.ds or c.vmem:
            if p.wr & (c.rd | c.wr): need = max(need, big)
            if c.valu and (p.srcC & c.wr): need = max(need, {8: 7, 4: 3}[p.passes])
    if p.salu and 'm0' in p.wr and c.vmem and c.lds_dma: need = max(need, 1)
    if p.salu and 'exec' in p.wr and c.valu and c.dpp: need = max(need, 1)
    if p.vmem and getattr(p, 'store_wide', False) and (c.valu or c.mfma or c.ds or (c.vmem and not 'store' in c.mn)) and p.sdata & c.wr: need = max(need, 2)
    return need
class Asm:
    def __init__(self):
        self.lines = []
        self.vm = []
        self.lg = []
        self.nlabel = 0
        self.seen = set()
    def e(self, text, tag=None):
        for ln in text.split('\n'):
            ln = ln.strip()
            if not ln: continue
            i = Ins(ln)
            if i.vmem and len(self.vm) >= 62:
                self.lines.append('s_waitcnt vmcnt(60)'); self.vm = self.vm[len(self.vm) - 60:]
            self.lines.append(ln)
            self.seen.add(tag)
            if i.vmem: self.vm.append((tag, 'dma' if i.lds_dma else 'reg'))
            if i.ds: self.lg.append(tag)
            if i.mn == 's_waitcnt':
                m = re.search(r'vmcnt\((\d+)\)', ln)
                if m:
                    n = int(m.group(1)); self.vm = self.vm[len(self.vm) - n:] if n and len(self.vm) > n else ([] if n == 0 else self.vm)
                m = re.search(r'lgkmcnt\((\d+)\)', ln)
                if m:
                    n = int(m.group(1)); self.lg = self.lg[len(self.lg) - n:] if n and len(self.lg) > n else ([] if n == 0 else self.lg)
    def _cnt(self, q, tags, mx):
        if not isinstance(tags, (list, set)): tags = [tags]
        idx = [i for i, t in enumerate(q) if t in tags]
        if not idx: return None
        n = len(q) - 1 - max(idx)
        return min(n, mx)
    def wait_vm(self, tags):
        if not isinstance(tags, (list, set)): tags = [tags]
        assert any(t in self.seen for t in tags) or not tags, tags
        idx = [i for i, (t, c) in enumerate(self.vm) if t in tags]
        if not idx: return
        n = 63
        for i in idx:
            cls = self.vm[i][1]
            younger = self.vm[i+1:]
            k = len([1 for (t, c) in younger if c == 'dma']) if cls == 'dma' else len(younger)
            n = min(n, k)
        self.e(f's_waitcnt vmcnt({n})')
    def wait_lg(self, tags):
        n = self._cnt(self.lg, tags, 15)
        if n is not None: self.e(f's_waitcnt lgkmcnt({n})')
    def label(self, name=None):
        if name is None:
            self.nlabel += 1; name = f'L{self.nlabel}'
        self.lines.append(name + ':')
        return name
    def newlabel(self, base='L'):
        self.nlabel += 1
        return f'{base}{self.nlabel}'
    def comment(self, s): self.lines.append('; ' + s)
    def fix_hazards(self, window=24):
        out = []
        ins = []
        added = 0
        for ln in self.lines:
            if ln.startswith(';'):
                out.append(ln); continue
            c = Ins(ln)
            if c.mn:
                need = 0; dist = 0
                for p in reversed(ins[-window:]):
                    r = required(p, c)
                    if r > dist: need = max(need, r - dist)
                    dist += p.states()
                    if dist >= 20: break
                while need > 0:
                    n = min(need, 16)
                    nop = f's_nop {n-1}'
                    out.append(nop); ins.append(Ins(nop)); need -= n; added += 1
            out.append(ln); ins.append(c)
        self.lines = out
        return added
    def text(self):
        res = []
        for ln in self.lines:
            if ln.endswith(':') or ln.startswith(('.', ';')): res.append(ln)
            else: res.append('    ' + ln)
        return '\n'.join(res) + '\n'
```

```python
import sys, os
sys.path.insert(0, os.path.dirname(os.path.abspath(__file__)))
from asmlib import Asm

NAME = 'recurrent_scan__ssm_conv_h3__dense_activation_squared_relu__prompt'
S, D, F = 2048, 512, 1792
WS_KVT, WS_Y2T, WS_W2F, WS_H, WS_ST, WS_FLAG = 0x000000, 0x200000, 0x400000, 0x600000, 0xE00000, 0xE10000
WS_SIZE = 0x10000000
P_Q, P_K, P_V, P_SK, P_SSMK, P_SSMD, P_BX, P_W1 = 4, 6, 8, 10, 12, 14, 16, 18
P_B1, P_W2, P_B2, P_OUT, P_DBG, P_WS = 20, 22, 24, 26, 28, 30
S_WAVE = 3
R_WS, R_A, R_B, R_C = 32, 36, 40, 44
def sp(p): return f's[{p}:{p+1}]'
def srd(a, dst, ptr, size):
    a.e(f's_mov_b32 s{dst}, s{ptr}')
    a.e(f's_mov_b32 s{dst+1}, s{ptr+1}')
    a.e(f's_mov_b32 s{dst+2}, {hex(size)}')
    a.e(f's_mov_b32 s{dst+3}, 0x20000')
def sq(r): return f's[{r}:{r+3}]'
def v(i, n=1): return f'v{i}' if n == 1 else f'v[{i}:{i+n-1}]'
def ac(i, n=1): return f'a{i}' if n == 1 else f'a[{i}:{i+n-1}]'

V_LANE = 1

def prologue(a, endlabel):
    a.e(f's_cmp_ge_u32 s2, 256')
    a.e(f's_cbranch_scc1 {endlabel}')
    a.e('s_load_dwordx16 s[4:19], s[0:1], 0')
    a.e('s_load_dwordx8 s[20:27], s[0:1], 64')
    a.e('s_load_dwordx4 s[28:31], s[0:1], 96')
    a.e(f'v_and_b32 v{V_LANE}, 63, v0')
    a.e('v_lshrrev_b32 v2, 6, v0')
    a.e('s_nop 0')
    a.e(f'v_readfirstlane_b32 s{S_WAVE}, v2')
    a.e('s_waitcnt lgkmcnt(0)')
    srd(a, R_WS, P_WS, WS_SIZE)

def unpack_lo(a, d, s): a.e(f'v_lshlrev_b32 v{d}, 16, v{s}')
def unpack_hi(a, d, s): a.e(f'v_and_b32 v{d}, 0xffff0000, v{s}')

def allreduce2(a, x, y, t0, t1):
    for ctl in ('quad_perm:[1,0,3,2]', 'quad_perm:[2,3,0,1]', 'row_half_mirror', 'row_mirror'):
        a.e(f'v_add_f32_dpp v{x}, v{x}, v{x} {ctl} row_mask:0xf bank_mask:0xf')
        a.e(f'v_add_f32_dpp v{y}, v{y}, v{y} {ctl} row_mask:0xf bank_mask:0xf')
    for sw in ('v_permlane16_swap_b32', 'v_permlane32_swap_b32'):
        a.e(f'v_mov_b32 v{t0}, v{x}')
        a.e(f'v_mov_b32 v{t1}, v{y}')
        a.e(f'{sw} v{x}, v{t0}')
        a.e(f'{sw} v{y}, v{t1}')
        a.e(f'v_add_f32 v{x}, v{x}, v{t0}')
        a.e(f'v_add_f32 v{y}, v{y}, v{t1}')

PRE_LDS = 131072
KIMG, VIMG, WIMG = PRE_LDS, PRE_LDS + 9216, PRE_LDS + 9216 + 8192

class Pre:
    def __init__(self, base=200, sc=''):
        self.b = base; self.sc = sc
    def issue(self, a):
        b = self.b
        L = V_LANE
        srd(a, R_A, P_K, S*D*2); srd(a, R_B, P_V, S*D*2); srd(a, R_C, P_W2, F*D*2)
        a.e('s_lshr_b32 s48, s2, 3'); a.e('s_lshl_b32 s48, s48, 6')
        a.e('s_and_b32 s49, s2, 7'); a.e('s_lshl_b32 s49, s49, 7')
        a.e(f'v_lshrrev_b32 v{b}, 3, v{L}'); a.e(f'v_lshlrev_b32 v{b}, 10, v{b}')
        a.e(f'v_and_b32 v{b+1}, 7, v{L}'); a.e(f'v_lshl_add_u32 v{b}, v{b+1}, 4, v{b}')
        a.e('s_lshl_b32 s50, s48, 10'); a.e('s_add_u32 s50, s50, s49')
        skip = a.newlabel('Lpre_hist')
        a.e(f's_cmp_lg_u32 s{S_WAVE}, 0'); a.e(f's_cbranch_scc1 {skip}')
        a.e(f's_sub_u32 s51, s50, 8192'); a.e(f'v_add_u32 v{b+1}, s51, v{b}')
        a.e(f's_mov_b32 m0, {KIMG}')
        a.e(f'buffer_load_dwordx4 v{b+1}, {sq(R_A)}, 0 offen lds', tag='pre')
        a.label(skip)
        a.e(f's_lshl_b32 s51, s{S_WAVE}, 14'); a.e('s_add_u32 s51, s51, s50')
        a.e(f's_lshl_b32 s52, s{S_WAVE}, 11')
        for jj in range(2):
            a.e(f's_add_u32 s53, s51, {jj*8192}')
            a.e(f's_add_u32 m0, s52, {KIMG + 1024 + jj*1024}')
            a.e(f'buffer_load_dwordx4 v{b}, {sq(R_A)}, s53 offen lds', tag='pre')
            a.e(f's_add_u32 m0, s52, {VIMG + jj*1024}')
            a.e(f'buffer_load_dwordx4 v{b}, {sq(R_B)}, s53 offen lds', tag='pre')
        a.e('s_and_b32 s54, s2, 15'); a.e('s_lshr_b32 s55, s2, 4')
        a.e('s_mul_i32 s56, s55, 112'); a.e(f's_lshl_b32 s57, s{S_WAVE}, 4'); a.e('s_add_u32 s56, s56, s57')
        a.e('s_lshl_b32 s56, s56, 10'); a.e('s_lshl_b32 s57, s54, 6'); a.e('s_add_u32 s56, s56, s57')
        a.e(f'v_lshrrev_b32 v{b+1}, 2, v{L}'); a.e(f'v_lshlrev_b32 v{b+1}, 10, v{b+1}')
        a.e(f'v_and_b32 v{b+2}, 3, v{L}'); a.e(f'v_lshl_add_u32 v{b+1}, v{b+2}, 4, v{b+1}')
        a.e(f's_lshl_b32 s57, s{S_WAVE}, 10')
        for jj in range(2):
            a.e(f's_add_u32 s53, s56, {jj*64*1024}')
            a.e(f's_add_u32 m0, s57, {WIMG + jj*4096}')
            a.e(f'buffer_load_dwordx4 v{b+1}, {sq(R_C)}, s53 offen lds', tag='pre')
        a.e(f's_lshl_b32 s58, s2, 3'); a.e(f's_lshl_b32 s59, s{S_WAVE}, 1'); a.e('s_add_u32 s58, s58, s59')
        a.e(f's_lshl_b32 s59, s58, 10')
        a.e(f'v_lshl_add_u32 v{b+2}, v{L}, 4, s59')
        a.e(f'global_load_dwordx4 {v(b+4,4)}, v{b+2}, {sp(P_Q)}', tag='pre')
        a.e(f'global_load_dwordx4 {v(b+8,4)}, v{b+2}, {sp(P_Q)} offset:1024', tag='pre')
        a.e(f'v_and_b32 v{b+2}, 15, v{L}'); a.e(f's_lshl_b32 s59, s{S_WAVE}, 4'); a.e('s_lshr_b32 s60, s49, 1'); a.e('s_add_u32 s59, s59, s60')
        a.e(f'v_add_u32 v{b+3}, s59, v{b+2}')
        a.e(f'v_lshlrev_b32 v{b+2}, 3, v{b+3}')
        a.e(f'global_load_dwordx2 {v(b+12,2)}, v{b+2}, {sp(P_SK)}', tag='pre')
    def compute(self, a):
        b = self.b; L = V_LANE; sc = self.sc
        a.wait_vm('pre')
        a.e('s_barrier')
        T = b + 16
        a.e(f'v_lshrrev_b32 v{T}, 4, v{L}')
        a.e(f'v_lshlrev_b32 v{T}, 3, v{T}')
        a.e(f'v_bfe_u32 v{T+1}, v{L}, 2, 2')
        a.e(f'v_add_u32 v{T}, v{T}, v{T+1}')
        a.e(f'v_lshlrev_b32 v{T}, 7, v{T}')
        a.e(f'v_and_b32 v{T+1}, 3, v{L}')
        a.e(f'v_lshl_add_u32 v{T}, v{T+1}, 3, v{T}')
        a.e(f's_lshl_b32 s59, s{S_WAVE}, 5')
        a.e(f'v_add_u32 v{T}, s59, v{T}')
        a.e(f'v_add_u32 v{T+1}, {KIMG}, v{T}')
        a.e(f'v_add_u32 v{T+2}, {VIMG}, v{T}')
        KR, VR = b + 20, b + 32
        for run in range(2):
            for j in range(3):
                a.e(f'ds_read_b64_tr_b16 {v(KR+run*6+2*j,2)}, v{T+1} offset:{512 + j*512 + run*4096}', tag='kvr')
            for j in range(2):
                a.e(f'ds_read_b64_tr_b16 {v(VR+run*4+2*j,2)}, v{T+2} offset:{j*512 + run*4096}', tag='kvr')
        a.e(f'v_lshrrev_b32 v{T+3}, 5, v{L}'); a.e(f'v_lshlrev_b32 v{T+3}, 2, v{T+3}')
        a.e(f'v_bfe_u32 v{T}, v{L}, 2, 2'); a.e(f'v_add_u32 v{T+3}, v{T+3}, v{T}'); a.e(f'v_lshlrev_b32 v{T+3}, 6, v{T+3}')
        a.e(f'v_bfe_u32 v{T}, v{L}, 4, 1'); a.e(f'v_lshl_add_u32 v{T+3}, v{T}, 5, v{T+3}')
        a.e(f'v_and_b32 v{T}, 3, v{L}'); a.e(f'v_lshl_add_u32 v{T+3}, v{T}, 3, v{T+3}')
        a.e(f's_lshl_b32 s59, s{S_WAVE}, 10'); a.e(f's_add_u32 s59, s59, {WIMG}')
        a.e(f'v_add_u32 v{T+3}, s59, v{T+3}')
        WR = b + 40
        for jj in range(2):
            a.e(f'ds_read_b64_tr_b16 {v(WR+4*jj,2)}, v{T+3} offset:{jj*4096}', tag='w2r')
            a.e(f'ds_read_b64_tr_b16 {v(WR+4*jj+2,2)}, v{T+3} offset:{jj*4096 + 512}', tag='w2r')
        SK = b + 48
        unpack_lo(a, SK, b+12); unpack_hi(a, SK+1, b+12); unpack_lo(a, SK+2, b+13); unpack_hi(a, SK+3, b+13)
        a.e('s_mul_i32 s59, s54, 112'); a.e('s_mul_i32 s60, s55, 7'); a.e('s_add_u32 s59, s59, s60'); a.e(f's_add_u32 s59, s59, s{S_WAVE}')
        a.e('s_lshl_b32 s59, s59, 10'); a.e(f's_add_u32 s59, s59, {WS_W2F}')
        a.e(f'v_lshlrev_b32 v{T}, 4, v{L}')
        a.wait_lg('w2r')
        a.e(f'buffer_store_dwordx4 {v(WR,4)}, v{T}, {sq(R_WS)}, s59 offen {sc}', tag='prest')
        skip = a.newlabel('Lpre_w2')
        a.e(f's_cmp_eq_u32 s{S_WAVE}, 3'); a.e(f's_cbranch_scc1 {skip}')
        a.e('s_add_u32 s59, s59, 4096')
        a.e(f'buffer_store_dwordx4 {v(WR+4,4)}, v{T}, {sq(R_WS)}, s59 offen {sc}', tag='prest')
        a.label(skip)
        U = b + 52
        a.e(f'v_lshlrev_b32 v{T}, 12, v{b+3}')
        a.e(f'v_lshrrev_b32 v{T+1}, 4, v{L}'); a.e(f'v_lshl_add_u32 v{T}, v{T+1}, 4, v{T}')
        a.e('s_lshl_b32 s59, s48, 1'); a.e(f's_add_u32 s59, s59, {WS_KVT}')
        for run in range(2):
            for j in range(6):
                if j > 0: unpack_lo(a, U+2*j, KR+run*6+j)
                unpack_hi(a, U+2*j+1, KR+run*6+j)
            for j in range(4):
                unpack_lo(a, U+12+2*j, VR+run*4+j); unpack_hi(a, U+12+2*j+1, VR+run*4+j)
            A0 = U + 24
            for t in range(8):
                a.e(f'v_mul_f32 v{A0+t}, v{U+1+t}, v{SK+3}')
            for t in range(8): a.e(f'v_fmac_f32 v{A0+t}, v{U+2+t}, v{SK+2}')
            for t in range(8): a.e(f'v_fmac_f32 v{A0+t}, v{U+3+t}, v{SK+1}')
            for t in range(8): a.e(f'v_fmac_f32 v{A0+t}, v{U+4+t}, v{SK}')
            for t in range(8): a.e(f'v_mul_f32 v{A0+t}, v{A0+t}, v{U+12+t}')
            O = U + 20 + 12 + run*4
            for j in range(4): a.e(f'v_cvt_pk_bf16_f32 v{O+j}, v{A0+2*j}, v{A0+2*j+1}')
            a.e(f'buffer_store_dwordx4 {v(O,4)}, v{T}, {sq(R_WS)}, s59 offen offset:{run*64} {sc}', tag='prest')
        X = b + 52
        for rr in range(2):
            for j in range(4):
                unpack_lo(a, X+8*rr+2*j, b+4+4*rr+j); unpack_hi(a, X+8*rr+2*j+1, b+4+4*rr+j)
        SA, SB, t0, t1 = X+16, X+17, X+18, X+19
        for rr, Sx in ((0, SA), (1, SB)):
            a.e(f'v_add_f32 v{Sx}, v{X+8*rr}, v{X+8*rr+1}')
            for j in range(2, 8): a.e(f'v_add_f32 v{Sx}, v{Sx}, v{X+8*rr+j}')
        allreduce2(a, SA, SB, t0, t1)
        a.e(f'v_mul_f32 v{SA}, 0x3b000000, v{SA}'); a.e(f'v_mul_f32 v{SB}, 0x3b000000, v{SB}')
        QA, QB = X+20, X+21
        for rr, Sx, Q in ((0, SA, QA), (1, SB, QB)):
            for j in range(8):
                a.e(f'v_sub_f32 v{X+8*rr+j}, v{X+8*rr+j}, v{Sx}')
            a.e(f'v_mul_f32 v{Q}, v{X+8*rr}, v{X+8*rr}')
            for j in range(1, 8): a.e(f'v_fmac_f32 v{Q}, v{X+8*rr+j}, v{X+8*rr+j}')
        allreduce2(a, QA, QB, t0, t1)
        a.e(f'v_mul_f32 v{QA}, 0x3b000000, v{QA}'); a.e(f'v_mul_f32 v{QB}, 0x3b000000, v{QB}')
        R0 = X + 22
        OUT = X + 24
        for Sx, Q, o in ((SA, QA, OUT), (SB, QB, OUT+2)):
            a.e(f'v_cvt_pk_bf16_f32 v{t0}, v{Sx}, v{Q}')
            unpack_lo(a, o, t0)
            unpack_hi(a, t1, t0)
            a.e(f'v_add_f32 v{t1}, 0x3727c5ac, v{t1}')
            a.e(f'v_cvt_pk_bf16_f32 v{t1}, v{t1}, v{t1}')
            unpack_lo(a, t1, t1)
            a.e(f'v_sqrt_f32 v{t1}, v{t1}')
            a.e(f'v_cvt_pk_bf16_f32 v{t1}, v{t1}, v{t1}')
            unpack_lo(a, t1, t1)
            a.e(f'v_rcp_f32 v{o+1}, v{t1}')
        a.e(f's_lshl_b32 s59, s58, 3'); a.e(f's_add_u32 s59, s59, {WS_ST}')
        a.e(f'v_mov_b32 v{t0}, 0')
        a.e('s_mov_b64 exec, 1')
        a.e(f'buffer_store_dwordx4 {v(OUT,4)}, v{t0}, {sq(R_WS)}, s59 offen {sc}', tag='prest')
        a.e('s_mov_b64 exec, -1')

class Gemm1:
    ACC = 64
    FR = 128
    VW, VX = 8, 9
    VA = 12
    VB = 16
    CS = 160
    SEL = 168
    B1 = 172
    def __init__(self, sc=''): self.sc = sc
    def setup(self, a):
        L = V_LANE
        srd(a, R_A, P_W1, D*F*2); srd(a, R_B, P_Q, S*D*2)
        a.e('s_and_b32 s61, s2, 7'); a.e('s_lshr_b32 s62, s2, 3')
        a.e('s_lshr_b32 s63, s61, 1'); a.e('s_lshl_b32 s63, s63, 9'); a.e('s_and_b32 s64, s62, 3'); a.e('s_lshl_b32 s64, s64, 7'); a.e('s_add_u32 s63, s63, s64')
        a.e('s_and_b32 s64, s61, 1'); a.e('s_mul_i32 s64, s64, 896'); a.e('s_lshr_b32 s65, s62, 2'); a.e('s_lshl_b32 s65, s65, 7'); a.e('s_add_u32 s64, s64, s65')
        t = 24
        a.e(f'v_lshrrev_b32 v{t}, 4, v{L}')
        a.e(f'v_mul_u32_u24 v{self.VW}, 3584, v{t}')
        a.e(f'v_lshlrev_b32 v{t+1}, 2, v{t}'); a.e(f'v_and_b32 v{t+2}, 15, v{L}'); a.e(f'v_xor_b32 v{t+1}, v{t+1}, v{t+2}')
        a.e(f'v_lshl_add_u32 v{self.VW}, v{t+1}, 4, v{self.VW}')
        a.e(f'v_lshrrev_b32 v{t+1}, 3, v{L}'); a.e(f'v_lshlrev_b32 v{t+1}, 10, v{t+1}')
        a.e(f'v_and_b32 v{t+2}, 7, v{L}')
        a.e(f'v_xor_b32 v{t+3}, v{t+2}, v{t}'); a.e(f'v_lshl_add_u32 v{self.VX}, v{t+3}, 4, v{t+1}')
        a.e(f'v_xor_b32 v{t+3}, 4, v{t+3}'); a.e(f'v_lshl_add_u32 v{self.VX+1}, v{t+3}, 4, v{t+1}')
        a.e(f's_mul_i32 s66, s{S_WAVE}, {16*3584}'); a.e('s_lshl_b32 s69, s64, 1'); a.e('s_add_u32 s66, s66, s69')
        a.e(f's_lshl_b32 s67, s{S_WAVE}, 5'); a.e('s_add_u32 s67, s67, s63'); a.e('s_lshl_b32 s67, s67, 10')
        a.e(f's_lshl_b32 s68, s{S_WAVE}, 12')
        a.e(f's_and_b32 s70, s{S_WAVE}, 1'); a.e(f's_lshr_b32 s71, s{S_WAVE}, 1')
        a.e(f'v_lshrrev_b32 v{t}, 5, v{L}'); a.e(f'v_lshlrev_b32 v{t}, 3, v{t}')
        a.e(f's_lshl_b32 s69, s70, 6'); a.e('s_add_u32 s69, s69, s64'); a.e('s_lshl_b32 s69, s69, 1')
        a.e(f'v_add_u32 v{t}, s69, v{t}')
        for aa in range(2):
            for q in range(4):
                a.e(f'global_load_dwordx2 {v(self.B1+(aa*4+q)*2,2)}, v{t}, {sp(P_B1)} offset:{aa*64+q*16}', tag='b1')
    def dma(self, a, s):
        slot = (s & 3) * 32768
        for jj in range(4):
            a.e(f's_add_u32 s69, s66, {(64*s + 4*jj)*3584}')
            a.e(f's_add_u32 m0, s68, {slot + jj*1024}')
            a.e(f'buffer_load_dwordx4 v{self.VW}, {sq(R_A)}, s69 offen lds', tag=('g1', s))
            a.e(f's_add_u32 s69, s67, {8*jj*1024 + 128*s}')
            a.e(f's_add_u32 m0, s68, {slot + 16384 + jj*1024}')
            a.e(f'buffer_load_dwordx4 v{self.VX + (jj&1)}, {sq(R_B)}, s69 offen lds', tag=('g1', s))
    def setup2(self, a):
        L = V_LANE; t = 24
        a.e(f'v_lshrrev_b32 v{t}, 5, v{L}'); a.e(f'v_lshlrev_b32 v{t}, 3, v{t}'); a.e(f'v_bfe_u32 v{t+1}, v{L}, 2, 2'); a.e(f'v_add_u32 v{t}, v{t}, v{t+1}')
        a.e(f'v_lshlrev_b32 v{t}, 8, v{t}')
        a.e(f'v_and_b32 v{t+2}, 1, v{L}'); a.e(f'v_lshl_add_u32 v{t}, v{t+2}, 3, v{t}')
        a.e(f'v_bfe_u32 v{t+2}, v{L}, 4, 1'); a.e(f'v_lshlrev_b32 v{t+2}, 1, v{t+2}'); a.e(f'v_bfe_u32 v{t+3}, v{L}, 1, 1'); a.e(f'v_add_u32 v{t+2}, v{t+2}, v{t+3}')
        a.e(f's_lshl_b32 s69, s70, 3'); a.e(f'v_add_u32 v{t+2}, s69, v{t+2}')
        a.e(f'v_lshlrev_b32 v{t+1}, 2, v{t+1}')
        for aa in range(2):
            a.e(f'v_add_u32 v{t+3}, {4*aa}, v{t+2}'); a.e(f'v_xor_b32 v{t+3}, v{t+3}, v{t+1}')
            a.e(f'v_lshl_add_u32 v{self.VA+2*aa}, v{t+3}, 4, v{t}')
            a.e(f'v_add_u32 v{self.VA+2*aa+1}, 0x10000, v{self.VA+2*aa}')
        a.e(f'v_and_b32 v{t}, 31, v{L}'); a.e(f's_lshl_b32 s69, s71, 6'); a.e(f'v_add_u32 v{t}, s69, v{t}'); a.e(f'v_lshlrev_b32 v{t}, 7, v{t}')
        a.e(f'v_add_u32 v{t}, 16384, v{t}')
        a.e(f'v_bfe_u32 v{t+1}, v{L}, 1, 3'); a.e(f'v_lshrrev_b32 v{t+2}, 5, v{L}'); a.e(f'v_xor_b32 v{t+1}, v{t+1}, v{t+2}')
        for kk in range(4):
            a.e(f'v_xor_b32 v{t+2}, {2*kk}, v{t+1}'); a.e(f'v_lshl_add_u32 v{self.VB+2*kk}, v{t+2}, 4, v{t}')
            a.e(f'v_add_u32 v{self.VB+2*kk+1}, 0x10000, v{self.VB+2*kk}')
        a.e(f'v_bfe_u32 v{t}, v{L}, 4, 1'); a.e(f'v_and_b32 v{t+1}, 1, v{L}'); a.e(f'v_cmp_eq_u32 vcc, v{t}, v{t+1}')
        a.e(f'v_mov_b32 v{t+2}, 0x3f803f80')
        for j in range(4): a.e(f'v_cndmask_b32 v{self.SEL+j}, 0, v{t+2}, vcc')
        for i in range(64): a.e(f'v_mov_b32 v{self.ACC+i}, 0')
        for i in range(8): a.e(f'v_mov_b32 v{self.CS+i}, 0')
    def reads(self, a, s, kk, p):
        slot = (s & 3); hi = slot >> 1; base = (slot & 1) * 32768
        F0 = self.FR + 16*p
        tg = ('fr', s, kk)
        a.e(f'ds_read_b64_tr_b16 {v(F0,2)}, v{self.VA+hi} offset:{base + kk*4096}', tag=tg+('A0',))
        a.e(f'ds_read_b64_tr_b16 {v(F0+2,2)}, v{self.VA+hi} offset:{base + kk*4096 + 1024}', tag=tg+('A0',))
        a.e(f'ds_read_b128 {v(F0+8,4)}, v{self.VB+2*kk+hi} offset:{base}', tag=tg+('B0',))
        a.e(f'ds_read_b128 {v(F0+12,4)}, v{self.VB+2*kk+hi} offset:{base + 4096}', tag=tg+('B1',))
        a.e(f'ds_read_b64_tr_b16 {v(F0+4,2)}, v{self.VA+2+hi} offset:{base + kk*4096}', tag=tg+('A1',))
        a.e(f'ds_read_b64_tr_b16 {v(F0+6,2)}, v{self.VA+2+hi} offset:{base + kk*4096 + 1024}', tag=tg+('A1',))
    def read_list(self, s, kk, p):
        slot = (s & 3); hi = slot >> 1; base = (slot & 1) * 32768
        F0 = self.FR + 16*p
        tg = ('fr', s, kk)
        return [
          (f'ds_read_b64_tr_b16 {v(F0,2)}, v{self.VA+hi} offset:{base + kk*4096}', tg+('A0',)),
          (f'ds_read_b64_tr_b16 {v(F0+2,2)}, v{self.VA+hi} offset:{base + kk*4096 + 1024}', tg+('A0',)),
          (f'ds_read_b128 {v(F0+8,4)}, v{self.VB+2*kk+hi} offset:{base}', tg+('B0',)),
          (f'ds_read_b128 {v(F0+12,4)}, v{self.VB+2*kk+hi} offset:{base + 4096}', tg+('B1',)),
          (f'ds_read_b64_tr_b16 {v(F0+4,2)}, v{self.VA+2+hi} offset:{base + kk*4096}', tg+('A1',)),
          (f'ds_read_b64_tr_b16 {v(F0+6,2)}, v{self.VA+2+hi} offset:{base + kk*4096 + 1024}', tg+('A1',))]
    def mfmas(self, a, s, kk, p, fill):
        F0 = self.FR + 16*p; tg = ('fr', s, kk)
        order = [(0, 0), (0, 1), (1, 0), (1, 1)]
        need = [[tg+('A0',), tg+('B0',)], [tg+('B1',)], [tg+('A1',)], []]
        fill = list(fill)
        per = (len(fill) + 3) // 4
        for i, (aa, bb) in enumerate(order):
            if need[i]: a.wait_lg(need[i])
            acc = self.ACC + (aa*2+bb)*16
            a.e(f'v_mfma_f32_32x32x16_bf16 {v(acc,16)}, {v(F0+4*aa,4)}, {v(F0+8+4*bb,4)}, {v(acc,16)}')
            for _ in range(per):
                if fill:
                    t, tag = fill.pop(0); a.e(t, tag=tag)
        par = kk & 1
        skip = a.newlabel('Lcs')
        a.e(f's_cmp_lg_u32 s71, {par}'); a.e(f's_cbranch_scc1 {skip}')
        for aa in range(2):
            a.e(f'v_mfma_f32_16x16x32_bf16 {v(self.CS+4*aa,4)}, {v(F0+4*aa,4)}, {v(self.SEL,4)}, {v(self.CS+4*aa,4)}')
        a.label(skip)
    def main(self, a, extra=None):
        a.comment('gemm1: main loop')
        prev = None
        p = 0
        for s in range(8):
            a.wait_vm(('g1', s))
            a.wait_lg([('fr', s-1, 3, x) for x in ('A0', 'A1', 'B0', 'B1')])
            a.e('s_barrier')
            for kk in range(4):
                fill = self.read_list(s, kk, p)
                if prev is None:
                    for t, tag in fill: a.e(t, tag=tag)
                else:
                    extra_f = []
                    self.mfmas(a, prev[0], prev[1], prev[2], fill)
                if kk == 0 and s >= 1 and s + 3 < 8:
                    self.dma(a, s + 3)
                prev = (s, kk, p); p ^= 1
        self.mfmas(a, prev[0], prev[1], prev[2], [])
    def epilogue(self, a):
        L = V_LANE; sc = self.sc
        CSB = 0
        t = 24
        a.e('s_barrier')
        a.e(f'v_and_b32 v{t}, 1, v{L}'); a.e(f'v_lshlrev_b32 v{t}, 6, v{t}'); a.e(f'v_lshrrev_b32 v{t+1}, 4, v{L}'); a.e(f'v_lshl_add_u32 v{t}, v{t+1}, 4, v{t}')
        a.e(f's_lshl_b32 s69, s{S_WAVE}, 8')
        a.e(f'v_add_u32 v{t}, s69, v{t}')
        for aa in range(2):
            a.e(f'ds_write_b128 v{t}, {v(self.CS+4*aa,4)} offset:{CSB + aa*128}', tag='csw')
        ST = 28
        a.e(f'v_and_b32 v{t+1}, 31, v{L}'); a.e(f's_lshl_b32 s69, s71, 6'); a.e('s_add_u32 s69, s69, s63'); a.e(f'v_add_u32 v{t+1}, s69, v{t+1}')
        a.e(f'v_lshlrev_b32 v{t+1}, 3, v{t+1}'); a.e(f'v_add_u32 v{t+1}, {WS_ST}, v{t+1}')
        for bb in range(2):
            a.e(f'buffer_load_dwordx2 {v(ST+2*bb,2)}, v{t+1}, {sq(R_WS)}, 0 offen offset:{bb*256} {sc}', tag='st')
        a.wait_lg('csw')
        a.e('s_barrier')
        CSV = self.FR
        TMP = 192
        a.e(f'v_lshrrev_b32 v{t}, 5, v{L}'); a.e(f'v_lshlrev_b32 v{t}, 4, v{t}'); a.e('s_lshl_b32 s69, s70, 8'); a.e(f'v_add_u32 v{t}, s69, v{t}')
        for aa in range(2):
            for q in range(4):
                a.e(f'ds_read_b128 {v(CSV+(aa*4+q)*4,4)}, v{t} offset:{CSB + aa*128 + q*32}', tag='csr')
                a.e(f'ds_read_b128 {v(TMP+(aa*4+q)*4,4)}, v{t} offset:{CSB + 512 + aa*128 + q*32}', tag='csr')
        a.wait_lg('csr')
        for i in range(16): a.e(f'v_pk_add_f32 {v(CSV+2*i,2)}, {v(CSV+2*i,2)}, {v(TMP+2*i,2)}')
        a.wait_vm('b1')
        for i in range(16):
            unpack_lo(a, TMP+2*i, self.B1+i); unpack_hi(a, TMP+2*i+1, self.B1+i)
        a.wait_vm('st')
        for bb in range(2): a.e(f'v_xor_b32 v{ST+2*bb}, 0x80000000, v{ST+2*bb}')
        a.e('s_lshl_b32 s69, s71, 6'); a.e('s_add_u32 s69, s69, s63'); a.e('s_lshr_b32 s69, s69, 5'); a.e('s_mul_i32 s69, s69, 112')
        a.e('s_lshl_b32 s72, s70, 6'); a.e('s_add_u32 s72, s72, s64'); a.e('s_lshr_b32 s72, s72, 4'); a.e('s_add_u32 s69, s69, s72')
        a.e('s_lshl_b32 s69, s69, 10'); a.e(f's_add_u32 s69, s69, {WS_H}')
        a.e(f'v_lshlrev_b32 v{t}, 4, v{L}')
        OUT = 224
        n = 0
        for bb in range(2):
            for aa in range(2):
                acc = self.ACC + (aa*2+bb)*16
                for half in range(2):
                    O = OUT + 4*(n % 4); n += 1
                    for j in range(4):
                        r = half*8 + 2*j
                        A_ = v(acc+r, 2); C_ = v(CSV+aa*16+r, 2); B_ = v(TMP+aa*16+r, 2)
                        a.e(f'v_pk_fma_f32 {A_}, {C_}, {v(ST+2*bb,2)}, {A_} op_sel_hi:[1,0,1]')
                        a.e(f'v_pk_fma_f32 {A_}, {A_}, {v(ST+2*bb,2)}, {B_} op_sel:[0,1,0] op_sel_hi:[1,1,1]')
                        a.e(f'v_max_f32 v{acc+r}, 0, v{acc+r}'); a.e(f'v_max_f32 v{acc+r+1}, 0, v{acc+r+1}')
                        a.e(f'v_pk_mul_f32 {A_}, {A_}, {A_}')
                        a.e(f'v_cvt_pk_bf16_f32 v{O+j}, v{acc+r}, v{acc+r+1}')
                    ks = aa*2 + half
                    off = bb*112*1024 + ks*1024
                    a.e(f's_add_u32 s72, s69, {off}')
                    a.e(f'buffer_store_dwordx4 {v(O,4)}, v{t}, {sq(R_WS)}, s72 offen {sc}', tag='hst')

HC0 = 0
HC_CH = 16640
KV0 = 2*HC_CH
KV_CH = 4608
RED0 = KV0 + 2*KV_CH
class Conv:
    HRAW = 232
    ACC = 8
    FA = 64
    def __init__(self, sc=''): self.sc = sc
    def issue_filter(self, a):
        a.comment('conv: filter raw loads')
        t = 244
        a.e('s_lshl_b32 s73, s2, 13')
        a.e(f'v_lshl_add_u32 v{t}, v0, 4, s73')
        a.e(f'v_subrev_u32 v{t+1}, 8, v{t}')
        a.e(f'v_max_i32 v{t+1}, 0, v{t+1}')
        a.e(f'global_load_dwordx4 {v(232,4)}, v{t}, {sp(P_SSMK)}', tag='hraw')
        a.e(f'global_load_dwordx2 {v(236,2)}, v{t+1}, {sp(P_SSMK)}', tag='hraw')
        a.e(f'v_add_u32 v{t}, 4096, v{t}'); a.e(f'v_add_u32 v{t+1}, 4096, v{t+1}')
        a.e(f'global_load_dwordx4 {v(240,4)}, v{t}, {sp(P_SSMK)}', tag='hraw')
        a.e(f'global_load_dwordx2 {v(238,2)}, v{t+1}, {sp(P_SSMK)}', tag='hraw')
    def prep(self, a):
        L = V_LANE; sc = self.sc
        t = 8
        a.e('s_lshl_b32 s73, s2, 13'); a.e(f's_add_u32 s73, s73, {WS_KVT}')
        a.e(f'v_lshlrev_b32 v{t}, 4, v0')
        a.e(f'buffer_load_dwordx4 {v(12,4)}, v{t}, {sq(R_WS)}, s73 offen {sc}', tag='kvl')
        a.e('s_add_u32 s73, s73, 4096')
        a.e(f'buffer_load_dwordx4 {v(16,4)}, v{t}, {sq(R_WS)}, s73 offen {sc}', tag='kvl')
        a.e('s_lshl_b32 s74, s2, 2')
        a.e(f's_load_dword s75, {sp(P_SSMD)}, s74')
        a.wait_vm('hraw')
        a.e(f'v_cmp_eq_u32 vcc, 0, v0')
        a.e(f'v_add_u32 v{t+1}, 32, v{t}')
        W = 20
        for ch in range(2):
            d0 = 232 if ch == 0 else 240; dm = 236 if ch == 0 else 238
            a.e(f'v_cndmask_b32 v{dm}, v{dm}, 0, vcc' if False else f'v_cndmask_b32_e64 v{dm}, v{dm}, 0, vcc')
            a.e(f'v_cndmask_b32_e64 v{dm+1}, v{dm+1}, 0, vcc')
            base = HC0 + ch*HC_CH
            a.e(f'ds_write_b128 v{t+1}, {v(d0,4)} offset:{base}', tag='hw')
            src = [dm+1, d0, d0+1, d0+2, d0+3]
            for j in range(4): a.e(f'v_alignbit_b32 v{W+j}, v{src[j+1]}, v{src[j]}, 16')
            a.e(f'ds_write_b128 v{t+1}, {v(W,4)} offset:{base + 4160}', tag='hw')
            for j in range(4): a.e(f'v_mov_b32 v{W+4+j}, v{src[j]}')
            a.e(f'ds_write_b128 v{t+1}, {v(W+4,4)} offset:{base + 2*4160}', tag='hw')
            a.e(f'v_alignbit_b32 v{W+8}, v{dm+1}, v{dm}, 16')
            for j in range(3): a.e(f'v_mov_b32 v{W+9+j}, v{W+j}')
            a.e(f'ds_write_b128 v{t+1}, {v(W+8,4)} offset:{base + 3*4160}', tag='hw')
            W = 32 if ch == 0 else 20
        Z = 44
        for j in range(4): a.e(f'v_mov_b32 v{Z+j}, 0')
        a.e(f'v_lshrrev_b32 v{t+2}, 1, v0'); a.e(f'v_and_b32 v{t+3}, 3, v{t+2}'); a.e(f'v_mul_u32_u24 v{t+3}, 4160, v{t+3}')
        a.e(f'v_bfe_u32 v{t+2}, v0, 3, 1'); a.e(f'v_mul_u32_u24 v{t+2}, {HC_CH}, v{t+2}'); a.e(f'v_add_u32 v{t+3}, v{t+3}, v{t+2}')
        a.e(f'v_and_b32 v{t+2}, 1, v0'); a.e(f'v_lshl_add_u32 v{t+3}, v{t+2}, 4, v{t+3}')
        a.e(f'v_subrev_u32 v{t+2}, 16, v0'); a.e(f'v_and_b32 v{Z+4}, 31, v{t+2}'); a.e(f'v_lshlrev_b32 v{Z+4}, 4, v{Z+4}')
        a.e(f'v_bfe_u32 v{t+2}, v{t+2}, 5, 1'); a.e(f'v_mul_u32_u24 v{t+2}, {KV_CH}, v{t+2}'); a.e(f'v_add_u32 v{Z+4}, v{Z+4}, v{t+2}'); a.e(f'v_add_u32 v{Z+4}, {KV0}, v{Z+4}')
        a.e(f'v_cmp_gt_u32 vcc, 16, v0')
        a.e(f'v_cndmask_b32 v{t+3}, v{Z+4}, v{t+3}, vcc')
        a.e(f'v_cmp_gt_u32 vcc, 80, v0')
        a.e('s_and_saveexec_b64 s[76:77], vcc')
        lab = a.newlabel('Lcz')
        a.e(f's_cbranch_execz {lab}')
        a.e(f'ds_write_b128 v{t+3}, {v(Z,4)}', tag='hw')
        a.label(lab)
        a.e('s_mov_b64 exec, s[76:77]')
        a.wait_vm('kvl')
        a.e(f'v_lshlrev_b32 v{t+2}, 4, v0')
        a.e(f'ds_write_b128 v{t+2}, {v(12,4)} offset:{KV0 + 512}', tag='hw')
        a.e(f'ds_write_b128 v{t+2}, {v(16,4)} offset:{KV0 + KV_CH + 512}', tag='hw')
        a.e('s_waitcnt lgkmcnt(0)')
        a.e('s_barrier')
    def main(self, a):
        L = V_LANE
        VA_, VB_ = 2, 3
        t = 4
        a.e(f's_lshr_b32 s76, s{S_WAVE}, 1'); a.e(f's_and_b32 s77, s{S_WAVE}, 1')
        a.e(f'v_bfe_u32 v{t}, v{L}, 2, 2'); a.e(f'v_mul_u32_u24 v{VA_}, 4160, v{t}')
        a.e(f'v_and_b32 v{t}, 3, v{L}'); a.e(f'v_lshl_add_u32 v{VA_}, v{t}, 3, v{VA_}')
        a.e(f'v_lshrrev_b32 v{t}, 4, v{L}'); a.e(f'v_lshlrev_b32 v{t}, 4, v{t}'); a.e(f'v_sub_u32 v{VA_}, v{VA_}, v{t}')
        a.e(f's_mul_i32 s78, s76, {HC_CH}'); a.e(f's_lshl_b32 s79, s77, 8'); a.e('s_add_u32 s78, s78, s79'); a.e(f's_add_u32 s78, s78, {HC0 + 56}')
        a.e(f'v_add_u32 v{VA_}, s78, v{VA_}')
        a.e(f'v_and_b32 v{t}, 15, v{L}'); a.e(f'v_lshlrev_b32 v{VB_}, 5, v{t}')
        a.e(f'v_lshrrev_b32 v{t}, 4, v{L}'); a.e(f'v_lshl_add_u32 v{VB_}, v{t}, 4, v{VB_}')
        a.e(f's_mul_i32 s78, s76, {KV_CH}'); a.e(f's_lshl_b32 s79, s77, 8'); a.e('s_sub_u32 s78, s78, s79'); a.e(f's_add_u32 s78, s78, {KV0 + 32 + 256}')
        a.e(f'v_add_u32 v{VB_}, s78, v{VB_}')
        for i in range(32): a.e(f'v_mov_b32 v{self.ACC+i}, 0')
        def rd(it, p):
            FA = self.FA + 64*p; res = []
            for j in range(8):
                res.append((f'ds_read_b64_tr_b16 {v(FA+4*j,2)}, v{VA_} offset:{512*j + 64*it + 8}', ('cA', it, j)))
                res.append((f'ds_read_b64_tr_b16 {v(FA+4*j+2,2)}, v{VA_} offset:{512*j + 64*it}', ('cA', it, j)))
                res.append((f'ds_read_b128 {v(FA+32+4*j,4)}, v{VB_} offset:{512*j + (3-it)*64}', ('cB', it, j)))
            return res
        first = rd(0, 0)
        for tx, tg in first: a.e(tx, tag=tg)
        for it in range(4):
            p = it & 1; FA = self.FA + 64*p
            fill = rd(it+1, p ^ 1) if it < 3 else []
            pairs = [(j1, d) for j1 in range(8) for d in range(8) if j1 + d <= 7]
            pairs.sort(key=lambda x: (max(x), x))
            seen = set()
            nf = len(fill); k = 0
            for idx, (j1, d) in enumerate(pairs):
                need = []
                if ('cA', it, j1) not in seen: need.append(('cA', it, j1)); seen.add(('cA', it, j1))
                if ('cB', it, d) not in seen: need.append(('cB', it, d)); seen.add(('cB', it, d))
                if need: a.wait_lg(need)
                q = j1 + d
                a.e(f'v_mfma_f32_16x16x32_bf16 {v(self.ACC+4*q,4)}, {v(FA+4*j1,4)}, {v(FA+32+4*d,4)}, {v(self.ACC+4*q,4)}')
                want = ((idx + 1) * nf) // 30
                while k < min(want, nf):
                    tx, tg = fill[k]; a.e(tx, tag=tg); k += 1
            while k < nf:
                tx, tg = fill[k]; a.e(tx, tag=tg); k += 1
    def epilogue(self, a):
        L = V_LANE; sc = self.sc
        t = 4
        a.e(f'v_lshlrev_b32 v{t}, 4, v{L}')
        a.e(f's_lshl_b32 s78, s{S_WAVE}, 12'); a.e(f's_add_u32 s78, s78, {RED0}')
        a.e(f'v_add_u32 v{t+1}, s78, v{t}')
        a.e(f's_xor_b32 s79, s78, 4096' if (RED0 % 8192 == 0) else f's_xor_b32 s79, s{S_WAVE}, 1')
        if RED0 % 8192 != 0:
            a.e('s_lshl_b32 s79, s79, 12'); a.e(f's_add_u32 s79, s79, {RED0}')
        a.e(f'v_add_u32 v{t+2}, s79, v{t}')
        lab1 = a.newlabel('Lce'); lab2 = a.newlabel('Lce')
        K = 40
        a.e('s_cmp_eq_u32 s77, 0'); a.e(f's_cbranch_scc0 {lab1}')
        for j in range(4): a.e(f'ds_write_b128 v{t+1}, {v(self.ACC+16+4*j,4)} offset:{j*1024}')
        for j in range(16): a.e(f'v_mov_b32 v{K+j}, v{self.ACC+j}')
        a.e(f's_branch {lab2}')
        a.label(lab1)
        for j in range(4): a.e(f'ds_write_b128 v{t+1}, {v(self.ACC+4*j,4)} offset:{j*1024}')
        for j in range(16): a.e(f'v_mov_b32 v{K+j}, v{self.ACC+16+j}')
        a.label(lab2)
        a.e('s_waitcnt lgkmcnt(0)')
        a.e('s_barrier')
        P = 64
        for j in range(4): a.e(f'ds_read_b128 {v(P+4*j,4)}, v{t+2} offset:{j*1024}', tag='red')
        a.e(f'v_and_b32 v{t}, 15, v{L}'); a.e(f'v_lshlrev_b32 v{t}, 5, v{t}'); a.e(f'v_lshrrev_b32 v{t+1}, 4, v{L}'); a.e(f'v_lshl_add_u32 v{t}, v{t+1}, 3, v{t}')
        a.e(f's_mul_i32 s78, s76, {KV_CH}'); a.e('s_lshl_b32 s79, s77, 11'); a.e('s_add_u32 s78, s78, s79'); a.e(f's_add_u32 s78, s78, {KV0+512}')
        a.e(f'v_add_u32 v{t+1}, s78, v{t}')
        KVv = 80
        for j in range(4): a.e(f'ds_read_b64 {v(KVv+2*j,2)}, v{t+1} offset:{j*512}', tag='kvv')
        a.e('s_lshl_b32 s78, s75, 16'); a.e('s_and_b32 s79, s75, 0xffff0000'); a.e('s_cmp_eq_u32 s76, 0'); a.e('s_cselect_b32 s78, s78, s79')
        a.e('s_lshl_b32 s79, s2, 1'); a.e('s_add_u32 s79, s79, s76'); a.e('s_lshl_b32 s79, s79, 12'); a.e('s_lshl_b32 s80, s77, 11'); a.e('s_add_u32 s79, s79, s80')
        a.e(f's_add_u32 s79, s79, {WS_Y2T}')
        a.wait_lg('red')
        for j in range(8): a.e(f'v_pk_add_f32 {v(K+2*j,2)}, {v(K+2*j,2)}, {v(P+2*j,2)}')
        a.wait_lg('kvv')
        U = 96
        for j in range(4):
            for e in range(2):
                unpack_lo(a, U+2*e, KVv+2*j+e); unpack_hi(a, U+2*e+1, KVv+2*j+e)
            for e in range(4): a.e(f'v_fmac_f32 v{K+4*j+e}, s78, v{U+e}')
            O = 100 + 2*j
            a.e(f'v_cvt_pk_bf16_f32 v{O}, v{K+4*j}, v{K+4*j+1}'); a.e(f'v_cvt_pk_bf16_f32 v{O+1}, v{K+4*j+2}, v{K+4*j+3}')
            a.e(f'buffer_store_dwordx2 {v(O,2)}, v{t}, {sq(R_WS)}, s79 offen offset:{j*512} {sc}', tag='yst')

Y2L = 0
RED2 = 8192
class Gemm2:
    ACC = 8
    RB = 72
    NR = 14
    def __init__(self, sc=''): self.sc = sc
    def setup(self, a):
        L = V_LANE
        a.e('s_and_b32 s81, s2, 7'); a.e('s_lshl_b32 s81, s81, 8'); a.e('s_lshr_b32 s82, s2, 3'); a.e('s_and_b32 s83, s82, 3'); a.e('s_lshl_b32 s83, s83, 6'); a.e('s_add_u32 s81, s81, s83')
        a.e('s_lshr_b32 s82, s82, 2'); a.e('s_lshl_b32 s82, s82, 6')
    def load_w(self, a):
        L = V_LANE; sc = self.sc
        a.e(f'v_lshlrev_b32 v2, 4, v{L}')
        a.e('s_lshr_b32 s83, s82, 5'); a.e('s_mul_i32 s83, s83, 112'); a.e(f's_mul_i32 s84, s{S_WAVE}, 28'); a.e('s_add_u32 s83, s83, s84')
        a.e('s_lshl_b32 s83, s83, 10'); a.e(f's_add_u32 s83, s83, {WS_W2F}')
        for aa in range(2):
            for kl in range(28):
                if kl % 4 == 0: a.e(f's_add_u32 s84, s83, {(aa*112 + kl)*1024}')
                a.e(f'buffer_load_dwordx4 {ac((kl*2+aa)*4,4)}, v2, {sq(R_WS)}, s84 offen offset:{(kl%4)*1024} {sc}', tag=('w2', kl))
    def hload(self, a, kl):
        sc = self.sc
        r = self.RB + (kl % self.NR)*8
        a.e(f's_add_u32 s86, s85, {kl*1024}')
        a.e(f'buffer_load_dwordx4 {v(r,4)}, v2, {sq(R_WS)}, s86 offen {sc}', tag=('h', kl))
        a.e(f's_add_u32 s86, s85, {(112+kl)*1024}')
        a.e(f'buffer_load_dwordx4 {v(r+4,4)}, v2, {sq(R_WS)}, s86 offen {sc}', tag=('h', kl))
    def main(self, a):
        L = V_LANE
        a.e('s_lshr_b32 s85, s81, 5'); a.e('s_mul_i32 s85, s85, 112'); a.e(f's_mul_i32 s84, s{S_WAVE}, 28'); a.e('s_add_u32 s85, s85, s84')
        a.e('s_lshl_b32 s85, s85, 10'); a.e(f's_add_u32 s85, s85, {WS_H}')
        a.e(f'v_lshlrev_b32 v2, 4, v{L}')
        for kl in range(self.NR): self.hload(a, kl)
        for i in range(64): a.e(f'v_mov_b32 v{self.ACC+i}, 0')
        for kl in range(28):
            a.wait_vm([('h', kl), ('w2', kl)])
            r = self.RB + (kl % self.NR)*8
            for aa in range(2):
                for bb in range(2):
                    acc = self.ACC + (aa*2+bb)*16
                    a.e(f'v_mfma_f32_32x32x16_bf16 {v(acc,16)}, {ac((kl*2+aa)*4,4)}, {v(r+4*bb,4)}, {v(acc,16)}')
            if kl + self.NR < 28: self.hload(a, kl + self.NR)
    def issue_epi_loads(self, a):
        L = V_LANE; sc = self.sc
        E = 184
        a.e(f's_and_b32 s87, s{S_WAVE}, 1'); a.e(f's_lshr_b32 s88, s{S_WAVE}, 1')
        a.e(f'v_and_b32 v3, 31, v{L}'); a.e('s_lshl_b32 s89, s88, 5'); a.e('s_add_u32 s89, s89, s81'); a.e('v_add_u32 v3, s89, v3')
        a.e(f'v_lshrrev_b32 v4, 5, v{L}'); a.e('v_lshlrev_b32 v4, 2, v4'); a.e('s_lshl_b32 s89, s87, 5'); a.e('s_add_u32 s89, s89, s82'); a.e('v_add_u32 v4, s89, v4')
        a.e('v_lshlrev_b32 v5, 10, v3'); a.e('v_lshl_add_u32 v5, v4, 1, v5')
        for q in range(4): a.e(f'global_load_dwordx2 {v(E+2*q,2)}, v5, {sp(P_Q)} offset:{q*16}', tag='ex')
        a.e('v_lshlrev_b32 v6, 1, v4')
        for q in range(4): a.e(f'global_load_dwordx2 {v(E+8+2*q,2)}, v6, {sp(P_B2)} offset:{q*16}', tag='eb')
        a.e(f'v_lshlrev_b32 v6, 3, v3'); a.e(f'v_add_u32 v6, {WS_ST}, v6')
        a.e(f'buffer_load_dwordx2 {v(E+16,2)}, v6, {sq(R_WS)}, 0 offen {sc}', tag='es')
    def load_y2(self, a):
        L = V_LANE; sc = self.sc
        E = 184
        a.e('v_lshrrev_b32 v6, 3, v0'); a.e('v_add_u32 v6, s82, v6'); a.e('v_lshlrev_b32 v6, 12, v6')
        a.e('v_and_b32 v7, 7, v0'); a.e('v_lshl_add_u32 v6, v7, 4, v6')
        a.e('s_lshl_b32 s89, s81, 1'); a.e(f's_add_u32 s89, s89, {WS_Y2T}')
        a.e(f'buffer_load_dwordx4 {v(E+20,4)}, v6, {sq(R_WS)}, s89 offen {sc}', tag='ey')
        a.e(f's_add_u32 s89, s89, {32*4096}')
        a.e(f'buffer_load_dwordx4 {v(E+24,4)}, v6, {sq(R_WS)}, s89 offen {sc}', tag='ey')
    def epilogue(self, a):
        L = V_LANE
        E = 184
        a.wait_vm('ey')
        a.e('v_lshlrev_b32 v6, 4, v0')
        a.e(f'ds_write_b128 v6, {v(E+20,4)} offset:{Y2L}'); a.e(f'ds_write_b128 v6, {v(E+24,4)} offset:{Y2L+4096}')
        a.e(f'v_lshlrev_b32 v6, 4, v{L}'); a.e(f's_lshl_b32 s89, s{S_WAVE}, 12'); a.e(f'v_add_u32 v7, s89, v6')
        for j in range(4):
            aa, bb = j & 1, j >> 1
            acc = self.ACC + (aa*2+bb)*16
            for qd in range(4):
                a.e(f'ds_write_b128 v7, {v(acc+4*qd,4)} offset:{RED2 + j*16384 + qd*1024}')
        a.e('s_waitcnt lgkmcnt(0)')
        a.e('s_barrier')
        R = 72
        a.e(f's_lshl_b32 s89, s{S_WAVE}, 14'); a.e(f'v_add_u32 v7, s89, v6')
        for src in range(4):
            for qd in range(4):
                a.e(f'ds_read_b128 {v(R+src*16+4*qd,4)}, v7 offset:{RED2 + src*4096 + qd*1024}', tag=('rr', src))
        Y = 136
        a.e(f'v_lshrrev_b32 v6, 5, v{L}'); a.e('v_lshlrev_b32 v6, 2, v6'); a.e(f'v_bfe_u32 v7, v{L}, 2, 2'); a.e('v_add_u32 v6, v6, v7')
        a.e('s_lshl_b32 s89, s87, 5'); a.e('v_add_u32 v6, s89, v6'); a.e('v_lshlrev_b32 v6, 7, v6')
        a.e(f'v_bfe_u32 v7, v{L}, 4, 1'); a.e('v_lshl_add_u32 v6, v7, 5, v6'); a.e(f'v_and_b32 v7, 3, v{L}'); a.e('v_lshl_add_u32 v6, v7, 3, v6')
        a.e('s_lshl_b32 s89, s88, 6'); a.e('v_add_u32 v6, s89, v6')
        for q in range(4): a.e(f'ds_read_b64_tr_b16 {v(Y+2*q,2)}, v6 offset:{Y2L + q*1024}', tag='yt')
        a.wait_lg(('rr', 1))
        for i in range(8): a.e(f'v_pk_add_f32 {v(R+2*i,2)}, {v(R+2*i,2)}, {v(R+16+2*i,2)}')
        a.wait_lg(('rr', 3))
        for i in range(8): a.e(f'v_pk_add_f32 {v(R+32+2*i,2)}, {v(R+32+2*i,2)}, {v(R+48+2*i,2)}')
        for i in range(8): a.e(f'v_pk_add_f32 {v(R+2*i,2)}, {v(R+2*i,2)}, {v(R+32+2*i,2)}')
        a.wait_vm(['ex', 'eb', 'es']); a.wait_lg('yt')
        a.e(f'v_mul_f32 v{E+18}, v{E+16}, v{E+17}'); a.e(f'v_xor_b32 v{E+18}, 0x80000000, v{E+18}')
        U = 144
        for q in range(4):
            for e in range(2):
                unpack_lo(a, U+2*e, E+2*q+e); unpack_hi(a, U+2*e+1, E+2*q+e)
                unpack_lo(a, U+4+2*e, E+8+2*q+e); unpack_hi(a, U+4+2*e+1, E+8+2*q+e)
                unpack_lo(a, U+8+2*e, Y+2*q+e); unpack_hi(a, U+8+2*e+1, Y+2*q+e)
            for e in range(4): a.e(f'v_add_f32 v{R+4*q+e}, v{R+4*q+e}, v{U+4+e}')
            for e in range(4): a.e(f'v_mul_f32 v{U+12+e}, 0xbfb8aa3b, v{R+4*q+e}')
            for e in range(4): a.e(f'v_exp_f32 v{U+12+e}, v{U+12+e}')
            for e in range(4): a.e(f'v_fma_f32 v{U+4+e}, v{U+e}, v{E+17}, v{E+18}')
            for e in range(4): a.e(f'v_add_f32 v{U+12+e}, 1.0, v{U+12+e}')
            for e in range(4): a.e(f'v_rcp_f32 v{U+12+e}, v{U+12+e}')
            for e in range(4): a.e(f'v_mul_f32 v{U+4+e}, v{U+4+e}, v{U+8+e}')
            for e in range(4): a.e(f'v_mul_f32 v{U+12+e}, v{U+12+e}, v{R+4*q+e}')
            for e in range(4): a.e(f'v_fma_f32 v{U+e}, v{U+4+e}, v{U+12+e}, v{U+e}')
            O = 160 + 2*q
            a.e(f'v_cvt_pk_bf16_f32 v{O}, v{U}, v{U+1}'); a.e(f'v_cvt_pk_bf16_f32 v{O+1}, v{U+2}, v{U+3}')
            a.e(f'global_store_dwordx2 v5, {v(O,2)}, {sp(P_OUT)} offset:{q*16}', tag='ost')

def kernel(name, body, vgpr=256, agpr=256):
    a = Asm()
    a.e('.globl ' + name) if False else None
    end = f'Lend_{name}'
    prologue(a, end)
    body(a)
    a.e('s_waitcnt vmcnt(0) lgkmcnt(0)')
    a.label(end)
    a.e('s_endpgm')
    n = a.fix_hazards()
    txt = f'.globl {name}\n.p2align 8\n.type {name},@function\n{name}:\n' + a.text()
    kd = f'''.p2align 6
.amdhsa_kernel {name}
  .amdhsa_next_free_vgpr {vgpr+agpr}
  .amdhsa_next_free_sgpr 102
  .amdhsa_accum_offset {vgpr}
  .amdhsa_group_segment_fixed_size 0
  .amdhsa_kernarg_size 112
  .amdhsa_user_sgpr_count 2
  .amdhsa_user_sgpr_kernarg_segment_ptr 1
  .amdhsa_system_sgpr_workgroup_id_x 1
.end_amdhsa_kernel
'''
    return txt, kd

def header():
    ref = open('cdna_kernels/' + NAME + '.s.ref').read().split('\n')
    hdr = []
    for ln in ref:
        if ln.startswith('; @launch') or ln.startswith('; Override') or ln.startswith('; grid=ceil'): break
        hdr.append(ln)
    return '\n'.join(hdr) + '\n'

def multi(sc=''):
    def b_pre(a):
        p = Pre(base=8, sc=sc); p.issue(a); p.compute(a)
    def b_g1(a):
        g = Gemm1(sc); g.setup(a)
        skip = 'Lg1_skip'
        a.e('s_cmp_ge_u32 s62, 28'); a.e(f's_cbranch_scc1 {skip}')
        for s in range(4): g.dma(a, s)
        g.setup2(a); g.main(a); g.epilogue(a)
        a.e('s_waitcnt vmcnt(0)')
        a.label(skip)
    def b_conv(a):
        c = Conv(sc); c.issue_filter(a); c.prep(a); c.main(a); c.epilogue(a)
    def b_g2(a):
        g = Gemm2(sc); g.setup(a); g.load_w(a); g.issue_epi_loads(a); g.load_y2(a); g.main(a); g.epilogue(a)
    ks = [kernel('pre_kernel', b_pre), kernel('g1_kernel', b_g1), kernel('conv_kernel', b_conv), kernel('g2_kernel', b_g2)]
    out = header()
    for n in ('pre_kernel', 'g1_kernel', 'conv_kernel', 'g2_kernel'):
        out += f'; @launch kernel={n} grid=(256,1,1) block=(256,1,1) lds=163840\n'
    out += '.amdgcn_target "amdgcn-amd-amdhsa--gfx950"\n.text\n'
    for t, k in ks: out += t
    out += '.section .rodata,"a"\n'
    for t, k in ks: out += k
    return out

if __name__ == '__main__':
    mode = sys.argv[1] if len(sys.argv) > 1 else 'multi'
    dst = sys.argv[2] if len(sys.argv) > 2 else 'cdna_kernels/' + NAME + '.s'
    txt = {'multi': multi, 'multisc': lambda: multi('sc1')}[mode]()
    open(dst, 'w').write(txt)
    print('wrote', dst, len(txt), 'bytes')
```

```python
import sys, os
sys.path.insert(0, os.path.dirname(os.path.abspath(__file__)))
from asmlib import Asm

NAME = 'recurrent_scan__ssm_conv_h3__dense_activation_squared_relu__prompt'
S, D, F = 2048, 512, 1792
WS_KVT, WS_Y2T, WS_W2F, WS_H, WS_ST, WS_FLAG = 0x000000, 0x200000, 0x400000, 0x600000, 0xE00000, 0xE10000
WS_E = 0xE08000
FK, FW, FAR, FH, FY = WS_FLAG, WS_FLAG + 0x1000, WS_FLAG + 0x2000, WS_FLAG + 0x3000, WS_FLAG + 0x4000
S_TAG, S_SPIN = 16, 17
TAGC = 0x9E3779B9
SPIN_MAX = 100000
WS_STAMP = 0xF00000
WS_SIZE = 0x10000000
NST = 10
class Opt:
    stamps = False
    codepf = True
P_Q, P_K, P_V, P_SK, P_SSMK, P_SSMD, P_BX, P_W1 = 4, 6, 8, 10, 12, 14, 16, 18
P_B1, P_W2, P_B2, P_OUT, P_DBG, P_WS = 20, 22, 24, 26, 28, 30
S_WAVE = 3
R_WS, R_A, R_B, R_C = 32, 36, 40, 44
def sp(p): return f's[{p}:{p+1}]'
def sq(r): return f's[{r}:{r+3}]'
def v(i, n=1): return f'v{i}' if n == 1 else f'v[{i}:{i+n-1}]'
def ac(i, n=1): return f'a{i}' if n == 1 else f'a[{i}:{i+n-1}]'
def srd(a, dst, ptr, size):
    a.e(f's_mov_b32 s{dst}, s{ptr}'); a.e(f's_mov_b32 s{dst+1}, s{ptr+1}')
    a.e(f's_mov_b32 s{dst+2}, {hex(size)}'); a.e(f's_mov_b32 s{dst+3}, 0x20000')
V_LANE = 1
def unpack_lo(a, d, s): a.e(f'v_lshlrev_b32 v{d}, 16, v{s}')
def unpack_hi(a, d, s): a.e(f'v_and_b32 v{d}, 0xffff0000, v{s}')

def stamp(a, i):
    if not Opt.stamps: return
    a.e('s_memrealtime s[90:91]'); a.e('s_waitcnt lgkmcnt(0)'); a.e(f's_mov_b32 s{92+i}, s90')
def write_stamps(a):
    if not Opt.stamps: return
    lab = a.newlabel('Lst')
    a.e(f's_cmp_lg_u32 s{S_WAVE}, 0'); a.e(f's_cbranch_scc1 {lab}')
    a.e(f's_mul_i32 s90, s2, {4*NST}'); a.e(f's_add_u32 s90, s90, {WS_STAMP}')
    a.e('v_mov_b32 v2, 0')
    a.e('s_mov_b64 exec, 1')
    for i in range(NST):
        a.e(f'v_mov_b32 v3, s{92+i}')
        a.e(f'buffer_store_dword v3, v2, {sq(R_WS)}, s90 offen offset:{4*i}')
    a.e('s_mov_b64 exec, -1')
    a.label(lab)
def publish(a, addrs, vt=2):
    for i, sr in enumerate(addrs): a.e(f'v_writelane_b32 v{vt}, {sr}, {i}')
    a.e(f'v_mov_b32 v{vt+1}, s{S_TAG}')
    a.e(f's_mov_b64 exec, {(1 << len(addrs)) - 1}')
    a.e(f'buffer_store_dword v{vt+1}, v{vt}, {sq(R_WS)}, 0 offen sc1', tag='flag')
    a.e('s_mov_b64 exec, -1')
def poll_issue(a, vaddr, vdst, width=1, tag='poll'):
    op = {1: 'dword', 2: 'dwordx2'}[width]
    a.e(f'buffer_load_{op} {v(vdst, width)}, v{vaddr}, {sq(R_WS)}, 0 offen sc1', tag=tag)
def poll_check(a, items, tag='poll'):
    top = a.newlabel('Lpc'); done = a.newlabel('Lpd')
    a.wait_vm(tag)
    a.e(f's_mov_b32 s{S_SPIN}, 0')
    a.label(top)
    for n, (va, vd, w, vt) in enumerate(items):
        a.e(f'v_cmp_ne_u32 vcc, s{S_TAG}, v{vt}')
        a.e('s_mov_b64 s[90:91], vcc' if n == 0 else 's_or_b64 s[90:91], s[90:91], vcc')
    a.e('s_cmp_eq_u64 s[90:91], 0')
    a.e(f's_cbranch_scc1 {done}')
    a.e(f's_add_u32 s{S_SPIN}, s{S_SPIN}, 1')
    a.e(f's_cmp_gt_u32 s{S_SPIN}, {SPIN_MAX}')
    a.e(f's_cbranch_scc1 {done}')
    a.e('s_sleep 1')
    saved = (list(a.vm), list(a.lg))
    for (va, vd, w, vt) in items: poll_issue(a, va, vd, w, tag=None)
    a.e('s_waitcnt vmcnt(0)')
    a.e(f's_branch {top}')
    a.vm, a.lg = saved
    a.label(done)
def allreduce2(a, x, y, t0, t1):
    for ctl in ('quad_perm:[1,0,3,2]', 'quad_perm:[2,3,0,1]', 'row_half_mirror', 'row_mirror'):
        a.e(f'v_add_f32_dpp v{x}, v{x}, v{x} {ctl} row_mask:0xf bank_mask:0xf')
        a.e(f'v_add_f32_dpp v{y}, v{y}, v{y} {ctl} row_mask:0xf bank_mask:0xf')
    for sw in ('v_permlane16_swap_b32', 'v_permlane32_swap_b32'):
        a.e(f'v_mov_b32 v{t0}, v{x}'); a.e(f'v_mov_b32 v{t1}, v{y}')
        a.e(f'{sw} v{x}, v{t0}'); a.e(f'{sw} v{y}, v{t1}')
        a.e(f'v_add_f32 v{x}, v{x}, v{t0}'); a.e(f'v_add_f32 v{y}, v{y}, v{t1}')

PRE_LDS = 131072
KIMG, VIMG, WIMG = PRE_LDS, PRE_LDS + 9216, PRE_LDS + 9216 + 8192
SC = 'sc1'

class Pre:
    b = 64
    VE = 62
    def issue(self, a):
        b = self.b; L = V_LANE
        a.e(f'v_mov_b32 v{b}, {WS_E}')
        a.e(f'buffer_load_dword v{self.VE}, v{b}, {sq(R_WS)}, 0 offen sc1', tag='pre')
        a.e(f's_lshl_b32 s58, s2, 3'); a.e(f's_lshl_b32 s59, s{S_WAVE}, 1'); a.e('s_add_u32 s58, s58, s59')
        a.e(f's_lshl_b32 s59, s58, 10')
        a.e(f'v_lshl_add_u32 v{b+2}, v{L}, 4, s59')
        a.e(f'global_load_dwordx4 {v(b+4,4)}, v{b+2}, {sp(P_Q)}', tag='pre')
        a.e(f'global_load_dwordx4 {v(b+8,4)}, v{b+2}, {sp(P_Q)} offset:1024', tag='pre')
        srd(a, R_A, P_K, S*D*2); srd(a, R_B, P_V, S*D*2); srd(a, R_C, P_W2, F*D*2)
        a.e('s_lshr_b32 s48, s2, 3'); a.e('s_lshl_b32 s48, s48, 6')
        a.e('s_and_b32 s49, s2, 7'); a.e('s_lshl_b32 s49, s49, 7')
        a.e(f'v_lshrrev_b32 v{b}, 3, v{L}'); a.e(f'v_lshlrev_b32 v{b}, 10, v{b}')
        a.e(f'v_and_b32 v{b+1}, 7, v{L}'); a.e(f'v_lshl_add_u32 v{b}, v{b+1}, 4, v{b}')
        a.e('s_lshl_b32 s50, s48, 10'); a.e('s_add_u32 s50, s50, s49')
        skip = a.newlabel('Lpre_hist')
        a.e(f's_cmp_lg_u32 s{S_WAVE}, 0'); a.e(f's_cbranch_scc1 {skip}')
        a.e(f's_sub_u32 s51, s50, 8192'); a.e(f'v_add_u32 v{b+1}, s51, v{b}')
        a.e(f's_mov_b32 m0, {KIMG}')
        a.e(f'buffer_load_dwordx4 v{b+1}, {sq(R_A)}, 0 offen lds', tag='pre')
        a.label(skip)
        a.e(f's_lshl_b32 s51, s{S_WAVE}, 14'); a.e('s_add_u32 s51, s51, s50')
        a.e(f's_lshl_b32 s52, s{S_WAVE}, 11')
        for jj in range(2):
            a.e(f's_add_u32 s53, s51, {jj*8192}')
            a.e(f's_add_u32 m0, s52, {KIMG + 1024 + jj*1024}')
            a.e(f'buffer_load_dwordx4 v{b}, {sq(R_A)}, s53 offen lds', tag='pre')
            a.e(f's_add_u32 m0, s52, {VIMG + jj*1024}')
            a.e(f'buffer_load_dwordx4 v{b}, {sq(R_B)}, s53 offen lds', tag='pre')
        a.e('s_and_b32 s54, s2, 15'); a.e('s_lshr_b32 s55, s2, 4')
        a.e('s_mul_i32 s56, s55, 112'); a.e(f's_lshl_b32 s57, s{S_WAVE}, 4'); a.e('s_add_u32 s56, s56, s57')
        a.e('s_lshl_b32 s56, s56, 10'); a.e('s_lshl_b32 s57, s54, 6'); a.e('s_add_u32 s56, s56, s57')
        a.e(f'v_lshrrev_b32 v{b+1}, 2, v{L}'); a.e(f'v_lshlrev_b32 v{b+1}, 10, v{b+1}')
        a.e(f'v_and_b32 v{b+2}, 3, v{L}'); a.e(f'v_lshl_add_u32 v{b+1}, v{b+2}, 4, v{b+1}')
        a.e(f's_lshl_b32 s57, s{S_WAVE}, 10')
        for jj in range(2):
            a.e(f's_add_u32 s53, s56, {jj*64*1024}')
            a.e(f's_add_u32 m0, s57, {WIMG + jj*4096}')
            a.e(f'buffer_load_dwordx4 v{b+1}, {sq(R_C)}, s53 offen lds', tag='pre')
        a.e(f'v_and_b32 v{b+2}, 15, v{L}'); a.e(f's_lshl_b32 s59, s{S_WAVE}, 4'); a.e('s_lshr_b32 s60, s49, 1'); a.e('s_add_u32 s59, s59, s60')
        a.e(f'v_add_u32 v{b+3}, s59, v{b+2}')
        a.e(f'v_lshlrev_b32 v{b+2}, 3, v{b+3}')
        a.e(f'global_load_dwordx2 {v(b+12,2)}, v{b+2}, {sp(P_SK)}', tag='pre')
    def compute(self, a):
        b = self.b; L = V_LANE
        a.wait_vm('pre')
        a.e(f'v_readfirstlane_b32 s{S_TAG}, v{self.VE}')
        a.e('s_barrier')
        a.e(f's_add_u32 s{S_TAG}, s{S_TAG}, {TAGC}')
        T = b + 16
        a.e(f'v_lshrrev_b32 v{T}, 4, v{L}'); a.e(f'v_lshlrev_b32 v{T}, 3, v{T}')
        a.e(f'v_bfe_u32 v{T+1}, v{L}, 2, 2'); a.e(f'v_add_u32 v{T}, v{T}, v{T+1}'); a.e(f'v_lshlrev_b32 v{T}, 7, v{T}')
        a.e(f'v_and_b32 v{T+1}, 3, v{L}'); a.e(f'v_lshl_add_u32 v{T}, v{T+1}, 3, v{T}')
        a.e(f's_lshl_b32 s59, s{S_WAVE}, 5'); a.e(f'v_add_u32 v{T}, s59, v{T}')
        a.e(f'v_add_u32 v{T+1}, {KIMG}, v{T}'); a.e(f'v_add_u32 v{T+2}, {VIMG}, v{T}')
        KR, VR, WR, SK = b + 20, b + 32, b + 40, b + 48
        a.e(f'v_lshrrev_b32 v{T+3}, 5, v{L}'); a.e(f'v_lshlrev_b32 v{T+3}, 2, v{T+3}')
        a.e(f'v_bfe_u32 v{T}, v{L}, 2, 2'); a.e(f'v_add_u32 v{T+3}, v{T+3}, v{T}'); a.e(f'v_lshlrev_b32 v{T+3}, 6, v{T+3}')
        a.e(f'v_bfe_u32 v{T}, v{L}, 4, 1'); a.e(f'v_lshl_add_u32 v{T+3}, v{T}, 5, v{T+3}')
        a.e(f'v_and_b32 v{T}, 3, v{L}'); a.e(f'v_lshl_add_u32 v{T+3}, v{T}, 3, v{T+3}')
        a.e(f's_lshl_b32 s59, s{S_WAVE}, 10'); a.e(f's_add_u32 s59, s59, {WIMG}'); a.e(f'v_add_u32 v{T+3}, s59, v{T+3}')
        for jj in range(2):
            a.e(f'ds_read_b64_tr_b16 {v(WR+4*jj,2)}, v{T+3} offset:{jj*4096}', tag='w2r')
            a.e(f'ds_read_b64_tr_b16 {v(WR+4*jj+2,2)}, v{T+3} offset:{jj*4096 + 512}', tag='w2r')
        for run in range(2):
            for j in range(3):
                a.e(f'ds_read_b64_tr_b16 {v(KR+run*6+2*j,2)}, v{T+1} offset:{512 + j*512 + run*4096}', tag='kvr')
            for j in range(2):
                a.e(f'ds_read_b64_tr_b16 {v(VR+run*4+2*j,2)}, v{T+2} offset:{j*512 + run*4096}', tag='kvr')
        X = b + 52
        for rr in range(2):
            for j in range(4):
                unpack_lo(a, X+8*rr+2*j, b+4+4*rr+j); unpack_hi(a, X+8*rr+2*j+1, b+4+4*rr+j)
        SA, SB, t0, t1, QA, QB = X+16, X+17, X+18, X+19, X+20, X+21
        for rr, Sx in ((0, SA), (1, SB)):
            a.e(f'v_add_f32 v{Sx}, v{X+8*rr}, v{X+8*rr+1}')
        for j in range(2, 8):
            for rr, Sx in ((0, SA), (1, SB)): a.e(f'v_add_f32 v{Sx}, v{Sx}, v{X+8*rr+j}')
        allreduce2(a, SA, SB, t0, t1)
        a.e(f'v_mul_f32 v{SA}, 0x3b000000, v{SA}'); a.e(f'v_mul_f32 v{SB}, 0x3b000000, v{SB}')
        for j in range(8):
            for rr, Sx in ((0, SA), (1, SB)): a.e(f'v_sub_f32 v{X+8*rr+j}, v{X+8*rr+j}, v{Sx}')
        for rr, Q in ((0, QA), (1, QB)): a.e(f'v_mul_f32 v{Q}, v{X+8*rr}, v{X+8*rr}')
        for j in range(1, 8):
            for rr, Q in ((0, QA), (1, QB)): a.e(f'v_fmac_f32 v{Q}, v{X+8*rr+j}, v{X+8*rr+j}')
        allreduce2(a, QA, QB, t0, t1)
        a.e(f'v_mul_f32 v{QA}, 0x3b000000, v{QA}'); a.e(f'v_mul_f32 v{QB}, 0x3b000000, v{QB}')
        a.e(f'v_and_b32 v{t0}, 1, v{L}'); a.e(f'v_cmp_eq_u32 vcc, 1, v{t0}')
        a.e(f'v_cndmask_b32 v{SA}, v{SA}, v{SB}, vcc'); a.e(f'v_cndmask_b32 v{QA}, v{QA}, v{QB}, vcc')
        G = X + 24
        a.e(f'v_cvt_pk_bf16_f32 v{G}, v{SA}, v{QA}')
        unpack_hi(a, t1, G)
        a.e(f'v_add_f32 v{t1}, 0x3727c5ac, v{t1}')
        a.e(f'v_cvt_pk_bf16_f32 v{t1}, v{t1}, v{t1}'); unpack_lo(a, t1, t1)
        a.e(f'v_sqrt_f32 v{t1}, v{t1}')
        a.e(f'v_cvt_pk_bf16_f32 v{t1}, v{t1}, v{t1}')
        a.e(f'v_and_b32 v{G}, 0xffff, v{G}'); a.e(f'v_and_b32 v{t1}, 0xffff0000, v{t1}'); a.e(f'v_or_b32 v{G}, v{G}, v{t1}')
        a.e(f'v_mov_b32 v{G+1}, s{S_TAG}')
        a.e(f's_lshl_b32 s59, s58, 3'); a.e(f's_add_u32 s59, s59, {WS_ST}')
        a.e(f'v_lshlrev_b32 v{t0}, 3, v{L}')
        a.e('s_mov_b64 exec, 3')
        a.e(f'buffer_store_dwordx2 {v(G,2)}, v{t0}, {sq(R_WS)}, s59 offen {SC}', tag='prest')
        a.e('s_mov_b64 exec, -1')
        a.e('s_mul_i32 s59, s54, 112'); a.e('s_mul_i32 s60, s55, 7'); a.e('s_add_u32 s59, s59, s60'); a.e(f's_add_u32 s59, s59, s{S_WAVE}')
        a.e('s_lshl_b32 s59, s59, 10'); a.e(f's_add_u32 s59, s59, {WS_W2F}')
        a.e(f'v_lshlrev_b32 v{T}, 4, v{L}')
        a.wait_lg('w2r')
        a.e(f'buffer_store_dwordx4 {v(WR,4)}, v{T}, {sq(R_WS)}, s59 offen {SC}', tag='prest')
        skip = a.newlabel('Lpre_w2')
        a.e(f's_cmp_eq_u32 s{S_WAVE}, 3'); a.e(f's_cbranch_scc1 {skip}')
        a.e('s_add_u32 s59, s59, 4096')
        a.e(f'buffer_store_dwordx4 {v(WR+4,4)}, v{T}, {sq(R_WS)}, s59 offen {SC}', tag='prest')
        a.label(skip)
        unpack_lo(a, SK, b+12); unpack_hi(a, SK+1, b+12); unpack_lo(a, SK+2, b+13); unpack_hi(a, SK+3, b+13)
        U = b + 52
        a.e(f'v_lshlrev_b32 v{T}, 12, v{b+3}')
        a.e(f'v_lshrrev_b32 v{T+1}, 4, v{L}'); a.e(f'v_lshl_add_u32 v{T}, v{T+1}, 4, v{T}')
        a.e('s_lshl_b32 s59, s48, 1'); a.e(f's_add_u32 s59, s59, {WS_KVT}')
        a.wait_lg('kvr')
        for run in range(2):
            for j in range(6):
                if j > 0: unpack_lo(a, U+2*j, KR+run*6+j)
                unpack_hi(a, U+2*j+1, KR+run*6+j)
            for j in range(4):
                unpack_lo(a, U+12+2*j, VR+run*4+j); unpack_hi(a, U+12+2*j+1, VR+run*4+j)
            A0 = U + 24
            for t in range(8): a.e(f'v_mul_f32 v{A0+t}, v{U+1+t}, v{SK+3}')
            for t in range(8): a.e(f'v_fmac_f32 v{A0+t}, v{U+2+t}, v{SK+2}')
            for t in range(8): a.e(f'v_fmac_f32 v{A0+t}, v{U+3+t}, v{SK+1}')
            for t in range(8): a.e(f'v_fmac_f32 v{A0+t}, v{U+4+t}, v{SK}')
            for t in range(8): a.e(f'v_mul_f32 v{A0+t}, v{A0+t}, v{U+12+t}')
            O = U + 32 + run*4
            for j in range(4): a.e(f'v_cvt_pk_bf16_f32 v{O+j}, v{A0+2*j}, v{A0+2*j+1}')
            a.e(f'buffer_store_dwordx4 {v(O,4)}, v{T}, {sq(R_WS)}, s59 offen offset:{run*64} {SC}', tag='prest')
    def publish(self, a):
        a.e('s_and_b32 s59, s2, 7'); a.e('s_lshl_b32 s59, s59, 2'); a.e(f's_add_u32 s59, s59, s{S_WAVE}'); a.e('s_lshl_b32 s59, s59, 5')
        a.e('s_lshr_b32 s60, s2, 3'); a.e('s_add_u32 s59, s59, s60'); a.e('s_lshl_b32 s59, s59, 2'); a.e(f's_add_u32 s59, s59, {FK}')
        a.e('s_lshr_b32 s60, s54, 1'); a.e('s_lshl_b32 s60, s60, 2'); a.e('s_lshr_b32 s53, s55, 2'); a.e('s_add_u32 s60, s60, s53'); a.e('s_lshl_b32 s60, s60, 5')
        a.e('s_and_b32 s53, s54, 1'); a.e('s_lshl_b32 s53, s53, 4'); a.e('s_add_u32 s60, s60, s53')
        a.e('s_and_b32 s53, s55, 3'); a.e('s_lshl_b32 s53, s53, 2'); a.e('s_add_u32 s60, s60, s53'); a.e(f's_add_u32 s60, s60, s{S_WAVE}')
        a.e('s_lshl_b32 s60, s60, 2'); a.e(f's_add_u32 s60, s60, {FW}')
        a.e('s_lshl_b32 s53, s2, 2'); a.e(f's_add_u32 s53, s53, {FAR}')
        publish(a, ['s59', 's60', 's53'], vt=32)

class Gemm1:
    ACC, FR, VW, VX, VA, VB, CS, SEL, B1, ST = 64, 128, 8, 9, 12, 16, 160, 168, 172, 28
    def decode(self, a):
        a.e('s_and_b32 s61, s2, 7'); a.e('s_lshr_b32 s62, s2, 3')
        a.e('s_lshr_b32 s63, s61, 1'); a.e('s_lshl_b32 s63, s63, 9'); a.e('s_and_b32 s64, s62, 3'); a.e('s_lshl_b32 s64, s64, 7'); a.e('s_add_u32 s63, s63, s64')
        a.e('s_and_b32 s64, s61, 1'); a.e('s_mul_i32 s64, s64, 896'); a.e('s_lshr_b32 s65, s62, 2'); a.e('s_lshl_b32 s65, s65, 7'); a.e('s_add_u32 s64, s64, s65')
        a.e(f's_and_b32 s70, s{S_WAVE}, 1'); a.e(f's_lshr_b32 s71, s{S_WAVE}, 1')
    def setup(self, a):
        L = V_LANE
        srd(a, R_A, P_W1, D*F*2); srd(a, R_B, P_Q, S*D*2)
        t = 24
        a.e(f'v_lshrrev_b32 v{t}, 4, v{L}')
        a.e(f'v_mul_u32_u24 v{self.VW}, 3584, v{t}')
        a.e(f'v_lshlrev_b32 v{t+1}, 2, v{t}'); a.e(f'v_and_b32 v{t+2}, 15, v{L}'); a.e(f'v_xor_b32 v{t+1}, v{t+1}, v{t+2}')
        a.e(f'v_lshl_add_u32 v{self.VW}, v{t+1}, 4, v{self.VW}')
        a.e(f'v_lshrrev_b32 v{t+1}, 3, v{L}'); a.e(f'v_lshlrev_b32 v{t+1}, 10, v{t+1}')
        a.e(f'v_and_b32 v{t+2}, 7, v{L}')
        a.e(f'v_xor_b32 v{t+3}, v{t+2}, v{t}'); a.e(f'v_lshl_add_u32 v{self.VX}, v{t+3}, 4, v{t+1}')
        a.e(f'v_xor_b32 v{t+3}, 4, v{t+3}'); a.e(f'v_lshl_add_u32 v{self.VX+1}, v{t+3}, 4, v{t+1}')
        a.e(f's_mul_i32 s66, s{S_WAVE}, {16*3584}'); a.e('s_lshl_b32 s69, s64, 1'); a.e('s_add_u32 s66, s66, s69')
        a.e(f's_lshl_b32 s67, s{S_WAVE}, 5'); a.e('s_add_u32 s67, s67, s63'); a.e('s_lshl_b32 s67, s67, 10')
        a.e(f's_lshl_b32 s68, s{S_WAVE}, 12')
        a.e(f'v_lshrrev_b32 v{t}, 5, v{L}'); a.e(f'v_lshlrev_b32 v{t}, 3, v{t}')
        a.e(f's_lshl_b32 s69, s70, 6'); a.e('s_add_u32 s69, s69, s64'); a.e('s_lshl_b32 s69, s69, 1')
        a.e(f'v_add_u32 v{t}, s69, v{t}')
        for aa in range(2):
            for q in range(4):
                a.e(f'global_load_dwordx2 {v(self.B1+(aa*4+q)*2,2)}, v{t}, {sp(P_B1)} offset:{aa*64+q*16}', tag='b1')
    def dma(self, a, s):
        slot = (s & 3) * 32768
        for jj in range(4):
            a.e(f's_add_u32 s69, s66, {(64*s + 4*jj)*3584}')
            a.e(f's_add_u32 m0, s68, {slot + jj*1024}')
            a.e(f'buffer_load_dwordx4 v{self.VW}, {sq(R_A)}, s69 offen lds', tag=('g1', s))
            a.e(f's_add_u32 s69, s67, {8*jj*1024 + 128*s}')
            a.e(f's_add_u32 m0, s68, {slot + 16384 + jj*1024}')
            a.e(f'buffer_load_dwordx4 v{self.VX + (jj&1)}, {sq(R_B)}, s69 offen lds', tag=('g1', s))
    def setup2(self, a):
        L = V_LANE; t = 24
        a.e(f'v_lshrrev_b32 v{t}, 5, v{L}'); a.e(f'v_lshlrev_b32 v{t}, 3, v{t}'); a.e(f'v_bfe_u32 v{t+1}, v{L}, 2, 2'); a.e(f'v_add_u32 v{t}, v{t}, v{t+1}')
        a.e(f'v_lshlrev_b32 v{t}, 8, v{t}')
        a.e(f'v_and_b32 v{t+2}, 1, v{L}'); a.e(f'v_lshl_add_u32 v{t}, v{t+2}, 3, v{t}')
        a.e(f'v_bfe_u32 v{t+2}, v{L}, 4, 1'); a.e(f'v_lshlrev_b32 v{t+2}, 1, v{t+2}'); a.e(f'v_bfe_u32 v{t+3}, v{L}, 1, 1'); a.e(f'v_add_u32 v{t+2}, v{t+2}, v{t+3}')
        a.e(f's_lshl_b32 s69, s70, 3'); a.e(f'v_add_u32 v{t+2}, s69, v{t+2}')
        a.e(f'v_lshlrev_b32 v{t+1}, 2, v{t+1}')
        for aa in range(2):
            a.e(f'v_add_u32 v{t+3}, {4*aa}, v{t+2}'); a.e(f'v_xor_b32 v{t+3}, v{t+3}, v{t+1}')
            a.e(f'v_lshl_add_u32 v{self.VA+2*aa}, v{t+3}, 4, v{t}')
            a.e(f'v_add_u32 v{self.VA+2*aa+1}, 0x10000, v{self.VA+2*aa}')
        a.e(f'v_and_b32 v{t}, 31, v{L}'); a.e(f's_lshl_b32 s69, s71, 6'); a.e(f'v_add_u32 v{t}, s69, v{t}'); a.e(f'v_lshlrev_b32 v{t}, 7, v{t}')
        a.e(f'v_add_u32 v{t}, 16384, v{t}')
        a.e(f'v_bfe_u32 v{t+1}, v{L}, 1, 3'); a.e(f'v_lshrrev_b32 v{t+2}, 5, v{L}'); a.e(f'v_xor_b32 v{t+1}, v{t+1}, v{t+2}')
        for kk in range(4):
            a.e(f'v_xor_b32 v{t+2}, {2*kk}, v{t+1}'); a.e(f'v_lshl_add_u32 v{self.VB+2*kk}, v{t+2}, 4, v{t}')
            a.e(f'v_add_u32 v{self.VB+2*kk+1}, 0x10000, v{self.VB+2*kk}')
        a.e(f'v_bfe_u32 v{t}, v{L}, 4, 1'); a.e(f'v_and_b32 v{t+1}, 1, v{L}'); a.e(f'v_cmp_eq_u32 vcc, v{t}, v{t+1}')
        a.e(f'v_mov_b32 v{t+2}, 0x3f803f80')
        for j in range(4): a.e(f'v_cndmask_b32 v{self.SEL+j}, 0, v{t+2}, vcc')
    def init_acc(self, a):
        for i in range(64): a.e(f'v_mov_b32 v{self.ACC+i}, 0')
        for i in range(8): a.e(f'v_mov_b32 v{self.CS+i}, 0')
    def read_list(self, s, kk, p):
        slot = (s & 3); hi = slot >> 1; base = (slot & 1) * 32768
        F0 = self.FR + 16*p; tg = ('fr', s, kk)
        return [
          (f'ds_read_b64_tr_b16 {v(F0,2)}, v{self.VA+hi} offset:{base + kk*4096}', tg+('A0',)),
          (f'ds_read_b64_tr_b16 {v(F0+2,2)}, v{self.VA+hi} offset:{base + kk*4096 + 1024}', tg+('A0',)),
          (f'ds_read_b128 {v(F0+8,4)}, v{self.VB+2*kk+hi} offset:{base}', tg+('B0',)),
          (f'ds_read_b128 {v(F0+12,4)}, v{self.VB+2*kk+hi} offset:{base + 4096}', tg+('B1',)),
          (f'ds_read_b64_tr_b16 {v(F0+4,2)}, v{self.VA+2+hi} offset:{base + kk*4096}', tg+('A1',)),
          (f'ds_read_b64_tr_b16 {v(F0+6,2)}, v{self.VA+2+hi} offset:{base + kk*4096 + 1024}', tg+('A1',))]
    def mfmas(self, a, s, kk, p, fill):
        F0 = self.FR + 16*p; tg = ('fr', s, kk)
        order = [(0, 0), (0, 1), (1, 0), (1, 1)]
        need = [[tg+('A0',), tg+('B0',)], [tg+('B1',)], [tg+('A1',)], []]
        fill = list(fill); per = (len(fill) + 3) // 4
        for i, (aa, bb) in enumerate(order):
            if need[i]: a.wait_lg(need[i])
            acc = self.ACC + (aa*2+bb)*16
            a.e(f'v_mfma_f32_32x32x16_bf16 {v(acc,16)}, {v(F0+4*aa,4)}, {v(F0+8+4*bb,4)}, {v(acc,16)}')
            for _ in range(per):
                if fill:
                    t, tag = fill.pop(0); a.e(t, tag=tag)
        skip = a.newlabel('Lcs')
        a.e(f's_cmp_lg_u32 s71, {kk & 1}'); a.e(f's_cbranch_scc1 {skip}')
        for aa in range(2):
            a.e(f'v_mfma_f32_16x16x32_bf16 {v(self.CS+4*aa,4)}, {v(F0+4*aa,4)}, {v(self.SEL,4)}, {v(self.CS+4*aa,4)}')
        a.label(skip)
    def main(self, a, hooks):
        a.comment('gemm1: main loop')
        prev = None; p = 0
        for s in range(8):
            a.wait_vm(('g1', s))
            if s > 0: a.wait_lg([('fr', s-1, 3, x) for x in ('A0', 'A1', 'B0', 'B1')])
            a.e('s_barrier')
            for kk in range(4):
                fill = self.read_list(s, kk, p)
                if prev is None:
                    for t, tag in fill: a.e(t, tag=tag)
                else:
                    self.mfmas(a, prev[0], prev[1], prev[2], fill)
                if kk == 0:
                    if s >= 1 and s + 3 < 8: self.dma(a, s + 3)
                    if s in hooks: hooks[s](a)
                prev = (s, kk, p); p ^= 1
        self.mfmas(a, prev[0], prev[1], prev[2], [])
    def stats_addr(self, a, vd):
        L = V_LANE
        a.e(f'v_and_b32 v{vd}, 31, v{L}'); a.e(f's_lshl_b32 s69, s71, 6'); a.e('s_add_u32 s69, s69, s63'); a.e(f'v_add_u32 v{vd}, s69, v{vd}')
        a.e(f'v_lshlrev_b32 v{vd}, 3, v{vd}'); a.e(f'v_add_u32 v{vd}, {WS_ST}, v{vd}')
        a.e(f'v_add_u32 v{vd+1}, 256, v{vd}')
    def epilogue(self, a):
        L = V_LANE; ST = self.ST
        CSB = 0; t = 24
        a.e('s_barrier')
        a.e(f'v_and_b32 v{t}, 1, v{L}'); a.e(f'v_lshlrev_b32 v{t}, 6, v{t}'); a.e(f'v_lshrrev_b32 v{t+1}, 4, v{L}'); a.e(f'v_lshl_add_u32 v{t}, v{t+1}, 4, v{t}')
        a.e(f's_lshl_b32 s69, s{S_WAVE}, 8'); a.e(f'v_add_u32 v{t}, s69, v{t}')
        for aa in range(2):
            a.e(f'ds_write_b128 v{t}, {v(self.CS+4*aa,4)} offset:{CSB + aa*128}', tag='csw')
        for bb in range(2):
            g = ST + 2*bb
            unpack_hi(a, g+1, g); unpack_lo(a, g, g)
            a.e(f'v_rcp_f32 v{g+1}, v{g+1}')
            a.e(f'v_xor_b32 v{g}, 0x80000000, v{g}')
        TMP = 192
        a.wait_vm('b1')
        for i in range(16):
            unpack_lo(a, TMP+2*i, self.B1+i); unpack_hi(a, TMP+2*i+1, self.B1+i)
        a.wait_lg('csw')
        a.e('s_barrier')
        CSV = self.FR; T2 = 32
        a.e(f'v_lshrrev_b32 v{t}, 5, v{L}'); a.e(f'v_lshlrev_b32 v{t}, 4, v{t}'); a.e('s_lshl_b32 s69, s70, 8'); a.e(f'v_add_u32 v{t}, s69, v{t}')
        for aa in range(2):
            for q in range(4):
                a.e(f'ds_read_b128 {v(CSV+(aa*4+q)*4,4)}, v{t} offset:{CSB + aa*128 + q*32}', tag=('csr', aa))
                a.e(f'ds_read_b128 {v(T2+(aa*4+q)*4,4)}, v{t} offset:{CSB + 512 + aa*128 + q*32}', tag=('csr', aa))
        a.e('s_lshl_b32 s69, s71, 6'); a.e('s_add_u32 s69, s69, s63'); a.e('s_lshr_b32 s69, s69, 5'); a.e('s_mul_i32 s69, s69, 112')
        a.e('s_lshl_b32 s72, s70, 6'); a.e('s_add_u32 s72, s72, s64'); a.e('s_lshr_b32 s72, s72, 4'); a.e('s_add_u32 s69, s69, s72')
        a.e('s_lshl_b32 s69, s69, 10'); a.e(f's_add_u32 s69, s69, {WS_H}')
        a.e(f'v_lshlrev_b32 v{t}, 4, v{L}')
        for aa in range(2):
            a.wait_lg(('csr', aa))
            for i in range(8): a.e(f'v_pk_add_f32 {v(CSV+aa*16+2*i,2)}, {v(CSV+aa*16+2*i,2)}, {v(T2+aa*16+2*i,2)}')
        OUT = 224; n = 0
        for aa in range(2):
            for bb in range(2):
                acc = self.ACC + (aa*2+bb)*16
                for half in range(2):
                    O = OUT + 4*(n % 4); n += 1
                    R = [half*8 + 2*j for j in range(4)]
                    for r in R: a.e(f'v_pk_fma_f32 {v(acc+r,2)}, {v(CSV+aa*16+r,2)}, {v(ST+2*bb,2)}, {v(acc+r,2)} op_sel_hi:[1,0,1]')
                    for r in R: a.e(f'v_pk_fma_f32 {v(acc+r,2)}, {v(acc+r,2)}, {v(ST+2*bb,2)}, {v(TMP+aa*16+r,2)} op_sel:[0,1,0] op_sel_hi:[1,1,1]')
                    for r in R:
                        a.e(f'v_max_f32 v{acc+r}, 0, v{acc+r}'); a.e(f'v_max_f32 v{acc+r+1}, 0, v{acc+r+1}')
                    for r in R: a.e(f'v_pk_mul_f32 {v(acc+r,2)}, {v(acc+r,2)}, {v(acc+r,2)}')
                    for j, r in enumerate(R): a.e(f'v_cvt_pk_bf16_f32 v{O+j}, v{acc+r}, v{acc+r+1}')
                    off = bb*112*1024 + (aa*2 + half)*1024
                    a.e(f's_add_u32 s72, s69, {off}')
                    a.e(f'buffer_store_dwordx4 {v(O,4)}, v{t}, {sq(R_WS)}, s72 offen {SC}', tag='hst')
    def publish(self, a, vt):
        a.e('s_lshr_b32 s69, s63, 7'); a.e('s_lshl_b32 s69, s69, 6'); a.e('s_lshr_b32 s72, s64, 7'); a.e('s_lshl_b32 s72, s72, 2'); a.e('s_add_u32 s69, s69, s72')
        a.e(f's_add_u32 s69, s69, s{S_WAVE}'); a.e('s_lshl_b32 s69, s69, 2'); a.e(f's_add_u32 s69, s69, {FH}')
        publish(a, ['s69'], vt=vt)

HC0 = 0; HC_CH = 16640; KV0 = 2*HC_CH; KV_CH = 4608; RED0 = KV0 + 2*KV_CH
A_HRAW, A_KV = 224, 236
class Conv:
    ACC, FA = 8, 64
    def issue_filter(self, a, t=32):
        a.comment('conv: filter raw loads -> agprs')
        a.e('s_lshl_b32 s73, s2, 13')
        a.e(f'v_lshl_add_u32 v{t}, v0, 4, s73')
        a.e(f'v_subrev_u32 v{t+1}, 8, v{t}'); a.e(f'v_max_i32 v{t+1}, 0, v{t+1}')
        a.e(f'global_load_dwordx4 {ac(A_HRAW,4)}, v{t}, {sp(P_SSMK)}', tag='hraw')
        a.e(f'global_load_dwordx2 {ac(A_HRAW+4,2)}, v{t+1}, {sp(P_SSMK)}', tag='hraw')
        a.e(f'v_add_u32 v{t}, 4096, v{t}'); a.e(f'v_add_u32 v{t+1}, 4096, v{t+1}')
        a.e(f'global_load_dwordx4 {ac(A_HRAW+8,4)}, v{t}, {sp(P_SSMK)}', tag='hraw')
        a.e(f'global_load_dwordx2 {ac(A_HRAW+6,2)}, v{t+1}, {sp(P_SSMK)}', tag='hraw')
        a.e('s_lshl_b32 s74, s2, 2')
        a.e(f's_load_dword s75, {sp(P_SSMD)}, s74')
    def flag_addr(self, a, vd):
        a.e('s_lshr_b32 s73, s2, 5'); a.e('s_lshl_b32 s73, s73, 2'); a.e('s_bfe_u32 s74, s2, 0x20003'); a.e('s_add_u32 s73, s73, s74')
        a.e('s_lshl_b32 s73, s73, 7'); a.e(f's_add_u32 s73, s73, {FK}')
        a.e(f'v_and_b32 v{vd}, 31, v{V_LANE}'); a.e(f'v_lshl_add_u32 v{vd}, v{vd}, 2, s73')
    def load_kv(self, a, t):
        a.e('s_lshl_b32 s73, s2, 13'); a.e(f's_add_u32 s73, s73, {WS_KVT}')
        a.e(f'v_lshlrev_b32 v{t}, 4, v0')
        a.e(f'buffer_load_dwordx4 {ac(A_KV,4)}, v{t}, {sq(R_WS)}, s73 offen {SC}', tag='kvl')
        a.e('s_add_u32 s73, s73, 4096')
        a.e(f'buffer_load_dwordx4 {ac(A_KV+4,4)}, v{t}, {sq(R_WS)}, s73 offen {SC}', tag='kvl')
    def prep(self, a):
        a.comment('conv: prep')
        t = 8
        a.wait_vm('hraw')
        H = 48
        for i in range(12): a.e(f'v_accvgpr_read_b32 v{H+i}, a{A_HRAW+i}')
        a.e(f'v_lshlrev_b32 v{t}, 4, v0')
        a.e(f'v_cmp_eq_u32 vcc, 0, v0')
        a.e(f'v_add_u32 v{t+1}, 32, v{t}')
        W = 20
        for ch in range(2):
            d0 = H if ch == 0 else H + 8; dm = H + 4 if ch == 0 else H + 6
            a.e(f'v_cndmask_b32_e64 v{dm}, v{dm}, 0, vcc'); a.e(f'v_cndmask_b32_e64 v{dm+1}, v{dm+1}, 0, vcc')
            base = HC0 + ch*HC_CH
            a.e(f'ds_write_b128 v{t+1}, {v(d0,4)} offset:{base}', tag='hw')
            src = [dm+1, d0, d0+1, d0+2, d0+3]
            for j in range(4): a.e(f'v_alignbit_b32 v{W+j}, v{src[j+1]}, v{src[j]}, 16')
            a.e(f'ds_write_b128 v{t+1}, {v(W,4)} offset:{base + 4160}', tag='hw')
            for j in range(4): a.e(f'v_mov_b32 v{W+4+j}, v{src[j]}')
            a.e(f'ds_write_b128 v{t+1}, {v(W+4,4)} offset:{base + 2*4160}', tag='hw')
            a.e(f'v_alignbit_b32 v{W+8}, v{dm+1}, v{dm}, 16')
            for j in range(3): a.e(f'v_mov_b32 v{W+9+j}, v{W+j}')
            a.e(f'ds_write_b128 v{t+1}, {v(W+8,4)} offset:{base + 3*4160}', tag='hw')
            W = 32
        Z = 44
        for j in range(4): a.e(f'v_mov_b32 v{Z+j}, 0')
        a.e(f'v_lshrrev_b32 v{t+2}, 1, v0'); a.e(f'v_and_b32 v{t+3}, 3, v{t+2}'); a.e(f'v_mul_u32_u24 v{t+3}, 4160, v{t+3}')
        a.e(f'v_bfe_u32 v{t+2}, v0, 3, 1'); a.e(f'v_mul_u32_u24 v{t+2}, {HC_CH}, v{t+2}'); a.e(f'v_add_u32 v{t+3}, v{t+3}, v{t+2}')
        a.e(f'v_and_b32 v{t+2}, 1, v0'); a.e(f'v_lshl_add_u32 v{t+3}, v{t+2}, 4, v{t+3}')
        a.e(f'v_subrev_u32 v{t+2}, 16, v0'); a.e(f'v_and_b32 v{t+4}, 31, v{t+2}'); a.e(f'v_lshlrev_b32 v{t+4}, 4, v{t+4}')
        a.e(f'v_bfe_u32 v{t+2}, v{t+2}, 5, 1'); a.e(f'v_mul_u32_u24 v{t+2}, {KV_CH}, v{t+2}'); a.e(f'v_add_u32 v{t+4}, v{t+4}, v{t+2}'); a.e(f'v_add_u32 v{t+4}, {KV0}, v{t+4}')
        a.e(f'v_cmp_gt_u32 vcc, 16, v0')
        a.e(f'v_cndmask_b32 v{t+3}, v{t+4}, v{t+3}, vcc')
        a.e(f'v_cmp_gt_u32 vcc, 80, v0')
        a.e('s_and_saveexec_b64 s[76:77], vcc')
        lab = a.newlabel('Lcz')
        a.e(f's_cbranch_execz {lab}')
        a.e(f'ds_write_b128 v{t+3}, {v(Z,4)}', tag='hw')
        a.label(lab)
        a.e('s_mov_b64 exec, s[76:77]')
        a.wait_vm('kvl')
        a.e(f'ds_write_b128 v{t}, {ac(A_KV,4)} offset:{KV0 + 512}', tag='hw')
        a.e(f'ds_write_b128 v{t}, {ac(A_KV+4,4)} offset:{KV0 + KV_CH + 512}', tag='hw')
    def setup_main(self, a):
        L = V_LANE; VA_, VB_ = 2, 3; t = 4
        a.e(f's_lshr_b32 s76, s{S_WAVE}, 1'); a.e(f's_and_b32 s77, s{S_WAVE}, 1')
        a.e(f'v_bfe_u32 v{t}, v{L}, 2, 2'); a.e(f'v_mul_u32_u24 v{VA_}, 4160, v{t}')
        a.e(f'v_and_b32 v{t}, 3, v{L}'); a.e(f'v_lshl_add_u32 v{VA_}, v{t}, 3, v{VA_}')
        a.e(f'v_lshrrev_b32 v{t}, 4, v{L}'); a.e(f'v_lshlrev_b32 v{t}, 4, v{t}'); a.e(f'v_sub_u32 v{VA_}, v{VA_}, v{t}')
        a.e(f's_mul_i32 s78, s76, {HC_CH}'); a.e(f's_lshl_b32 s79, s77, 8'); a.e('s_add_u32 s78, s78, s79'); a.e(f's_add_u32 s78, s78, {HC0 + 56}')
        a.e(f'v_add_u32 v{VA_}, s78, v{VA_}')
        a.e(f'v_and_b32 v{t}, 15, v{L}'); a.e(f'v_lshlrev_b32 v{VB_}, 5, v{t}')
        a.e(f'v_lshrrev_b32 v{t}, 4, v{L}'); a.e(f'v_lshl_add_u32 v{VB_}, v{t}, 4, v{VB_}')
        a.e(f's_mul_i32 s78, s76, {KV_CH}'); a.e(f's_lshl_b32 s79, s77, 8'); a.e('s_sub_u32 s78, s78, s79'); a.e(f's_add_u32 s78, s78, {KV0 + 32 + 256}')
        a.e(f'v_add_u32 v{VB_}, s78, v{VB_}')
    def main(self, a, hooks):
        VA_, VB_ = 2, 3
        for i in range(32): a.e(f'v_mov_b32 v{self.ACC+i}, 0')
        def rd(it, p):
            FA = self.FA + 64*p; res = []
            for j in range(8):
                res.append((f'ds_read_b64_tr_b16 {v(FA+4*j,2)}, v{VA_} offset:{512*j + 64*it + 8}', ('cA', it, j)))
                res.append((f'ds_read_b64_tr_b16 {v(FA+4*j+2,2)}, v{VA_} offset:{512*j + 64*it}', ('cA', it, j)))
                res.append((f'ds_read_b128 {v(FA+32+4*j,4)}, v{VB_} offset:{512*j + (3-it)*64}', ('cB', it, j)))
            return res
        for tx, tg in rd(0, 0): a.e(tx, tag=tg)
        for it in range(4):
            p = it & 1; FA = self.FA + 64*p
            fill = rd(it+1, p ^ 1) if it < 3 else []
            pairs = [(j1, d) for j1 in range(8) for d in range(8) if j1 + d <= 7]
            pairs.sort(key=lambda x: (max(x), x))
            seen = set(); nf = len(fill); k = 0
            for idx, (j1, d) in enumerate(pairs):
                need = []
                if ('cA', it, j1) not in seen: need.append(('cA', it, j1)); seen.add(('cA', it, j1))
                if ('cB', it, d) not in seen: need.append(('cB', it, d)); seen.add(('cB', it, d))
                if need: a.wait_lg(need)
                q = j1 + d
                a.e(f'v_mfma_f32_16x16x32_bf16 {v(self.ACC+4*q,4)}, {v(FA+4*j1,4)}, {v(FA+32+4*d,4)}, {v(self.ACC+4*q,4)}')
                want = ((idx + 1) * nf) // 30
                while k < min(want, nf):
                    tx, tg = fill[k]; a.e(tx, tag=tg); k += 1
            while k < nf:
                tx, tg = fill[k]; a.e(tx, tag=tg); k += 1
            if it in hooks: hooks[it](a)
    def epilogue(self, a):
        L = V_LANE; t = 4
        a.e(f'v_lshlrev_b32 v{t}, 4, v{L}')
        a.e(f's_lshl_b32 s78, s{S_WAVE}, 12'); a.e(f's_add_u32 s78, s78, {RED0}'); a.e(f'v_add_u32 v{t+1}, s78, v{t}')
        a.e(f's_xor_b32 s79, s{S_WAVE}, 1'); a.e('s_lshl_b32 s79, s79, 12'); a.e(f's_add_u32 s79, s79, {RED0}'); a.e(f'v_add_u32 v{t+2}, s79, v{t}')
        lab1 = a.newlabel('Lce'); lab2 = a.newlabel('Lce'); K = 40
        a.e('s_cmp_eq_u32 s77, 0'); a.e(f's_cbranch_scc0 {lab1}')
        for j in range(4): a.e(f'ds_write_b128 v{t+1}, {v(self.ACC+16+4*j,4)} offset:{j*1024}')
        for j in range(16): a.e(f'v_mov_b32 v{K+j}, v{self.ACC+j}')
        a.e(f's_branch {lab2}')
        a.label(lab1)
        a.e('s_nop 7')
        for j in range(4): a.e(f'ds_write_b128 v{t+1}, {v(self.ACC+4*j,4)} offset:{j*1024}')
        for j in range(16): a.e(f'v_mov_b32 v{K+j}, v{self.ACC+16+j}')
        a.label(lab2)
        a.e('s_waitcnt lgkmcnt(0)')
        a.e('s_barrier')
        P = 64
        for j in range(4): a.e(f'ds_read_b128 {v(P+4*j,4)}, v{t+2} offset:{j*1024}', tag='red')
        a.e(f'v_and_b32 v{t}, 15, v{L}'); a.e(f'v_lshlrev_b32 v{t}, 5, v{t}'); a.e(f'v_lshrrev_b32 v{t+1}, 4, v{L}'); a.e(f'v_lshl_add_u32 v{t}, v{t+1}, 3, v{t}')
        a.e(f's_mul_i32 s78, s76, {KV_CH}'); a.e('s_lshl_b32 s79, s77, 11'); a.e('s_add_u32 s78, s78, s79'); a.e(f's_add_u32 s78, s78, {KV0+512}')
        a.e(f'v_add_u32 v{t+1}, s78, v{t}')
        KVv = 80
        for j in range(4): a.e(f'ds_read_b64 {v(KVv+2*j,2)}, v{t+1} offset:{j*512}', tag='kvv')
        a.e('s_lshl_b32 s78, s75, 16'); a.e('s_and_b32 s79, s75, 0xffff0000'); a.e('s_cmp_eq_u32 s76, 0'); a.e('s_cselect_b32 s78, s78, s79')
        a.e('s_lshl_b32 s79, s2, 1'); a.e('s_add_u32 s79, s79, s76'); a.e('s_lshl_b32 s79, s79, 12'); a.e('s_lshl_b32 s80, s77, 11'); a.e('s_add_u32 s79, s79, s80')
        a.e(f's_add_u32 s79, s79, {WS_Y2T}')
        a.wait_lg('red')
        for j in range(8): a.e(f'v_pk_add_f32 {v(K+2*j,2)}, {v(K+2*j,2)}, {v(P+2*j,2)}')
        a.wait_lg('kvv')
        U = 96
        for j in range(4):
            for e in range(2):
                unpack_lo(a, U+2*e, KVv+2*j+e); unpack_hi(a, U+2*e+1, KVv+2*j+e)
            for e in range(4): a.e(f'v_fmac_f32 v{K+4*j+e}, s78, v{U+e}')
            O = 100 + 2*j
            a.e(f'v_cvt_pk_bf16_f32 v{O}, v{K+4*j}, v{K+4*j+1}'); a.e(f'v_cvt_pk_bf16_f32 v{O+1}, v{K+4*j+2}, v{K+4*j+3}')
            a.e(f'buffer_store_dwordx2 {v(O,2)}, v{t}, {sq(R_WS)}, s79 offen offset:{j*512} {SC}', tag='yst')
    def publish(self, a, vt):
        a.e('s_lshr_b32 s78, s2, 5'); a.e('s_lshl_b32 s78, s78, 1'); a.e('s_add_u32 s78, s78, s77'); a.e('s_lshl_b32 s78, s78, 6')
        a.e('s_and_b32 s79, s2, 31'); a.e('s_lshl_b32 s79, s79, 1'); a.e('s_add_u32 s78, s78, s79'); a.e('s_add_u32 s78, s78, s76')
        a.e('s_lshl_b32 s78, s78, 2'); a.e(f's_add_u32 s78, s78, {FY}')
        publish(a, ['s78'], vt=vt)

Y2L = 0; RED2 = 8192
class Gemm2:
    ACC, RB, NR, E = 8, 72, 14, 184
    def decode(self, a):
        a.e('s_and_b32 s81, s2, 7'); a.e('s_lshl_b32 s81, s81, 8'); a.e('s_lshr_b32 s82, s2, 3'); a.e('s_and_b32 s83, s82, 3'); a.e('s_lshl_b32 s83, s83, 6'); a.e('s_add_u32 s81, s81, s83')
        a.e('s_lshr_b32 s82, s82, 2'); a.e('s_lshl_b32 s82, s82, 6')
    def wflag_addr(self, a, vd):
        a.e('s_lshr_b32 s83, s82, 6'); a.e('s_lshl_b32 s83, s83, 2'); a.e(f's_add_u32 s83, s83, s{S_WAVE}'); a.e('s_lshl_b32 s83, s83, 7'); a.e(f's_add_u32 s83, s83, {FW}')
        a.e(f'v_and_b32 v{vd}, 31, v{V_LANE}'); a.e(f'v_lshl_add_u32 v{vd}, v{vd}, 2, s83')
    def load_w(self, a, vo, lo, hi):
        a.e(f'v_lshlrev_b32 v{vo}, 4, v{V_LANE}')
        a.e('s_lshr_b32 s83, s82, 5'); a.e('s_mul_i32 s83, s83, 112'); a.e(f's_mul_i32 s84, s{S_WAVE}, 28'); a.e('s_add_u32 s83, s83, s84')
        a.e('s_lshl_b32 s83, s83, 10'); a.e(f's_add_u32 s83, s83, {WS_W2F}')
        for k4 in range(lo, hi, 4):
            for aa in range(2):
                a.e(f's_add_u32 s84, s83, {(aa*112 + k4)*1024}')
                for kl in range(k4, min(k4+4, hi)):
                    a.e(f'buffer_load_dwordx4 {ac((kl*2+aa)*4,4)}, v{vo}, {sq(R_WS)}, s84 offen offset:{(kl-k4)*1024} {SC}', tag=('w2', kl))
    def hflag_addr(self, a, vd):
        a.e('s_lshr_b32 s83, s81, 7'); a.e('s_lshl_b32 s83, s83, 8'); a.e(f's_add_u32 s83, s83, {FH}')
        a.e(f'v_min_u32 v{vd}, 55, v{V_LANE}'); a.e(f'v_lshl_add_u32 v{vd}, v{vd}, 2, s83')
    def yflag_addr(self, a, vd):
        a.e('s_lshr_b32 s83, s82, 6'); a.e('s_lshl_b32 s83, s83, 1'); a.e('s_lshr_b32 s84, s81, 10'); a.e('s_add_u32 s83, s83, s84'); a.e('s_lshl_b32 s83, s83, 8'); a.e(f's_add_u32 s83, s83, {FY}')
        a.e(f'v_lshl_add_u32 v{vd}, v{V_LANE}, 2, s83')
    def hload(self, a, kl):
        r = self.RB + (kl % self.NR)*8
        a.e(f's_add_u32 s86, s85, {kl*1024}')
        a.e(f'buffer_load_dwordx4 {v(r,4)}, v2, {sq(R_WS)}, s86 offen {SC}', tag=('h', kl))
        a.e(f's_add_u32 s86, s85, {(112+kl)*1024}')
        a.e(f'buffer_load_dwordx4 {v(r+4,4)}, v2, {sq(R_WS)}, s86 offen {SC}', tag=('h', kl))
    def start(self, a):
        a.e('s_lshr_b32 s85, s81, 5'); a.e('s_mul_i32 s85, s85, 112'); a.e(f's_mul_i32 s84, s{S_WAVE}, 28'); a.e('s_add_u32 s85, s85, s84')
        a.e('s_lshl_b32 s85, s85, 10'); a.e(f's_add_u32 s85, s85, {WS_H}')
        a.e(f'v_lshlrev_b32 v2, 4, v{V_LANE}')
        for kl in range(self.NR): self.hload(a, kl)
        for i in range(64): a.e(f'v_mov_b32 v{self.ACC+i}, 0')
    def main(self, a, hooks):
        a.comment('gemm2: main')
        for kl in range(28):
            a.wait_vm([('h', kl), ('w2', kl)])
            r = self.RB + (kl % self.NR)*8
            for aa in range(2):
                for bb in range(2):
                    acc = self.ACC + (aa*2+bb)*16
                    a.e(f'v_mfma_f32_32x32x16_bf16 {v(acc,16)}, {ac((kl*2+aa)*4,4)}, {v(r+4*bb,4)}, {v(acc,16)}')
            if kl + self.NR < 28: self.hload(a, kl + self.NR)
            if kl in hooks: hooks[kl](a)
    def issue_epi_loads(self, a):
        L = V_LANE; E = self.E
        a.e(f's_and_b32 s87, s{S_WAVE}, 1'); a.e(f's_lshr_b32 s88, s{S_WAVE}, 1')
        a.e(f'v_and_b32 v3, 31, v{L}'); a.e('s_lshl_b32 s89, s88, 5'); a.e('s_add_u32 s89, s89, s81'); a.e('v_add_u32 v3, s89, v3')
        a.e(f'v_lshrrev_b32 v4, 5, v{L}'); a.e('v_lshlrev_b32 v4, 2, v4'); a.e('s_lshl_b32 s89, s87, 5'); a.e('s_add_u32 s89, s89, s82'); a.e('v_add_u32 v4, s89, v4')
        a.e('v_lshlrev_b32 v5, 10, v3'); a.e('v_lshl_add_u32 v5, v4, 1, v5')
        for q in range(4): a.e(f'global_load_dwordx2 {v(E+2*q,2)}, v5, {sp(P_Q)} offset:{q*16}', tag='ex')
        a.e('v_lshlrev_b32 v6, 1, v4')
        for q in range(4): a.e(f'global_load_dwordx2 {v(E+8+2*q,2)}, v6, {sp(P_B2)} offset:{q*16}', tag='eb')
        a.e(f'v_lshlrev_b32 v6, 3, v3'); a.e(f'v_add_u32 v6, {WS_ST}, v6')
        a.e(f'buffer_load_dwordx2 {v(E+16,2)}, v6, {sq(R_WS)}, 0 offen {SC}', tag='es')
    def load_y2(self, a):
        E = self.E
        a.e('v_lshrrev_b32 v6, 3, v0'); a.e('v_add_u32 v6, s82, v6'); a.e('v_lshlrev_b32 v6, 12, v6')
        a.e('v_and_b32 v7, 7, v0'); a.e('v_lshl_add_u32 v6, v7, 4, v6')
        a.e('s_lshl_b32 s89, s81, 1'); a.e(f's_add_u32 s89, s89, {WS_Y2T}')
        a.e(f'buffer_load_dwordx4 {v(E+20,4)}, v6, {sq(R_WS)}, s89 offen {SC}', tag='ey')
        a.e(f's_add_u32 s89, s89, {32*4096}')
        a.e(f'buffer_load_dwordx4 {v(E+24,4)}, v6, {sq(R_WS)}, s89 offen {SC}', tag='ey')
    def epilogue(self, a):
        L = V_LANE; E = self.E
        a.e('s_barrier')
        a.e(f'v_lshlrev_b32 v6, 4, v{L}'); a.e(f's_lshl_b32 s89, s{S_WAVE}, 12'); a.e(f'v_add_u32 v7, s89, v6')
        for j in range(4):
            aa, bb = j & 1, j >> 1
            acc = self.ACC + (aa*2+bb)*16
            for qd in range(4):
                a.e(f'ds_write_b128 v7, {v(acc+4*qd,4)} offset:{RED2 + j*16384 + qd*1024}')
        a.wait_vm('ey')
        a.e('v_lshlrev_b32 v7, 4, v0')
        a.e(f'ds_write_b128 v7, {v(E+20,4)} offset:{Y2L}'); a.e(f'ds_write_b128 v7, {v(E+24,4)} offset:{Y2L+4096}')
        a.e('s_waitcnt lgkmcnt(0)')
        a.e('s_barrier')
        R = 72
        a.e(f's_lshl_b32 s89, s{S_WAVE}, 14'); a.e(f'v_add_u32 v7, s89, v6')
        for src in range(4):
            for qd in range(4):
                a.e(f'ds_read_b128 {v(R+src*16+4*qd,4)}, v7 offset:{RED2 + src*4096 + qd*1024}', tag=('rr', src))
        Y = 136
        a.e(f'v_lshrrev_b32 v6, 5, v{L}'); a.e('v_lshlrev_b32 v6, 2, v6'); a.e(f'v_bfe_u32 v7, v{L}, 2, 2'); a.e('v_add_u32 v6, v6, v7')
        a.e('s_lshl_b32 s89, s87, 5'); a.e('v_add_u32 v6, s89, v6'); a.e('v_lshlrev_b32 v6, 7, v6')
        a.e(f'v_bfe_u32 v7, v{L}, 4, 1'); a.e('v_lshl_add_u32 v6, v7, 5, v6'); a.e(f'v_and_b32 v7, 3, v{L}'); a.e('v_lshl_add_u32 v6, v7, 3, v6')
        a.e('s_lshl_b32 s89, s88, 6'); a.e('v_add_u32 v6, s89, v6')
        for q in range(4): a.e(f'ds_read_b64_tr_b16 {v(Y+2*q,2)}, v6 offset:{Y2L + q*1024}', tag='yt')
        a.wait_vm(['ex', 'eb', 'es'])
        unpack_hi(a, E+17, E+16); unpack_lo(a, E+16, E+16)
        a.e(f'v_rcp_f32 v{E+17}, v{E+17}')
        a.wait_lg(('rr', 1))
        for i in range(8): a.e(f'v_pk_add_f32 {v(R+2*i,2)}, {v(R+2*i,2)}, {v(R+16+2*i,2)}')
        a.e(f'v_mul_f32 v{E+18}, v{E+16}, v{E+17}'); a.e(f'v_xor_b32 v{E+18}, 0x80000000, v{E+18}')
        a.wait_lg(('rr', 3))
        for i in range(8): a.e(f'v_pk_add_f32 {v(R+32+2*i,2)}, {v(R+32+2*i,2)}, {v(R+48+2*i,2)}')
        for i in range(8): a.e(f'v_pk_add_f32 {v(R+2*i,2)}, {v(R+2*i,2)}, {v(R+32+2*i,2)}')
        a.wait_lg('yt')
        U = 144
        for q in range(4):
            for e in range(2):
                unpack_lo(a, U+2*e, E+2*q+e); unpack_hi(a, U+2*e+1, E+2*q+e)
                unpack_lo(a, U+4+2*e, E+8+2*q+e); unpack_hi(a, U+4+2*e+1, E+8+2*q+e)
                unpack_lo(a, U+8+2*e, Y+2*q+e); unpack_hi(a, U+8+2*e+1, Y+2*q+e)
            for e in range(4): a.e(f'v_add_f32 v{R+4*q+e}, v{R+4*q+e}, v{U+4+e}')
            for e in range(4): a.e(f'v_mul_f32 v{U+12+e}, 0xbfb8aa3b, v{R+4*q+e}')
            for e in range(4): a.e(f'v_exp_f32 v{U+12+e}, v{U+12+e}')
            for e in range(4): a.e(f'v_fma_f32 v{U+4+e}, v{U+e}, v{E+17}, v{E+18}')
            for e in range(4): a.e(f'v_add_f32 v{U+12+e}, 1.0, v{U+12+e}')
            for e in range(4): a.e(f'v_rcp_f32 v{U+12+e}, v{U+12+e}')
            for e in range(4): a.e(f'v_mul_f32 v{U+4+e}, v{U+4+e}, v{U+8+e}')
            for e in range(4): a.e(f'v_mul_f32 v{U+12+e}, v{U+12+e}, v{R+4*q+e}')
            for e in range(4): a.e(f'v_fma_f32 v{U+e}, v{U+4+e}, v{U+12+e}, v{U+e}')
            O = 160 + 2*q
            a.e(f'v_cvt_pk_bf16_f32 v{O}, v{U}, v{U+1}'); a.e(f'v_cvt_pk_bf16_f32 v{O+1}, v{U+2}, v{U+3}')
            a.e(f'global_store_dwordx2 v5, {v(O,2)}, {sp(P_OUT)} offset:{q*16}', tag='ost')

def fused_body(a, kname):
    end = 'Lend'
    a.e('s_cmp_ge_u32 s2, 256'); a.e(f's_cbranch_scc1 {end}')
    a.e('s_load_dwordx16 s[4:19], s[0:1], 0'); a.e('s_load_dwordx8 s[20:27], s[0:1], 64'); a.e('s_load_dwordx4 s[28:31], s[0:1], 96')
    a.e(f'v_and_b32 v{V_LANE}, 63, v0'); a.e('v_lshrrev_b32 v2, 6, v0'); a.e('s_nop 0'); a.e(f'v_readfirstlane_b32 s{S_WAVE}, v2')
    if Opt.stamps:
        a.e('s_memrealtime s[90:91]')
    a.e('s_waitcnt lgkmcnt(0)')
    if Opt.stamps: a.e('s_mov_b32 s92, s90')
    srd(a, R_WS, P_WS, WS_SIZE)
    pre, g1, cv, g2 = Pre(), Gemm1(), Conv(), Gemm2()
    pre.issue(a)
    g1.decode(a); g2.decode(a)
    cv.issue_filter(a)
    if Opt.codepf:
        a.e('s_getpc_b64 s[90:91]')
        a.label('Lpcbase')
        a.e('v_lshlrev_b32 v32, 6, v0')
        a.e('global_load_dword v33, v32, s[90:91]', tag='cpf')
        a.e('v_add_u32 v32, 0x4000, v32')
        a.e('v_min_u32 v32, Lend-Lpcbase, v32')
        a.e('global_load_dword v34, v32, s[90:91]', tag='cpf')
    idle = 'Lidle'; join = 'Ljoin'
    a.e('s_cmp_ge_u32 s62, 28'); a.e(f's_cbranch_scc1 {idle}')
    saved0 = (list(a.vm), list(a.lg))
    g1.setup(a)
    for s in range(4): g1.dma(a, s)
    g1.setup2(a)
    stamp(a, 1)
    pre.compute(a)
    stamp(a, 2)
    g1.init_acc(a)
    VS, VFK, VFW = 32, 34, 35
    def h4(a): pre.publish(a)
    def h5(a):
        g1.stats_addr(a, VS); cv.flag_addr(a, VFK); g2.wflag_addr(a, VFW)
        poll_issue(a, VS, g1.ST, 2); poll_issue(a, VS+1, g1.ST+2, 2); poll_issue(a, VFK, 36); poll_issue(a, VFW, 37)
    def h7(a):
        poll_check(a, [(VS, g1.ST, 2, g1.ST+1), (VS+1, g1.ST+2, 2, g1.ST+3), (VFK, 36, 1, 36), (VFW, 37, 1, 37)])
        cv.load_kv(a, 38)
    g1.main(a, {4: h4, 5: h5, 7: h7})
    stamp(a, 3)
    g1.epilogue(a)
    g2.load_w(a, 38, 0, 24)
    stamp(a, 4)
    a.e('s_barrier')
    cv.prep(a)
    after_g1 = (list(a.vm), list(a.lg))
    a.e(f's_branch {join}')
    a.label(idle)
    a.vm, a.lg = list(saved0[0]), list(saved0[1])
    pre.compute(a)
    a.e('s_waitcnt vmcnt(0)')
    pre.publish(a)
    cv.flag_addr(a, VFK); g2.wflag_addr(a, VFW)
    poll_issue(a, VFK, 36); poll_issue(a, VFW, 37)
    poll_check(a, [(VFK, 36, 1, 36), (VFW, 37, 1, 37)])
    cv.load_kv(a, 38)
    g2.load_w(a, 38, 0, 24)
    cv.prep(a)
    a.label(join)
    a.vm, a.lg = after_g1
    a.e('s_waitcnt lgkmcnt(0)')
    a.e('s_barrier')
    cv.setup_main(a)
    stamp(a, 5)
    def c0(a):
        lab = a.newlabel('Lnoh')
        a.wait_vm('hst')
        a.e('s_cmp_ge_u32 s62, 28'); a.e(f's_cbranch_scc1 {lab}')
        g1.publish(a, 4)
        a.label(lab)
        g2.load_w(a, 4, 24, 28)
    cv.main(a, {1: c0})
    stamp(a, 6)
    g2.hflag_addr(a, 60); poll_issue(a, 60, 61)
    cv.epilogue(a)
    stamp(a, 7)
    poll_check(a, [(60, 61, 1, 61)])
    g2.start(a)
    def k0(a):
        cv.publish(a, 3)
    def k8(a):
        g2.issue_epi_loads(a)
        g2.yflag_addr(a, 212); poll_issue(a, 212, 213)
        lab = a.newlabel('Lfa')
        a.e('v_lshlrev_b32 v214, 2, v0'); a.e(f'v_add_u32 v214, {FAR}, v214')
        poll_issue(a, 214, 215, tag='far')
    def k20(a):
        poll_check(a, [(212, 213, 1, 213)])
        g2.load_y2(a)
    g2.main(a, {0: k0, 8: k8, 20: k20})
    stamp(a, 8)
    g2.epilogue(a)
    lab = a.newlabel('Lfin')
    a.e('s_cmp_lg_u32 s2, 0'); a.e(f's_cbranch_scc1 {lab}')
    poll_check(a, [(214, 215, 1, 215)], tag='far')
    a.e('s_barrier')
    a.e(f's_cmp_lg_u32 s{S_WAVE}, 0'); a.e(f's_cbranch_scc1 {lab}')
    a.e(f's_mov_b32 s90, {WS_E}')
    publish(a, ['s90'], vt=2)
    a.label(lab)
    stamp(a, 9)
    write_stamps(a)
    a.label(end)
    a.e('s_endpgm')

def header():
    ref = open('cdna_kernels/' + NAME + '.s.ref').read().split('\n')
    hdr = []
    for ln in ref:
        if ln.startswith('; @launch') or ln.startswith('; Override') or ln.startswith('; grid=ceil'): break
        hdr.append(ln)
    return '\n'.join(hdr) + '\n'

def fused():
    name = NAME + '_kernel'
    a = Asm()
    fused_body(a, name)
    n = a.fix_hazards()
    out = header() + '; @launch grid=(256,1,1) block=(256,1,1) lds=163840\n'
    out += '.amdgcn_target "amdgcn-amd-amdhsa--gfx950"\n.text\n'
    out += f'.globl {name}\n.p2align 8\n.type {name},@function\n{name}:\n' + a.text()
    out += f'''.section .rodata,"a"
.p2align 6
.amdhsa_kernel {name}
  .amdhsa_next_free_vgpr 512
  .amdhsa_next_free_sgpr 102
  .amdhsa_accum_offset 256
  .amdhsa_group_segment_fixed_size 0
  .amdhsa_kernarg_size 112
  .amdhsa_user_sgpr_count 2
  .amdhsa_user_sgpr_kernarg_segment_ptr 1
  .amdhsa_system_sgpr_workgroup_id_x 1
.end_amdhsa_kernel
'''
    return out

if __name__ == '__main__':
    dst = sys.argv[1]
    for o in sys.argv[2:]:
        k, val = o.split('='); setattr(Opt, k, int(val))
    txt = fused()
    open(dst, 'w').write(txt)
    print('wrote', dst, len(txt), 'bytes')
```

```python
import sys, os
sys.path.insert(0, os.path.dirname(os.path.abspath(__file__)))
from asmlib import Asm

NAME = 'recurrent_scan__ssm_conv_h3__dense_activation_squared_relu__prompt'
S, D, F = 2048, 512, 1792
WS_KVT, WS_Y2T, WS_W2F, WS_H, WS_ST, WS_FLAG = 0x000000, 0x200000, 0x400000, 0x600000, 0xE00000, 0xE10000
WS_E = 0xE08000
FK, FW, FAR, FH, FY = WS_FLAG, WS_FLAG + 0x1000, WS_FLAG + 0x2000, WS_FLAG + 0x3000, WS_FLAG + 0x4000
S_TAG, S_SPIN = 16, 17
TAGC = 0x9E3779B9
SPIN_MAX = 100000
WS_STAMP = 0xF00000
WS_SIZE = 0x10000000
NST = 10
class Opt:
    stamps = False
    codepf = True
    dbgwg = -1
P_Q, P_K, P_V, P_SK, P_SSMK, P_SSMD, P_BX, P_W1 = 4, 6, 8, 10, 12, 14, 16, 18
P_B1, P_W2, P_B2, P_OUT, P_DBG, P_WS = 20, 22, 24, 26, 28, 30
S_WAVE = 3
R_WS, R_A, R_B, R_C = 32, 36, 40, 44
def sp(p): return f's[{p}:{p+1}]'
def sq(r): return f's[{r}:{r+3}]'
def v(i, n=1): return f'v{i}' if n == 1 else f'v[{i}:{i+n-1}]'
def ac(i, n=1): return f'a{i}' if n == 1 else f'a[{i}:{i+n-1}]'
def srd(a, dst, ptr, size):
    a.e(f's_mov_b32 s{dst}, s{ptr}'); a.e(f's_mov_b32 s{dst+1}, s{ptr+1}')
    a.e(f's_mov_b32 s{dst+2}, {hex(size)}'); a.e(f's_mov_b32 s{dst+3}, 0x20000')
V_LANE = 1
def unpack_lo(a, d, s): a.e(f'v_lshlrev_b32 v{d}, 16, v{s}')
def unpack_hi(a, d, s): a.e(f'v_and_b32 v{d}, 0xffff0000, v{s}')

STAMP_NAMES = []
def stamp(a, name, cyc=False):
    if not Opt.stamps: return
    if name not in STAMP_NAMES: STAMP_NAMES.append(name)
    i = STAMP_NAMES.index(name)
    a.e('s_memtime s[90:91]' if cyc else 's_memrealtime s[90:91]'); a.e('s_waitcnt lgkmcnt(0)'); a.e(f'v_writelane_b32 v255, s90, {i}')
def write_stamps(a):
    if not Opt.stamps: return
    a.e(f's_lshl_b32 s90, s2, 2'); a.e(f's_add_u32 s90, s90, s{S_WAVE}'); a.e('s_lshl_b32 s90, s90, 8'); a.e(f's_add_u32 s90, s90, {WS_STAMP}')
    a.e(f'v_lshlrev_b32 v2, 2, v{V_LANE}')
    a.e(f'buffer_store_dword v255, v2, {sq(R_WS)}, s90 offen')
    if Opt.dbgwg >= 0:
        lab = a.newlabel('Ldbg')
        a.e(f's_cmp_lg_u32 s2, {Opt.dbgwg}'); a.e(f's_cbranch_scc1 {lab}')
        a.e(f's_cmp_lg_u32 s{S_WAVE}, 0'); a.e(f's_cbranch_scc1 {lab}')
        sel = ['kernarg', 'pre_arrived', 'pre_done', 'g1_s0', 'g1_s2', 'g1_s4', 'g1_s6', 'g1_main', 'g1_epi', 'w2f_issued', 'conv_prep', 'conv_main', 'hflag_ok', 'g2_k20', 'g2_main', 'end']
        a.e('v_readlane_b32 s92, v255, 0')
        a.e('v_mov_b32 v3, 0')
        for i, nm in enumerate(sel):
            if nm not in STAMP_NAMES: continue
            a.e(f'v_readlane_b32 s93, v255, {STAMP_NAMES.index(nm)}')
            a.e('s_sub_u32 s93, s93, s92')
            a.e(f'v_writelane_b32 v3, s93, {i}')
        a.e('s_mov_b64 exec, 0xffff')
        a.e(f'global_store_dword v2, v3, {sp(P_DBG)}')
        a.e('s_mov_b64 exec, -1')
        a.label(lab)
def publish(a, addrs, vt=2):
    for i, sr in enumerate(addrs): a.e(f'v_writelane_b32 v{vt}, {sr}, {i}')
    a.e(f'v_mov_b32 v{vt+1}, s{S_TAG}')
    a.e(f's_mov_b64 exec, {(1 << len(addrs)) - 1}')
    a.e(f'buffer_store_dword v{vt+1}, v{vt}, {sq(R_WS)}, 0 offen sc1', tag='flag')
    a.e('s_mov_b64 exec, -1')
def poll_issue(a, vaddr, vdst, width=1, tag='poll'):
    op = {1: 'dword', 2: 'dwordx2'}[width]
    a.e(f'buffer_load_{op} {v(vdst, width)}, v{vaddr}, {sq(R_WS)}, 0 offen sc1', tag=tag)
def poll_check(a, items, tag='poll'):
    top = a.newlabel('Lpc'); done = a.newlabel('Lpd')
    a.wait_vm(tag)
    a.e(f's_mov_b32 s{S_SPIN}, 0')
    a.label(top)
    for n, (va, vd, w, vt) in enumerate(items):
        a.e(f'v_cmp_ne_u32 vcc, s{S_TAG}, v{vt}')
        a.e('s_mov_b64 s[90:91], vcc' if n == 0 else 's_or_b64 s[90:91], s[90:91], vcc')
    a.e('s_cmp_eq_u64 s[90:91], 0')
    a.e(f's_cbranch_scc1 {done}')
    a.e(f's_add_u32 s{S_SPIN}, s{S_SPIN}, 1')
    a.e(f's_cmp_gt_u32 s{S_SPIN}, {SPIN_MAX}')
    a.e(f's_cbranch_scc1 {done}')
    a.e('s_sleep 1')
    saved = (list(a.vm), list(a.lg))
    for (va, vd, w, vt) in items: poll_issue(a, va, vd, w, tag=None)
    a.e('s_waitcnt vmcnt(0)')
    a.e(f's_branch {top}')
    a.vm, a.lg = saved
    a.label(done)
def allreduce2(a, x, y, t0, t1):
    for ctl in ('quad_perm:[1,0,3,2]', 'quad_perm:[2,3,0,1]', 'row_half_mirror', 'row_mirror'):
        a.e(f'v_add_f32_dpp v{x}, v{x}, v{x} {ctl} row_mask:0xf bank_mask:0xf')
        a.e(f'v_add_f32_dpp v{y}, v{y}, v{y} {ctl} row_mask:0xf bank_mask:0xf')
    for sw in ('v_permlane16_swap_b32', 'v_permlane32_swap_b32'):
        a.e(f'v_mov_b32 v{t0}, v{x}'); a.e(f'v_mov_b32 v{t1}, v{y}')
        a.e(f'{sw} v{x}, v{t0}'); a.e(f'{sw} v{y}, v{t1}')
        a.e(f'v_add_f32 v{x}, v{x}, v{t0}'); a.e(f'v_add_f32 v{y}, v{y}, v{t1}')

PRE_LDS = 131072
KIMG, VIMG, WIMG = PRE_LDS, PRE_LDS + 9216, PRE_LDS + 9216 + 8192
SC = 'sc1'

class Pre:
    b = 64
    VE = 62
    def issue(self, a):
        b = self.b; L = V_LANE
        a.e(f'v_mov_b32 v{b}, {WS_E}')
        a.e(f'buffer_load_dword v{self.VE}, v{b}, {sq(R_WS)}, 0 offen sc1', tag='pre')
        a.e(f's_lshl_b32 s58, s2, 3'); a.e(f's_lshl_b32 s59, s{S_WAVE}, 1'); a.e('s_add_u32 s58, s58, s59')
        a.e(f's_lshl_b32 s59, s58, 10')
        a.e(f'v_lshl_add_u32 v{b+2}, v{L}, 4, s59')
        a.e(f'global_load_dwordx4 {v(b+4,4)}, v{b+2}, {sp(P_Q)}', tag='pre')
        a.e(f'global_load_dwordx4 {v(b+8,4)}, v{b+2}, {sp(P_Q)} offset:1024', tag='pre')
        srd(a, R_A, P_K, S*D*2); srd(a, R_B, P_V, S*D*2); srd(a, R_C, P_W2, F*D*2)
        a.e('s_lshr_b32 s48, s2, 3'); a.e('s_lshl_b32 s48, s48, 6')
        a.e('s_and_b32 s49, s2, 7'); a.e('s_lshl_b32 s49, s49, 7')
        a.e(f'v_lshrrev_b32 v{b}, 3, v{L}'); a.e(f'v_lshlrev_b32 v{b}, 10, v{b}')
        a.e(f'v_and_b32 v{b+1}, 7, v{L}'); a.e(f'v_lshl_add_u32 v{b}, v{b+1}, 4, v{b}')
        a.e('s_lshl_b32 s50, s48, 10'); a.e('s_add_u32 s50, s50, s49')
        skip = a.newlabel('Lpre_hist')
        a.e(f's_cmp_lg_u32 s{S_WAVE}, 0'); a.e(f's_cbranch_scc1 {skip}')
        a.e(f's_sub_u32 s51, s50, 8192'); a.e(f'v_add_u32 v{b+1}, s51, v{b}')
        a.e(f's_mov_b32 m0, {KIMG}')
        a.e(f'buffer_load_dwordx4 v{b+1}, {sq(R_A)}, 0 offen lds', tag='pre')
        a.label(skip)
        a.e(f's_lshl_b32 s51, s{S_WAVE}, 14'); a.e('s_add_u32 s51, s51, s50')
        a.e(f's_lshl_b32 s52, s{S_WAVE}, 11')
        for jj in range(2):
            a.e(f's_add_u32 s53, s51, {jj*8192}')
            a.e(f's_add_u32 m0, s52, {KIMG + 1024 + jj*1024}')
            a.e(f'buffer_load_dwordx4 v{b}, {sq(R_A)}, s53 offen lds', tag='pre')
            a.e(f's_add_u32 m0, s52, {VIMG + jj*1024}')
            a.e(f'buffer_load_dwordx4 v{b}, {sq(R_B)}, s53 offen lds', tag='pre')
        a.e('s_and_b32 s54, s2, 15'); a.e('s_lshr_b32 s55, s2, 4')
        a.e('s_mul_i32 s56, s55, 112'); a.e(f's_lshl_b32 s57, s{S_WAVE}, 4'); a.e('s_add_u32 s56, s56, s57')
        a.e('s_lshl_b32 s56, s56, 10'); a.e('s_lshl_b32 s57, s54, 6'); a.e('s_add_u32 s56, s56, s57')
        a.e(f'v_lshrrev_b32 v{b+1}, 2, v{L}'); a.e(f'v_lshlrev_b32 v{b+1}, 10, v{b+1}')
        a.e(f'v_and_b32 v{b+2}, 3, v{L}'); a.e(f'v_lshl_add_u32 v{b+1}, v{b+2}, 4, v{b+1}')
        a.e(f's_lshl_b32 s57, s{S_WAVE}, 10')
        for jj in range(2):
            a.e(f's_add_u32 s53, s56, {jj*64*1024}')
            a.e(f's_add_u32 m0, s57, {WIMG + jj*4096}')
            a.e(f'buffer_load_dwordx4 v{b+1}, {sq(R_C)}, s53 offen lds', tag='pre')
        a.e(f'v_and_b32 v{b+2}, 15, v{L}'); a.e(f's_lshl_b32 s59, s{S_WAVE}, 4'); a.e('s_lshr_b32 s60, s49, 1'); a.e('s_add_u32 s59, s59, s60')
        a.e(f'v_add_u32 v{b+3}, s59, v{b+2}')
        a.e(f'v_lshlrev_b32 v{b+2}, 3, v{b+3}')
        a.e(f'global_load_dwordx2 {v(b+12,2)}, v{b+2}, {sp(P_SK)}', tag='pre')
    def compute(self, a):
        b = self.b; L = V_LANE
        a.wait_vm('pre')
        stamp(a, 'pre_arrived')
        a.e(f'v_readfirstlane_b32 s{S_TAG}, v{self.VE}')
        a.e('s_barrier')
        a.e(f's_add_u32 s{S_TAG}, s{S_TAG}, {TAGC}')
        T = b + 16
        a.e(f'v_lshrrev_b32 v{T}, 4, v{L}'); a.e(f'v_lshlrev_b32 v{T}, 3, v{T}')
        a.e(f'v_bfe_u32 v{T+1}, v{L}, 2, 2'); a.e(f'v_add_u32 v{T}, v{T}, v{T+1}'); a.e(f'v_lshlrev_b32 v{T}, 7, v{T}')
        a.e(f'v_and_b32 v{T+1}, 3, v{L}'); a.e(f'v_lshl_add_u32 v{T}, v{T+1}, 3, v{T}')
        a.e(f's_lshl_b32 s59, s{S_WAVE}, 5'); a.e(f'v_add_u32 v{T}, s59, v{T}')
        a.e(f'v_add_u32 v{T+1}, {KIMG}, v{T}'); a.e(f'v_add_u32 v{T+2}, {VIMG}, v{T}')
        KR, VR, WR, SK = b + 20, b + 32, b + 40, b + 48
        a.e(f'v_lshrrev_b32 v{T+3}, 5, v{L}'); a.e(f'v_lshlrev_b32 v{T+3}, 2, v{T+3}')
        a.e(f'v_bfe_u32 v{T}, v{L}, 2, 2'); a.e(f'v_add_u32 v{T+3}, v{T+3}, v{T}'); a.e(f'v_lshlrev_b32 v{T+3}, 6, v{T+3}')
        a.e(f'v_bfe_u32 v{T}, v{L}, 4, 1'); a.e(f'v_lshl_add_u32 v{T+3}, v{T}, 5, v{T+3}')
        a.e(f'v_and_b32 v{T}, 3, v{L}'); a.e(f'v_lshl_add_u32 v{T+3}, v{T}, 3, v{T+3}')
        a.e(f's_lshl_b32 s59, s{S_WAVE}, 10'); a.e(f's_add_u32 s59, s59, {WIMG}'); a.e(f'v_add_u32 v{T+3}, s59, v{T+3}')
        for jj in range(2):
            a.e(f'ds_read_b64_tr_b16 {v(WR+4*jj,2)}, v{T+3} offset:{jj*4096}', tag='w2r')
            a.e(f'ds_read_b64_tr_b16 {v(WR+4*jj+2,2)}, v{T+3} offset:{jj*4096 + 512}', tag='w2r')
        for run in range(2):
            for j in range(3):
                a.e(f'ds_read_b64_tr_b16 {v(KR+run*6+2*j,2)}, v{T+1} offset:{512 + j*512 + run*4096}', tag='kvr')
            for j in range(2):
                a.e(f'ds_read_b64_tr_b16 {v(VR+run*4+2*j,2)}, v{T+2} offset:{j*512 + run*4096}', tag='kvr')
        X = b + 52
        for rr in range(2):
            for j in range(4):
                unpack_lo(a, X+8*rr+2*j, b+4+4*rr+j); unpack_hi(a, X+8*rr+2*j+1, b+4+4*rr+j)
        SA, SB, t0, t1, QA, QB = X+16, X+17, X+18, X+19, X+20, X+21
        for rr, Sx in ((0, SA), (1, SB)):
            a.e(f'v_add_f32 v{Sx}, v{X+8*rr}, v{X+8*rr+1}')
        for j in range(2, 8):
            for rr, Sx in ((0, SA), (1, SB)): a.e(f'v_add_f32 v{Sx}, v{Sx}, v{X+8*rr+j}')
        allreduce2(a, SA, SB, t0, t1)
        a.e(f'v_mul_f32 v{SA}, 0x3b000000, v{SA}'); a.e(f'v_mul_f32 v{SB}, 0x3b000000, v{SB}')
        for j in range(8):
            for rr, Sx in ((0, SA), (1, SB)): a.e(f'v_sub_f32 v{X+8*rr+j}, v{X+8*rr+j}, v{Sx}')
        for rr, Q in ((0, QA), (1, QB)): a.e(f'v_mul_f32 v{Q}, v{X+8*rr}, v{X+8*rr}')
        for j in range(1, 8):
            for rr, Q in ((0, QA), (1, QB)): a.e(f'v_fmac_f32 v{Q}, v{X+8*rr+j}, v{X+8*rr+j}')
        allreduce2(a, QA, QB, t0, t1)
        a.e(f'v_mul_f32 v{QA}, 0x3b000000, v{QA}'); a.e(f'v_mul_f32 v{QB}, 0x3b000000, v{QB}')
        a.e(f'v_and_b32 v{t0}, 1, v{L}'); a.e(f'v_cmp_eq_u32 vcc, 1, v{t0}')
        a.e(f'v_cndmask_b32 v{SA}, v{SA}, v{SB}, vcc'); a.e(f'v_cndmask_b32 v{QA}, v{QA}, v{QB}, vcc')
        G = X + 24
        a.e(f'v_cvt_pk_bf16_f32 v{G}, v{SA}, v{QA}')
        unpack_hi(a, t1, G)
        a.e(f'v_add_f32 v{t1}, 0x3727c5ac, v{t1}')
        a.e(f'v_cvt_pk_bf16_f32 v{t1}, v{t1}, v{t1}'); unpack_lo(a, t1, t1)
        a.e(f'v_sqrt_f32 v{t1}, v{t1}')
        a.e(f'v_cvt_pk_bf16_f32 v{t1}, v{t1}, v{t1}')
        a.e(f'v_and_b32 v{G}, 0xffff, v{G}'); a.e(f'v_and_b32 v{t1}, 0xffff0000, v{t1}'); a.e(f'v_or_b32 v{G}, v{G}, v{t1}')
        a.e(f'v_mov_b32 v{G+1}, s{S_TAG}')
        a.e(f's_lshl_b32 s59, s58, 3'); a.e(f's_add_u32 s59, s59, {WS_ST}')
        a.e(f'v_lshlrev_b32 v{t0}, 3, v{L}')
        a.e('s_mov_b64 exec, 3')
        a.e(f'buffer_store_dwordx2 {v(G,2)}, v{t0}, {sq(R_WS)}, s59 offen {SC}', tag='prest')
        a.e('s_mov_b64 exec, -1')
        a.e('s_mul_i32 s59, s54, 112'); a.e('s_mul_i32 s60, s55, 7'); a.e('s_add_u32 s59, s59, s60'); a.e(f's_add_u32 s59, s59, s{S_WAVE}')
        a.e('s_lshl_b32 s59, s59, 10'); a.e(f's_add_u32 s59, s59, {WS_W2F}')
        a.e(f'v_lshlrev_b32 v{T}, 4, v{L}')
        a.wait_lg('w2r')
        a.e(f'buffer_store_dwordx4 {v(WR,4)}, v{T}, {sq(R_WS)}, s59 offen {SC}', tag='prest')
        skip = a.newlabel('Lpre_w2')
        a.e(f's_cmp_eq_u32 s{S_WAVE}, 3'); a.e(f's_cbranch_scc1 {skip}')
        a.e('s_add_u32 s59, s59, 4096')
        a.e(f'buffer_store_dwordx4 {v(WR+4,4)}, v{T}, {sq(R_WS)}, s59 offen {SC}', tag='prest')
        a.label(skip)
        unpack_lo(a, SK, b+12); unpack_hi(a, SK+1, b+12); unpack_lo(a, SK+2, b+13); unpack_hi(a, SK+3, b+13)
        U = b + 52
        a.e(f'v_lshlrev_b32 v{T}, 12, v{b+3}')
        a.e(f'v_lshrrev_b32 v{T+1}, 4, v{L}'); a.e(f'v_lshl_add_u32 v{T}, v{T+1}, 4, v{T}')
        a.e('s_lshl_b32 s59, s48, 1'); a.e(f's_add_u32 s59, s59, {WS_KVT}')
        a.wait_lg('kvr')
        for run in range(2):
            for j in range(6):
                if j > 0: unpack_lo(a, U+2*j, KR+run*6+j)
                unpack_hi(a, U+2*j+1, KR+run*6+j)
            for j in range(4):
                unpack_lo(a, U+12+2*j, VR+run*4+j); unpack_hi(a, U+12+2*j+1, VR+run*4+j)
            A0 = U + 24
            for t in range(8): a.e(f'v_mul_f32 v{A0+t}, v{U+1+t}, v{SK+3}')
            for t in range(8): a.e(f'v_fmac_f32 v{A0+t}, v{U+2+t}, v{SK+2}')
            for t in range(8): a.e(f'v_fmac_f32 v{A0+t}, v{U+3+t}, v{SK+1}')
            for t in range(8): a.e(f'v_fmac_f32 v{A0+t}, v{U+4+t}, v{SK}')
            for t in range(8): a.e(f'v_mul_f32 v{A0+t}, v{A0+t}, v{U+12+t}')
            O = U + 32 + run*4
            for j in range(4): a.e(f'v_cvt_pk_bf16_f32 v{O+j}, v{A0+2*j}, v{A0+2*j+1}')
            a.e(f'buffer_store_dwordx4 {v(O,4)}, v{T}, {sq(R_WS)}, s59 offen offset:{run*64} {SC}', tag='prest')
    def publish(self, a):
        a.e('s_and_b32 s59, s2, 7'); a.e('s_lshl_b32 s59, s59, 2'); a.e(f's_add_u32 s59, s59, s{S_WAVE}'); a.e('s_lshl_b32 s59, s59, 5')
        a.e('s_lshr_b32 s60, s2, 3'); a.e('s_add_u32 s59, s59, s60'); a.e('s_lshl_b32 s59, s59, 2'); a.e(f's_add_u32 s59, s59, {FK}')
        a.e('s_lshr_b32 s60, s54, 1'); a.e('s_lshl_b32 s60, s60, 2'); a.e('s_lshr_b32 s53, s55, 2'); a.e('s_add_u32 s60, s60, s53'); a.e('s_lshl_b32 s60, s60, 5')
        a.e('s_and_b32 s53, s54, 1'); a.e('s_lshl_b32 s53, s53, 4'); a.e('s_add_u32 s60, s60, s53')
        a.e('s_and_b32 s53, s55, 3'); a.e('s_lshl_b32 s53, s53, 2'); a.e('s_add_u32 s60, s60, s53'); a.e(f's_add_u32 s60, s60, s{S_WAVE}')
        a.e('s_lshl_b32 s60, s60, 2'); a.e(f's_add_u32 s60, s60, {FW}')
        a.e('s_lshl_b32 s53, s2, 2'); a.e(f's_add_u32 s53, s53, {FAR}')
        publish(a, ['s59', 's60', 's53'], vt=32)

class Gemm1:
    ACC, FR, VW, VX, VA, VB, CS, SEL, B1, ST = 64, 128, 8, 9, 12, 16, 160, 168, 172, 28
    def decode(self, a):
        a.e('s_and_b32 s61, s2, 7'); a.e('s_lshr_b32 s62, s2, 3')
        a.e('s_lshr_b32 s63, s61, 1'); a.e('s_lshl_b32 s63, s63, 9'); a.e('s_and_b32 s64, s62, 3'); a.e('s_lshl_b32 s64, s64, 7'); a.e('s_add_u32 s63, s63, s64')
        a.e('s_and_b32 s64, s61, 1'); a.e('s_mul_i32 s64, s64, 896'); a.e('s_lshr_b32 s65, s62, 2'); a.e('s_lshl_b32 s65, s65, 7'); a.e('s_add_u32 s64, s64, s65')
        a.e(f's_and_b32 s70, s{S_WAVE}, 1'); a.e(f's_lshr_b32 s71, s{S_WAVE}, 1')
    def setup(self, a):
        L = V_LANE
        srd(a, R_A, P_W1, D*F*2); srd(a, R_B, P_Q, S*D*2)
        t = 24
        a.e(f'v_lshrrev_b32 v{t}, 4, v{L}')
        a.e(f'v_mul_u32_u24 v{self.VW}, 3584, v{t}')
        a.e(f'v_lshlrev_b32 v{t+1}, 2, v{t}'); a.e(f'v_and_b32 v{t+2}, 15, v{L}'); a.e(f'v_xor_b32 v{t+1}, v{t+1}, v{t+2}')
        a.e(f'v_lshl_add_u32 v{self.VW}, v{t+1}, 4, v{self.VW}')
        a.e(f'v_lshrrev_b32 v{t+1}, 3, v{L}'); a.e(f'v_lshlrev_b32 v{t+1}, 10, v{t+1}')
        a.e(f'v_and_b32 v{t+2}, 7, v{L}')
        a.e(f'v_xor_b32 v{t+3}, v{t+2}, v{t}'); a.e(f'v_lshl_add_u32 v{self.VX}, v{t+3}, 4, v{t+1}')
        a.e(f'v_xor_b32 v{t+3}, 4, v{t+3}'); a.e(f'v_lshl_add_u32 v{self.VX+1}, v{t+3}, 4, v{t+1}')
        a.e(f's_mul_i32 s66, s{S_WAVE}, {16*3584}'); a.e('s_lshl_b32 s69, s64, 1'); a.e('s_add_u32 s66, s66, s69')
        a.e(f's_lshl_b32 s67, s{S_WAVE}, 5'); a.e('s_add_u32 s67, s67, s63'); a.e('s_lshl_b32 s67, s67, 10')
        a.e(f's_lshl_b32 s68, s{S_WAVE}, 12')
        a.e(f'v_lshrrev_b32 v{t}, 5, v{L}'); a.e(f'v_lshlrev_b32 v{t}, 3, v{t}')
        a.e(f's_lshl_b32 s69, s70, 6'); a.e('s_add_u32 s69, s69, s64'); a.e('s_lshl_b32 s69, s69, 1')
        a.e(f'v_add_u32 v{t}, s69, v{t}')
        for aa in range(2):
            for q in range(4):
                a.e(f'global_load_dwordx2 {v(self.B1+(aa*4+q)*2,2)}, v{t}, {sp(P_B1)} offset:{aa*64+q*16}', tag='b1')
    def dma(self, a, s):
        slot = (s & 3) * 32768
        for jj in range(4):
            a.e(f's_add_u32 s69, s66, {(64*s + 4*jj)*3584}')
            a.e(f's_add_u32 m0, s68, {slot + jj*1024}')
            a.e(f'buffer_load_dwordx4 v{self.VW}, {sq(R_A)}, s69 offen lds', tag=('g1', s))
            a.e(f's_add_u32 s69, s67, {8*jj*1024 + 128*s}')
            a.e(f's_add_u32 m0, s68, {slot + 16384 + jj*1024}')
            a.e(f'buffer_load_dwordx4 v{self.VX + (jj&1)}, {sq(R_B)}, s69 offen lds', tag=('g1', s))
    def setup2(self, a):
        L = V_LANE; t = 24
        a.e(f'v_lshrrev_b32 v{t}, 5, v{L}'); a.e(f'v_lshlrev_b32 v{t}, 3, v{t}'); a.e(f'v_bfe_u32 v{t+1}, v{L}, 2, 2'); a.e(f'v_add_u32 v{t}, v{t}, v{t+1}')
        a.e(f'v_lshlrev_b32 v{t}, 8, v{t}')
        a.e(f'v_and_b32 v{t+2}, 1, v{L}'); a.e(f'v_lshl_add_u32 v{t}, v{t+2}, 3, v{t}')
        a.e(f'v_bfe_u32 v{t+2}, v{L}, 4, 1'); a.e(f'v_lshlrev_b32 v{t+2}, 1, v{t+2}'); a.e(f'v_bfe_u32 v{t+3}, v{L}, 1, 1'); a.e(f'v_add_u32 v{t+2}, v{t+2}, v{t+3}')
        a.e(f's_lshl_b32 s69, s70, 3'); a.e(f'v_add_u32 v{t+2}, s69, v{t+2}')
        a.e(f'v_lshlrev_b32 v{t+1}, 2, v{t+1}')
        for aa in range(2):
            a.e(f'v_add_u32 v{t+3}, {4*aa}, v{t+2}'); a.e(f'v_xor_b32 v{t+3}, v{t+3}, v{t+1}')
            a.e(f'v_lshl_add_u32 v{self.VA+2*aa}, v{t+3}, 4, v{t}')
            a.e(f'v_add_u32 v{self.VA+2*aa+1}, 0x10000, v{self.VA+2*aa}')
        a.e(f'v_and_b32 v{t}, 31, v{L}'); a.e(f's_lshl_b32 s69, s71, 6'); a.e(f'v_add_u32 v{t}, s69, v{t}'); a.e(f'v_lshlrev_b32 v{t}, 7, v{t}')
        a.e(f'v_add_u32 v{t}, 16384, v{t}')
        a.e(f'v_bfe_u32 v{t+1}, v{L}, 1, 3'); a.e(f'v_lshrrev_b32 v{t+2}, 5, v{L}'); a.e(f'v_xor_b32 v{t+1}, v{t+1}, v{t+2}')
        for kk in range(4):
            a.e(f'v_xor_b32 v{t+2}, {2*kk}, v{t+1}'); a.e(f'v_lshl_add_u32 v{self.VB+2*kk}, v{t+2}, 4, v{t}')
            a.e(f'v_add_u32 v{self.VB+2*kk+1}, 0x10000, v{self.VB+2*kk}')
        a.e(f'v_bfe_u32 v{t}, v{L}, 4, 1'); a.e(f'v_and_b32 v{t+1}, 1, v{L}'); a.e(f'v_cmp_eq_u32 vcc, v{t}, v{t+1}')
        a.e(f'v_mov_b32 v{t+2}, 0x3f803f80')
        for j in range(4): a.e(f'v_cndmask_b32 v{self.SEL+j}, 0, v{t+2}, vcc')
    def init_acc(self, a):
        for i in range(64): a.e(f'v_mov_b32 v{self.ACC+i}, 0')
        for i in range(8): a.e(f'v_mov_b32 v{self.CS+i}, 0')
    def read_list(self, s, kk, p):
        slot = (s & 3); hi = slot >> 1; base = (slot & 1) * 32768
        F0 = self.FR + 16*p; tg = ('fr', s, kk)
        return [
          (f'ds_read_b64_tr_b16 {v(F0,2)}, v{self.VA+hi} offset:{base + kk*4096}', tg+('A0',)),
          (f'ds_read_b64_tr_b16 {v(F0+2,2)}, v{self.VA+hi} offset:{base + kk*4096 + 1024}', tg+('A0',)),
          (f'ds_read_b128 {v(F0+8,4)}, v{self.VB+2*kk+hi} offset:{base}', tg+('B0',)),
          (f'ds_read_b128 {v(F0+12,4)}, v{self.VB+2*kk+hi} offset:{base + 4096}', tg+('B1',)),
          (f'ds_read_b64_tr_b16 {v(F0+4,2)}, v{self.VA+2+hi} offset:{base + kk*4096}', tg+('A1',)),
          (f'ds_read_b64_tr_b16 {v(F0+6,2)}, v{self.VA+2+hi} offset:{base + kk*4096 + 1024}', tg+('A1',))]
    def mfmas(self, a, s, kk, p, fill):
        F0 = self.FR + 16*p; tg = ('fr', s, kk)
        order = [(0, 0), (0, 1), (1, 0), (1, 1)]
        need = [[tg+('A0',), tg+('B0',)], [tg+('B1',)], [tg+('A1',)], []]
        fill = list(fill); per = (len(fill) + 3) // 4
        for i, (aa, bb) in enumerate(order):
            if need[i]: a.wait_lg(need[i])
            acc = self.ACC + (aa*2+bb)*16
            a.e(f'v_mfma_f32_32x32x16_bf16 {v(acc,16)}, {v(F0+4*aa,4)}, {v(F0+8+4*bb,4)}, {v(acc,16)}')
            for _ in range(per):
                if fill:
                    t, tag = fill.pop(0); a.e(t, tag=tag)
        skip = a.newlabel('Lcs')
        a.e(f's_cmp_lg_u32 s71, {kk & 1}'); a.e(f's_cbranch_scc1 {skip}')
        for aa in range(2):
            a.e(f'v_mfma_f32_16x16x32_bf16 {v(self.CS+4*aa,4)}, {v(F0+4*aa,4)}, {v(self.SEL,4)}, {v(self.CS+4*aa,4)}')
        a.label(skip)
    def main(self, a, hooks):
        a.comment('gemm1: main loop')
        prev = None; p = 0
        for s in range(8):
            a.wait_vm(('g1', s))
            if s > 0: a.wait_lg([('fr', s-1, 3, x) for x in ('A0', 'A1', 'B0', 'B1')])
            a.e('s_barrier')
            stamp(a, f'g1_s{s}')
            for kk in range(4):
                fill = self.read_list(s, kk, p)
                if prev is None:
                    for t, tag in fill: a.e(t, tag=tag)
                else:
                    self.mfmas(a, prev[0], prev[1], prev[2], fill)
                if kk == 0:
                    if s >= 1 and s + 3 < 8: self.dma(a, s + 3)
                    if s in hooks: hooks[s](a)
                prev = (s, kk, p); p ^= 1
        self.mfmas(a, prev[0], prev[1], prev[2], [])
    def stats_addr(self, a, vd):
        L = V_LANE
        a.e(f'v_and_b32 v{vd}, 31, v{L}'); a.e(f's_lshl_b32 s69, s71, 6'); a.e('s_add_u32 s69, s69, s63'); a.e(f'v_add_u32 v{vd}, s69, v{vd}')
        a.e(f'v_lshlrev_b32 v{vd}, 3, v{vd}'); a.e(f'v_add_u32 v{vd}, {WS_ST}, v{vd}')
        a.e(f'v_add_u32 v{vd+1}, 256, v{vd}')
    def epilogue(self, a):
        L = V_LANE; ST = self.ST
        CSB = 0; t = 24
        a.e('s_barrier')
        a.e(f'v_and_b32 v{t}, 1, v{L}'); a.e(f'v_lshlrev_b32 v{t}, 6, v{t}'); a.e(f'v_lshrrev_b32 v{t+1}, 4, v{L}'); a.e(f'v_lshl_add_u32 v{t}, v{t+1}, 4, v{t}')
        a.e(f's_lshl_b32 s69, s{S_WAVE}, 8'); a.e(f'v_add_u32 v{t}, s69, v{t}')
        for aa in range(2):
            a.e(f'ds_write_b128 v{t}, {v(self.CS+4*aa,4)} offset:{CSB + aa*128}', tag='csw')
        for bb in range(2):
            g = ST + 2*bb
            unpack_hi(a, g+1, g); unpack_lo(a, g, g)
            a.e(f'v_rcp_f32 v{g+1}, v{g+1}')
            a.e(f'v_xor_b32 v{g}, 0x80000000, v{g}')
        TMP = 192
        a.wait_vm('b1')
        for i in range(16):
            unpack_lo(a, TMP+2*i, self.B1+i); unpack_hi(a, TMP+2*i+1, self.B1+i)
        a.wait_lg('csw')
        a.e('s_barrier')
        CSV = self.FR; T2 = 32
        a.e(f'v_lshrrev_b32 v{t}, 5, v{L}'); a.e(f'v_lshlrev_b32 v{t}, 4, v{t}'); a.e('s_lshl_b32 s69, s70, 8'); a.e(f'v_add_u32 v{t}, s69, v{t}')
        for aa in range(2):
            for q in range(4):
                a.e(f'ds_read_b128 {v(CSV+(aa*4+q)*4,4)}, v{t} offset:{CSB + aa*128 + q*32}', tag=('csr', aa))
                a.e(f'ds_read_b128 {v(T2+(aa*4+q)*4,4)}, v{t} offset:{CSB + 512 + aa*128 + q*32}', tag=('csr', aa))
        a.e('s_lshl_b32 s69, s71, 6'); a.e('s_add_u32 s69, s69, s63'); a.e('s_lshr_b32 s69, s69, 5'); a.e('s_mul_i32 s69, s69, 112')
        a.e('s_lshl_b32 s72, s70, 6'); a.e('s_add_u32 s72, s72, s64'); a.e('s_lshr_b32 s72, s72, 4'); a.e('s_add_u32 s69, s69, s72')
        a.e('s_lshl_b32 s69, s69, 10'); a.e(f's_add_u32 s69, s69, {WS_H}')
        a.e(f'v_lshlrev_b32 v{t}, 4, v{L}')
        for aa in range(2):
            a.wait_lg(('csr', aa))
            for i in range(8): a.e(f'v_pk_add_f32 {v(CSV+aa*16+2*i,2)}, {v(CSV+aa*16+2*i,2)}, {v(T2+aa*16+2*i,2)}')
        OUT = 224; n = 0
        for aa in range(2):
            for bb in range(2):
                acc = self.ACC + (aa*2+bb)*16
                for half in range(2):
                    O = OUT + 4*(n % 4); n += 1
                    R = [half*8 + 2*j for j in range(4)]
                    for r in R: a.e(f'v_pk_fma_f32 {v(acc+r,2)}, {v(CSV+aa*16+r,2)}, {v(ST+2*bb,2)}, {v(acc+r,2)} op_sel_hi:[1,0,1]')
                    for r in R: a.e(f'v_pk_fma_f32 {v(acc+r,2)}, {v(acc+r,2)}, {v(ST+2*bb,2)}, {v(TMP+aa*16+r,2)} op_sel:[0,1,0] op_sel_hi:[1,1,1]')
                    for r in R:
                        a.e(f'v_max_f32 v{acc+r}, 0, v{acc+r}'); a.e(f'v_max_f32 v{acc+r+1}, 0, v{acc+r+1}')
                    for r in R: a.e(f'v_pk_mul_f32 {v(acc+r,2)}, {v(acc+r,2)}, {v(acc+r,2)}')
                    for j, r in enumerate(R): a.e(f'v_cvt_pk_bf16_f32 v{O+j}, v{acc+r}, v{acc+r+1}')
                    off = bb*112*1024 + (aa*2 + half)*1024
                    a.e(f's_add_u32 s72, s69, {off}')
                    a.e(f'buffer_store_dwordx4 {v(O,4)}, v{t}, {sq(R_WS)}, s72 offen {SC}', tag='hst')
    def publish(self, a, vt):
        a.e('s_lshr_b32 s69, s63, 7'); a.e('s_lshl_b32 s69, s69, 6'); a.e('s_lshr_b32 s72, s64, 7'); a.e('s_lshl_b32 s72, s72, 2'); a.e('s_add_u32 s69, s69, s72')
        a.e(f's_add_u32 s69, s69, s{S_WAVE}'); a.e('s_lshl_b32 s69, s69, 2'); a.e(f's_add_u32 s69, s69, {FH}')
        publish(a, ['s69'], vt=vt)

HC0 = 0; HC_CH = 16640; KV0 = 2*HC_CH; KV_CH = 4608; RED0 = KV0 + 2*KV_CH
A_HRAW, A_KV = 224, 236
class Conv:
    ACC, FA = 8, 64
    def issue_filter(self, a, t=32):
        a.comment('conv: filter raw loads -> agprs')
        a.e('s_lshl_b32 s73, s2, 13')
        a.e(f'v_lshl_add_u32 v{t}, v0, 4, s73')
        a.e(f'v_subrev_u32 v{t+1}, 8, v{t}'); a.e(f'v_max_i32 v{t+1}, 0, v{t+1}')
        a.e(f'global_load_dwordx4 {ac(A_HRAW,4)}, v{t}, {sp(P_SSMK)}', tag='hraw')
        a.e(f'global_load_dwordx2 {ac(A_HRAW+4,2)}, v{t+1}, {sp(P_SSMK)}', tag='hraw')
        a.e(f'v_add_u32 v{t}, 4096, v{t}'); a.e(f'v_add_u32 v{t+1}, 4096, v{t+1}')
        a.e(f'global_load_dwordx4 {ac(A_HRAW+8,4)}, v{t}, {sp(P_SSMK)}', tag='hraw')
        a.e(f'global_load_dwordx2 {ac(A_HRAW+6,2)}, v{t+1}, {sp(P_SSMK)}', tag='hraw')
        a.e('s_lshl_b32 s74, s2, 2')
        a.e(f's_load_dword s75, {sp(P_SSMD)}, s74')
    def flag_addr(self, a, vd):
        a.e('s_lshr_b32 s73, s2, 5'); a.e('s_lshl_b32 s73, s73, 2'); a.e('s_bfe_u32 s74, s2, 0x20003'); a.e('s_add_u32 s73, s73, s74')
        a.e('s_lshl_b32 s73, s73, 7'); a.e(f's_add_u32 s73, s73, {FK}')
        a.e(f'v_and_b32 v{vd}, 31, v{V_LANE}'); a.e(f'v_lshl_add_u32 v{vd}, v{vd}, 2, s73')
    def load_kv(self, a, t):
        a.e('s_lshl_b32 s73, s2, 13'); a.e(f's_add_u32 s73, s73, {WS_KVT}')
        a.e(f'v_lshlrev_b32 v{t}, 4, v0')
        a.e(f'buffer_load_dwordx4 {ac(A_KV,4)}, v{t}, {sq(R_WS)}, s73 offen {SC}', tag='kvl')
        a.e('s_add_u32 s73, s73, 4096')
        a.e(f'buffer_load_dwordx4 {ac(A_KV+4,4)}, v{t}, {sq(R_WS)}, s73 offen {SC}', tag='kvl')
    def prep(self, a):
        a.comment('conv: prep')
        t = 8
        a.wait_vm('hraw')
        H = 48
        for i in range(12): a.e(f'v_accvgpr_read_b32 v{H+i}, a{A_HRAW+i}')
        a.e(f'v_lshlrev_b32 v{t}, 4, v0')
        a.e(f'v_cmp_eq_u32 vcc, 0, v0')
        a.e(f'v_add_u32 v{t+1}, 32, v{t}')
        W = 20
        for ch in range(2):
            d0 = H if ch == 0 else H + 8; dm = H + 4 if ch == 0 else H + 6
            a.e(f'v_cndmask_b32_e64 v{dm}, v{dm}, 0, vcc'); a.e(f'v_cndmask_b32_e64 v{dm+1}, v{dm+1}, 0, vcc')
            base = HC0 + ch*HC_CH
            a.e(f'ds_write_b128 v{t+1}, {v(d0,4)} offset:{base}', tag='hw')
            src = [dm+1, d0, d0+1, d0+2, d0+3]
            for j in range(4): a.e(f'v_alignbit_b32 v{W+j}, v{src[j+1]}, v{src[j]}, 16')
            a.e(f'ds_write_b128 v{t+1}, {v(W,4)} offset:{base + 4160}', tag='hw')
            for j in range(4): a.e(f'v_mov_b32 v{W+4+j}, v{src[j]}')
            a.e(f'ds_write_b128 v{t+1}, {v(W+4,4)} offset:{base + 2*4160}', tag='hw')
            a.e(f'v_alignbit_b32 v{W+8}, v{dm+1}, v{dm}, 16')
            for j in range(3): a.e(f'v_mov_b32 v{W+9+j}, v{W+j}')
            a.e(f'ds_write_b128 v{t+1}, {v(W+8,4)} offset:{base + 3*4160}', tag='hw')
            W = 32
        Z = 44
        for j in range(4): a.e(f'v_mov_b32 v{Z+j}, 0')
        a.e(f'v_lshrrev_b32 v{t+2}, 1, v0'); a.e(f'v_and_b32 v{t+3}, 3, v{t+2}'); a.e(f'v_mul_u32_u24 v{t+3}, 4160, v{t+3}')
        a.e(f'v_bfe_u32 v{t+2}, v0, 3, 1'); a.e(f'v_mul_u32_u24 v{t+2}, {HC_CH}, v{t+2}'); a.e(f'v_add_u32 v{t+3}, v{t+3}, v{t+2}')
        a.e(f'v_and_b32 v{t+2}, 1, v0'); a.e(f'v_lshl_add_u32 v{t+3}, v{t+2}, 4, v{t+3}')
        a.e(f'v_subrev_u32 v{t+2}, 16, v0'); a.e(f'v_and_b32 v{t+4}, 31, v{t+2}'); a.e(f'v_lshlrev_b32 v{t+4}, 4, v{t+4}')
        a.e(f'v_bfe_u32 v{t+2}, v{t+2}, 5, 1'); a.e(f'v_mul_u32_u24 v{t+2}, {KV_CH}, v{t+2}'); a.e(f'v_add_u32 v{t+4}, v{t+4}, v{t+2}'); a.e(f'v_add_u32 v{t+4}, {KV0}, v{t+4}')
        a.e(f'v_cmp_gt_u32 vcc, 16, v0')
        a.e(f'v_cndmask_b32 v{t+3}, v{t+4}, v{t+3}, vcc')
        a.e(f'v_cmp_gt_u32 vcc, 80, v0')
        a.e('s_and_saveexec_b64 s[76:77], vcc')
        lab = a.newlabel('Lcz')
        a.e(f's_cbranch_execz {lab}')
        a.e(f'ds_write_b128 v{t+3}, {v(Z,4)}', tag='hw')
        a.label(lab)
        a.e('s_mov_b64 exec, s[76:77]')
        a.wait_vm('kvl')
        a.e(f'ds_write_b128 v{t}, {ac(A_KV,4)} offset:{KV0 + 512}', tag='hw')
        a.e(f'ds_write_b128 v{t}, {ac(A_KV+4,4)} offset:{KV0 + KV_CH + 512}', tag='hw')
    def setup_main(self, a):
        L = V_LANE; VA_, VB_ = 2, 3; t = 4
        a.e(f's_lshr_b32 s76, s{S_WAVE}, 1'); a.e(f's_and_b32 s77, s{S_WAVE}, 1')
        a.e(f'v_bfe_u32 v{t}, v{L}, 2, 2'); a.e(f'v_mul_u32_u24 v{VA_}, 4160, v{t}')
        a.e(f'v_and_b32 v{t}, 3, v{L}'); a.e(f'v_lshl_add_u32 v{VA_}, v{t}, 3, v{VA_}')
        a.e(f'v_lshrrev_b32 v{t}, 4, v{L}'); a.e(f'v_lshlrev_b32 v{t}, 4, v{t}'); a.e(f'v_sub_u32 v{VA_}, v{VA_}, v{t}')
        a.e(f's_mul_i32 s78, s76, {HC_CH}'); a.e(f's_lshl_b32 s79, s77, 8'); a.e('s_add_u32 s78, s78, s79'); a.e(f's_add_u32 s78, s78, {HC0 + 56}')
        a.e(f'v_add_u32 v{VA_}, s78, v{VA_}')
        a.e(f'v_and_b32 v{t}, 15, v{L}'); a.e(f'v_lshlrev_b32 v{VB_}, 5, v{t}')
        a.e(f'v_lshrrev_b32 v{t}, 4, v{L}'); a.e(f'v_lshl_add_u32 v{VB_}, v{t}, 4, v{VB_}')
        a.e(f's_mul_i32 s78, s76, {KV_CH}'); a.e(f's_lshl_b32 s79, s77, 8'); a.e('s_sub_u32 s78, s78, s79'); a.e(f's_add_u32 s78, s78, {KV0 + 32 + 256}')
        a.e(f'v_add_u32 v{VB_}, s78, v{VB_}')
    def main(self, a, hooks):
        VA_, VB_ = 2, 3
        for i in range(32): a.e(f'v_mov_b32 v{self.ACC+i}, 0')
        def rd(it, p):
            FA = self.FA + 64*p; res = []
            for j in range(8):
                res.append((f'ds_read_b64_tr_b16 {v(FA+4*j,2)}, v{VA_} offset:{512*j + 64*it + 8}', ('cA', it, j)))
                res.append((f'ds_read_b64_tr_b16 {v(FA+4*j+2,2)}, v{VA_} offset:{512*j + 64*it}', ('cA', it, j)))
                res.append((f'ds_read_b128 {v(FA+32+4*j,4)}, v{VB_} offset:{512*j + (3-it)*64}', ('cB', it, j)))
            return res
        for tx, tg in rd(0, 0): a.e(tx, tag=tg)
        for it in range(4):
            p = it & 1; FA = self.FA + 64*p
            fill = rd(it+1, p ^ 1) if it < 3 else []
            pairs = [(j1, d) for j1 in range(8) for d in range(8) if j1 + d <= 7]
            pairs.sort(key=lambda x: (max(x), x))
            seen = set(); nf = len(fill); k = 0
            for idx, (j1, d) in enumerate(pairs):
                need = []
                if ('cA', it, j1) not in seen: need.append(('cA', it, j1)); seen.add(('cA', it, j1))
                if ('cB', it, d) not in seen: need.append(('cB', it, d)); seen.add(('cB', it, d))
                if need: a.wait_lg(need)
                q = j1 + d
                a.e(f'v_mfma_f32_16x16x32_bf16 {v(self.ACC+4*q,4)}, {v(FA+4*j1,4)}, {v(FA+32+4*d,4)}, {v(self.ACC+4*q,4)}')
                want = ((idx + 1) * nf) // 30
                while k < min(want, nf):
                    tx, tg = fill[k]; a.e(tx, tag=tg); k += 1
            while k < nf:
                tx, tg = fill[k]; a.e(tx, tag=tg); k += 1
            if it in hooks: hooks[it](a)
    def epilogue(self, a):
        L = V_LANE; t = 4
        a.e(f'v_lshlrev_b32 v{t}, 4, v{L}')
        a.e(f's_lshl_b32 s78, s{S_WAVE}, 12'); a.e(f's_add_u32 s78, s78, {RED0}'); a.e(f'v_add_u32 v{t+1}, s78, v{t}')
        a.e(f's_xor_b32 s79, s{S_WAVE}, 1'); a.e('s_lshl_b32 s79, s79, 12'); a.e(f's_add_u32 s79, s79, {RED0}'); a.e(f'v_add_u32 v{t+2}, s79, v{t}')
        lab1 = a.newlabel('Lce'); lab2 = a.newlabel('Lce'); K = 40
        a.e('s_cmp_eq_u32 s77, 0'); a.e(f's_cbranch_scc0 {lab1}')
        for j in range(4): a.e(f'ds_write_b128 v{t+1}, {v(self.ACC+16+4*j,4)} offset:{j*1024}')
        for j in range(16): a.e(f'v_mov_b32 v{K+j}, v{self.ACC+j}')
        a.e(f's_branch {lab2}')
        a.label(lab1)
        a.e('s_nop 7')
        for j in range(4): a.e(f'ds_write_b128 v{t+1}, {v(self.ACC+4*j,4)} offset:{j*1024}')
        for j in range(16): a.e(f'v_mov_b32 v{K+j}, v{self.ACC+16+j}')
        a.label(lab2)
        a.e('s_waitcnt lgkmcnt(0)')
        a.e('s_barrier')
        P = 64
        for j in range(4): a.e(f'ds_read_b128 {v(P+4*j,4)}, v{t+2} offset:{j*1024}', tag='red')
        a.e(f'v_and_b32 v{t}, 15, v{L}'); a.e(f'v_lshlrev_b32 v{t}, 5, v{t}'); a.e(f'v_lshrrev_b32 v{t+1}, 4, v{L}'); a.e(f'v_lshl_add_u32 v{t}, v{t+1}, 3, v{t}')
        a.e(f's_mul_i32 s78, s76, {KV_CH}'); a.e('s_lshl_b32 s79, s77, 11'); a.e('s_add_u32 s78, s78, s79'); a.e(f's_add_u32 s78, s78, {KV0+512}')
        a.e(f'v_add_u32 v{t+1}, s78, v{t}')
        KVv = 80
        for j in range(4): a.e(f'ds_read_b64 {v(KVv+2*j,2)}, v{t+1} offset:{j*512}', tag='kvv')
        a.e('s_lshl_b32 s78, s75, 16'); a.e('s_and_b32 s79, s75, 0xffff0000'); a.e('s_cmp_eq_u32 s76, 0'); a.e('s_cselect_b32 s78, s78, s79')
        a.e('s_lshl_b32 s79, s2, 1'); a.e('s_add_u32 s79, s79, s76'); a.e('s_lshl_b32 s79, s79, 12'); a.e('s_lshl_b32 s80, s77, 11'); a.e('s_add_u32 s79, s79, s80')
        a.e(f's_add_u32 s79, s79, {WS_Y2T}')
        a.wait_lg('red')
        for j in range(8): a.e(f'v_pk_add_f32 {v(K+2*j,2)}, {v(K+2*j,2)}, {v(P+2*j,2)}')
        a.wait_lg('kvv')
        U = 96
        for j in range(4):
            for e in range(2):
                unpack_lo(a, U+2*e, KVv+2*j+e); unpack_hi(a, U+2*e+1, KVv+2*j+e)
            for e in range(4): a.e(f'v_fmac_f32 v{K+4*j+e}, s78, v{U+e}')
            O = 100 + 2*j
            a.e(f'v_cvt_pk_bf16_f32 v{O}, v{K+4*j}, v{K+4*j+1}'); a.e(f'v_cvt_pk_bf16_f32 v{O+1}, v{K+4*j+2}, v{K+4*j+3}')
            a.e(f'buffer_store_dwordx2 {v(O,2)}, v{t}, {sq(R_WS)}, s79 offen offset:{j*512} {SC}', tag='yst')
    def publish(self, a, vt):
        a.e('s_lshr_b32 s78, s2, 5'); a.e('s_lshl_b32 s78, s78, 1'); a.e('s_add_u32 s78, s78, s77'); a.e('s_lshl_b32 s78, s78, 6')
        a.e('s_and_b32 s79, s2, 31'); a.e('s_lshl_b32 s79, s79, 1'); a.e('s_add_u32 s78, s78, s79'); a.e('s_add_u32 s78, s78, s76')
        a.e('s_lshl_b32 s78, s78, 2'); a.e(f's_add_u32 s78, s78, {FY}')
        publish(a, ['s78'], vt=vt)

Y2L = 0; RED2 = 8192
class Gemm2:
    ACC, RB, NR, E = 8, 72, 14, 184
    def decode(self, a):
        a.e('s_and_b32 s81, s2, 7'); a.e('s_lshl_b32 s81, s81, 8'); a.e('s_lshr_b32 s82, s2, 3'); a.e('s_and_b32 s83, s82, 3'); a.e('s_lshl_b32 s83, s83, 6'); a.e('s_add_u32 s81, s81, s83')
        a.e('s_lshr_b32 s82, s82, 2'); a.e('s_lshl_b32 s82, s82, 6')
    def wflag_addr(self, a, vd):
        a.e('s_lshr_b32 s83, s82, 6'); a.e('s_lshl_b32 s83, s83, 2'); a.e(f's_add_u32 s83, s83, s{S_WAVE}'); a.e('s_lshl_b32 s83, s83, 7'); a.e(f's_add_u32 s83, s83, {FW}')
        a.e(f'v_and_b32 v{vd}, 31, v{V_LANE}'); a.e(f'v_lshl_add_u32 v{vd}, v{vd}, 2, s83')
    def load_w(self, a, vo, lo, hi):
        a.e(f'v_lshlrev_b32 v{vo}, 4, v{V_LANE}')
        a.e('s_lshr_b32 s83, s82, 5'); a.e('s_mul_i32 s83, s83, 112'); a.e(f's_mul_i32 s84, s{S_WAVE}, 28'); a.e('s_add_u32 s83, s83, s84')
        a.e('s_lshl_b32 s83, s83, 10'); a.e(f's_add_u32 s83, s83, {WS_W2F}')
        for k4 in range(lo, hi, 4):
            for aa in range(2):
                a.e(f's_add_u32 s84, s83, {(aa*112 + k4)*1024}')
                for kl in range(k4, min(k4+4, hi)):
                    a.e(f'buffer_load_dwordx4 {ac((kl*2+aa)*4,4)}, v{vo}, {sq(R_WS)}, s84 offen offset:{(kl-k4)*1024} {SC}', tag=('w2', kl))
    def hflag_addr(self, a, vd):
        a.e('s_lshr_b32 s83, s81, 7'); a.e('s_lshl_b32 s83, s83, 8'); a.e(f's_add_u32 s83, s83, {FH}')
        a.e(f'v_min_u32 v{vd}, 55, v{V_LANE}'); a.e(f'v_lshl_add_u32 v{vd}, v{vd}, 2, s83')
    def yflag_addr(self, a, vd):
        a.e('s_lshr_b32 s83, s82, 6'); a.e('s_lshl_b32 s83, s83, 1'); a.e('s_lshr_b32 s84, s81, 10'); a.e('s_add_u32 s83, s83, s84'); a.e('s_lshl_b32 s83, s83, 8'); a.e(f's_add_u32 s83, s83, {FY}')
        a.e(f'v_lshl_add_u32 v{vd}, v{V_LANE}, 2, s83')
    def hload(self, a, kl):
        r = self.RB + (kl % self.NR)*8
        a.e(f's_add_u32 s86, s85, {kl*1024}')
        a.e(f'buffer_load_dwordx4 {v(r,4)}, v2, {sq(R_WS)}, s86 offen {SC}', tag=('h', kl))
        a.e(f's_add_u32 s86, s85, {(112+kl)*1024}')
        a.e(f'buffer_load_dwordx4 {v(r+4,4)}, v2, {sq(R_WS)}, s86 offen {SC}', tag=('h', kl))
    def start(self, a):
        a.e('s_lshr_b32 s85, s81, 5'); a.e('s_mul_i32 s85, s85, 112'); a.e(f's_mul_i32 s84, s{S_WAVE}, 28'); a.e('s_add_u32 s85, s85, s84')
        a.e('s_lshl_b32 s85, s85, 10'); a.e(f's_add_u32 s85, s85, {WS_H}')
        a.e(f'v_lshlrev_b32 v2, 4, v{V_LANE}')
        for kl in range(self.NR): self.hload(a, kl)
        for i in range(64): a.e(f'v_mov_b32 v{self.ACC+i}, 0')
    def main(self, a, hooks):
        a.comment('gemm2: main')
        for kl in range(28):
            a.wait_vm([('h', kl), ('w2', kl)])
            r = self.RB + (kl % self.NR)*8
            for aa in range(2):
                for bb in range(2):
                    acc = self.ACC + (aa*2+bb)*16
                    a.e(f'v_mfma_f32_32x32x16_bf16 {v(acc,16)}, {ac((kl*2+aa)*4,4)}, {v(r+4*bb,4)}, {v(acc,16)}')
            if kl + self.NR < 28: self.hload(a, kl + self.NR)
            if kl in hooks: hooks[kl](a)
    def issue_epi_loads(self, a):
        L = V_LANE; E = self.E
        a.e(f's_and_b32 s87, s{S_WAVE}, 1'); a.e(f's_lshr_b32 s88, s{S_WAVE}, 1')
        a.e(f'v_and_b32 v3, 31, v{L}'); a.e('s_lshl_b32 s89, s88, 5'); a.e('s_add_u32 s89, s89, s81'); a.e('v_add_u32 v3, s89, v3')
        a.e(f'v_lshrrev_b32 v4, 5, v{L}'); a.e('v_lshlrev_b32 v4, 2, v4'); a.e('s_lshl_b32 s89, s87, 5'); a.e('s_add_u32 s89, s89, s82'); a.e('v_add_u32 v4, s89, v4')
        a.e('v_lshlrev_b32 v5, 10, v3'); a.e('v_lshl_add_u32 v5, v4, 1, v5')
        for q in range(4): a.e(f'global_load_dwordx2 {v(E+2*q,2)}, v5, {sp(P_Q)} offset:{q*16}', tag='ex')
        a.e('v_lshlrev_b32 v6, 1, v4')
        for q in range(4): a.e(f'global_load_dwordx2 {v(E+8+2*q,2)}, v6, {sp(P_B2)} offset:{q*16}', tag='eb')
        a.e(f'v_lshlrev_b32 v6, 3, v3'); a.e(f'v_add_u32 v6, {WS_ST}, v6')
        a.e(f'buffer_load_dwordx2 {v(E+16,2)}, v6, {sq(R_WS)}, 0 offen {SC}', tag='es')
    def load_y2(self, a):
        E = self.E
        a.e('v_lshrrev_b32 v6, 3, v0'); a.e('v_add_u32 v6, s82, v6'); a.e('v_lshlrev_b32 v6, 12, v6')
        a.e('v_and_b32 v7, 7, v0'); a.e('v_lshl_add_u32 v6, v7, 4, v6')
        a.e('s_lshl_b32 s89, s81, 1'); a.e(f's_add_u32 s89, s89, {WS_Y2T}')
        a.e(f'buffer_load_dwordx4 {v(E+20,4)}, v6, {sq(R_WS)}, s89 offen {SC}', tag='ey')
        a.e(f's_add_u32 s89, s89, {32*4096}')
        a.e(f'buffer_load_dwordx4 {v(E+24,4)}, v6, {sq(R_WS)}, s89 offen {SC}', tag='ey')
    def epilogue(self, a):
        L = V_LANE; E = self.E
        a.e('s_barrier')
        a.e(f'v_lshlrev_b32 v6, 4, v{L}'); a.e(f's_lshl_b32 s89, s{S_WAVE}, 12'); a.e(f'v_add_u32 v7, s89, v6')
        for j in range(4):
            aa, bb = j & 1, j >> 1
            acc = self.ACC + (aa*2+bb)*16
            for qd in range(4):
                a.e(f'ds_write_b128 v7, {v(acc+4*qd,4)} offset:{RED2 + j*16384 + qd*1024}')
        a.wait_vm('ey')
        a.e('v_lshlrev_b32 v7, 4, v0')
        a.e(f'ds_write_b128 v7, {v(E+20,4)} offset:{Y2L}'); a.e(f'ds_write_b128 v7, {v(E+24,4)} offset:{Y2L+4096}')
        a.e('s_waitcnt lgkmcnt(0)')
        a.e('s_barrier')
        R = 72
        a.e(f's_lshl_b32 s89, s{S_WAVE}, 14'); a.e(f'v_add_u32 v7, s89, v6')
        for src in range(4):
            for qd in range(4):
                a.e(f'ds_read_b128 {v(R+src*16+4*qd,4)}, v7 offset:{RED2 + src*4096 + qd*1024}', tag=('rr', src))
        Y = 136
        a.e(f'v_lshrrev_b32 v6, 5, v{L}'); a.e('v_lshlrev_b32 v6, 2, v6'); a.e(f'v_bfe_u32 v7, v{L}, 2, 2'); a.e('v_add_u32 v6, v6, v7')
        a.e('s_lshl_b32 s89, s87, 5'); a.e('v_add_u32 v6, s89, v6'); a.e('v_lshlrev_b32 v6, 7, v6')
        a.e(f'v_bfe_u32 v7, v{L}, 4, 1'); a.e('v_lshl_add_u32 v6, v7, 5, v6'); a.e(f'v_and_b32 v7, 3, v{L}'); a.e('v_lshl_add_u32 v6, v7, 3, v6')
        a.e('s_lshl_b32 s89, s88, 6'); a.e('v_add_u32 v6, s89, v6')
        for q in range(4): a.e(f'ds_read_b64_tr_b16 {v(Y+2*q,2)}, v6 offset:{Y2L + q*1024}', tag='yt')
        a.wait_vm(['ex', 'eb', 'es'])
        unpack_hi(a, E+17, E+16); unpack_lo(a, E+16, E+16)
        a.e(f'v_rcp_f32 v{E+17}, v{E+17}')
        a.wait_lg(('rr', 1))
        for i in range(8): a.e(f'v_pk_add_f32 {v(R+2*i,2)}, {v(R+2*i,2)}, {v(R+16+2*i,2)}')
        a.e(f'v_mul_f32 v{E+18}, v{E+16}, v{E+17}'); a.e(f'v_xor_b32 v{E+18}, 0x80000000, v{E+18}')
        a.wait_lg(('rr', 3))
        for i in range(8): a.e(f'v_pk_add_f32 {v(R+32+2*i,2)}, {v(R+32+2*i,2)}, {v(R+48+2*i,2)}')
        for i in range(8): a.e(f'v_pk_add_f32 {v(R+2*i,2)}, {v(R+2*i,2)}, {v(R+32+2*i,2)}')
        a.wait_lg('yt')
        U = 144
        for q in range(4):
            for e in range(2):
                unpack_lo(a, U+2*e, E+2*q+e); unpack_hi(a, U+2*e+1, E+2*q+e)
                unpack_lo(a, U+4+2*e, E+8+2*q+e); unpack_hi(a, U+4+2*e+1, E+8+2*q+e)
                unpack_lo(a, U+8+2*e, Y+2*q+e); unpack_hi(a, U+8+2*e+1, Y+2*q+e)
            for e in range(4): a.e(f'v_add_f32 v{R+4*q+e}, v{R+4*q+e}, v{U+4+e}')
            for e in range(4): a.e(f'v_mul_f32 v{U+12+e}, 0xbfb8aa3b, v{R+4*q+e}')
            for e in range(4): a.e(f'v_exp_f32 v{U+12+e}, v{U+12+e}')
            for e in range(4): a.e(f'v_fma_f32 v{U+4+e}, v{U+e}, v{E+17}, v{E+18}')
            for e in range(4): a.e(f'v_add_f32 v{U+12+e}, 1.0, v{U+12+e}')
            for e in range(4): a.e(f'v_rcp_f32 v{U+12+e}, v{U+12+e}')
            for e in range(4): a.e(f'v_mul_f32 v{U+4+e}, v{U+4+e}, v{U+8+e}')
            for e in range(4): a.e(f'v_mul_f32 v{U+12+e}, v{U+12+e}, v{R+4*q+e}')
            for e in range(4): a.e(f'v_fma_f32 v{U+e}, v{U+4+e}, v{U+12+e}, v{U+e}')
            O = 160 + 2*q
            a.e(f'v_cvt_pk_bf16_f32 v{O}, v{U}, v{U+1}'); a.e(f'v_cvt_pk_bf16_f32 v{O+1}, v{U+2}, v{U+3}')
            a.e(f'global_store_dwordx2 v5, {v(O,2)}, {sp(P_OUT)} offset:{q*16}', tag='ost')

def fused_body(a, kname):
    end = 'Lend'
    a.e('s_cmp_ge_u32 s2, 256'); a.e(f's_cbranch_scc1 {end}')
    a.e('s_load_dwordx16 s[4:19], s[0:1], 0'); a.e('s_load_dwordx8 s[20:27], s[0:1], 64'); a.e('s_load_dwordx4 s[28:31], s[0:1], 96')
    a.e(f'v_and_b32 v{V_LANE}, 63, v0'); a.e('v_lshrrev_b32 v2, 6, v0'); a.e('s_nop 0'); a.e(f'v_readfirstlane_b32 s{S_WAVE}, v2')
    if Opt.stamps: a.e('v_mov_b32 v255, 0')
    stamp(a, 'start'); stamp(a, 'cyc0', True)
    a.e('s_waitcnt lgkmcnt(0)')
    stamp(a, 'kernarg')
    srd(a, R_WS, P_WS, WS_SIZE)
    pre, g1, cv, g2 = Pre(), Gemm1(), Conv(), Gemm2()
    pre.issue(a)
    stamp(a, 'pre_issued')
    g1.decode(a); g2.decode(a)
    cv.issue_filter(a)
    if Opt.codepf:
        a.e('s_getpc_b64 s[90:91]')
        a.label('Lpcbase')
        a.e('v_lshlrev_b32 v32, 6, v0')
        a.e('global_load_dword v33, v32, s[90:91]', tag='cpf')
        a.e('v_add_u32 v32, 0x4000, v32')
        a.e('v_min_u32 v32, Lend-Lpcbase, v32')
        a.e('global_load_dword v34, v32, s[90:91]', tag='cpf')
    idle = 'Lidle'; join = 'Ljoin'
    a.e('s_cmp_ge_u32 s62, 28'); a.e(f's_cbranch_scc1 {idle}')
    saved0 = (list(a.vm), list(a.lg))
    g1.setup(a)
    for s in range(4): g1.dma(a, s)
    g1.setup2(a)
    stamp(a, 'issued')
    pre.compute(a)
    stamp(a, 'pre_done')
    g1.init_acc(a)
    VS, VFK, VFW = 32, 34, 35
    def h4(a): pre.publish(a)
    def h5(a):
        g1.stats_addr(a, VS); cv.flag_addr(a, VFK); g2.wflag_addr(a, VFW)
        poll_issue(a, VS, g1.ST, 2); poll_issue(a, VS+1, g1.ST+2, 2); poll_issue(a, VFK, 36); poll_issue(a, VFW, 37)
    def h7(a):
        poll_check(a, [(VS, g1.ST, 2, g1.ST+1), (VS+1, g1.ST+2, 2, g1.ST+3), (VFK, 36, 1, 36), (VFW, 37, 1, 37)])
        cv.load_kv(a, 38)
    g1.main(a, {4: h4, 5: h5, 7: h7})
    stamp(a, 'g1_main')
    g1.epilogue(a)
    stamp(a, 'g1_epi')
    g2.load_w(a, 38, 0, 24)
    stamp(a, 'w2f_issued')
    a.e('s_barrier')
    cv.prep(a)
    after_g1 = (list(a.vm), list(a.lg))
    a.e(f's_branch {join}')
    a.label(idle)
    a.vm, a.lg = list(saved0[0]), list(saved0[1])
    pre.compute(a)
    a.e('s_waitcnt vmcnt(0)')
    pre.publish(a)
    cv.flag_addr(a, VFK); g2.wflag_addr(a, VFW)
    poll_issue(a, VFK, 36); poll_issue(a, VFW, 37)
    poll_check(a, [(VFK, 36, 1, 36), (VFW, 37, 1, 37)])
    cv.load_kv(a, 38)
    g2.load_w(a, 38, 0, 24)
    cv.prep(a)
    a.label(join)
    a.vm, a.lg = after_g1
    a.e('s_waitcnt lgkmcnt(0)')
    a.e('s_barrier')
    cv.setup_main(a)
    stamp(a, 'conv_prep')
    def c0(a):
        lab = a.newlabel('Lnoh')
        a.wait_vm('hst')
        a.e('s_cmp_ge_u32 s62, 28'); a.e(f's_cbranch_scc1 {lab}')
        g1.publish(a, 4)
        a.label(lab)
        g2.load_w(a, 4, 24, 28)
    cv.main(a, {1: c0})
    stamp(a, 'conv_main')
    g2.hflag_addr(a, 60); poll_issue(a, 60, 61)
    cv.epilogue(a)
    stamp(a, 'conv_epi')
    poll_check(a, [(60, 61, 1, 61)])
    stamp(a, 'hflag_ok')
    g2.start(a)
    def k0(a):
        stamp(a, 'g2_k0')
        cv.publish(a, 3)
    def k8(a):
        g2.issue_epi_loads(a)
        g2.yflag_addr(a, 212); poll_issue(a, 212, 213)
        lab = a.newlabel('Lfa')
        a.e('v_lshlrev_b32 v214, 2, v0'); a.e(f'v_add_u32 v214, {FAR}, v214')
        poll_issue(a, 214, 215, tag='far')
    def k20(a):
        stamp(a, 'g2_k20')
        poll_check(a, [(212, 213, 1, 213)])
        stamp(a, 'yflag_ok')
        g2.load_y2(a)
    g2.main(a, {0: k0, 8: k8, 20: k20})
    stamp(a, 'g2_main')
    g2.epilogue(a)
    lab = a.newlabel('Lfin')
    a.e('s_cmp_lg_u32 s2, 0'); a.e(f's_cbranch_scc1 {lab}')
    poll_check(a, [(214, 215, 1, 215)], tag='far')
    a.e('s_barrier')
    a.e(f's_cmp_lg_u32 s{S_WAVE}, 0'); a.e(f's_cbranch_scc1 {lab}')
    a.e(f's_mov_b32 s90, {WS_E}')
    publish(a, ['s90'], vt=2)
    a.label(lab)
    stamp(a, 'end'); stamp(a, 'cyc1', True)
    write_stamps(a)
    a.label(end)
    a.e('s_endpgm')

def header():
    ref = open('cdna_kernels/' + NAME + '.s.ref').read().split('\n')
    hdr = []
    for ln in ref:
        if ln.startswith('; @launch') or ln.startswith('; Override') or ln.startswith('; grid=ceil'): break
        hdr.append(ln)
    return '\n'.join(hdr) + '\n'

def fused():
    name = NAME + '_kernel'
    a = Asm()
    fused_body(a, name)
    n = a.fix_hazards()
    out = header() + '; @launch grid=(256,1,1) block=(256,1,1) lds=163840\n'
    out += '.amdgcn_target "amdgcn-amd-amdhsa--gfx950"\n.text\n'
    out += f'.globl {name}\n.p2align 8\n.type {name},@function\n{name}:\n' + a.text()
    out += f'''.section .rodata,"a"
.p2align 6
.amdhsa_kernel {name}
  .amdhsa_next_free_vgpr 512
  .amdhsa_next_free_sgpr 102
  .amdhsa_accum_offset 256
  .amdhsa_group_segment_fixed_size 0
  .amdhsa_kernarg_size 112
  .amdhsa_user_sgpr_count 2
  .amdhsa_user_sgpr_kernarg_segment_ptr 1
  .amdhsa_system_sgpr_workgroup_id_x 1
.end_amdhsa_kernel
'''
    return out

if __name__ == '__main__':
    dst = sys.argv[1]
    for o in sys.argv[2:]:
        k, val = o.split('='); setattr(Opt, k, int(val))
    txt = fused()
    if Opt.stamps: open(dst + '.names', 'w').write(' '.join(STAMP_NAMES))
    open(dst, 'w').write(txt)
    print('wrote', dst, len(txt), 'bytes')
```

```python
import re
REG = re.compile(r'\b([vas])\[(\d+):(\d+)\]|\b([vas])(\d+)\b|\b(vcc|exec|m0|scc)\b')
def regs_of(tok):
    out = set()
    for m in REG.finditer(tok):
        if m.group(1):
            for i in range(int(m.group(2)), int(m.group(3)) + 1): out.add(m.group(1) + str(i))
        elif m.group(4): out.add(m.group(4) + m.group(5))
        else: out.add(m.group(6))
    return out
def split_ops(s):
    ops, depth, cur = [], 0, ''
    for ch in s:
        if ch == '[': depth += 1
        if ch == ']': depth -= 1
        if ch == ',' and depth == 0: ops.append(cur.strip()); cur = ''
        else: cur += ch
    if cur.strip(): ops.append(cur.strip())
    return ops
TRANS = ('v_exp_f32', 'v_log_f32', 'v_rcp_f32', 'v_rsq_f32', 'v_sqrt_f32', 'v_sin_f32', 'v_cos_f32')
class Ins:
    def __init__(self, text):
        self.text = text
        t = text.split(';')[0].strip()
        self.is_label = t.endswith(':')
        self.is_dir = t.startswith('.')
        self.mn = t.split()[0] if t and not self.is_label else ''
        rest = t[len(self.mn):].strip() if self.mn else ''
        self.ops = split_ops(rest)
        mn = self.mn
        self.valu = mn.startswith('v_') and not mn.startswith('v_mfma')
        self.mfma = mn.startswith('v_mfma')
        self.salu = mn.startswith('s_') and not mn.startswith(('s_load', 's_waitcnt', 's_nop', 's_barrier', 's_branch', 's_cbranch', 's_endpgm', 's_sleep', 's_memtime', 's_memrealtime', 's_setprio'))
        self.ds = mn.startswith('ds_')
        self.vmem = mn.startswith(('buffer_', 'global_', 'flat_'))
        self.smem = mn.startswith(('s_load', 's_memtime', 's_memrealtime'))
        self.trans = mn.replace('_e32', '').replace('_e64', '') in TRANS
        self.dpp = ('row_shr' in t or 'row_shl' in t or 'row_bcast' in t or 'quad_perm' in t or 'row_ror' in t or 'wave_sh' in t or 'row_mirror' in t or 'row_half_mirror' in t or 'row_newbcast' in t)
        self.lds_dma = self.vmem and (' lds' in t + ' ' and (t.endswith(' lds') or ' lds ' in t) or 'load_lds' in mn)
        self.wr, self.rd = set(), set()
        o = self.ops
        def R(x): return regs_of(x)
        if self.is_label or self.is_dir or not mn: return
        if self.mfma:
            self.wr = R(o[0]); self.srcA = R(o[1]); self.srcB = R(o[2]); self.srcC = R(o[3].split()[0]); self.rd = self.srcA | self.srcB | self.srcC
            self.passes = 8 if '32x32' in mn else 4
        elif self.valu:
            if mn.startswith('v_cmp'):
                self.wr = R(o[0]); self.rd = set().union(*[R(x) for x in o[1:]])
                if mn.startswith('v_cmpx'): self.wr |= {'exec'}
            elif mn.startswith('v_permlane') and 'swap' in mn:
                self.wr = R(o[0]) | R(o[1]); self.rd = set(self.wr)
            elif mn.startswith(('v_add_co', 'v_sub_co', 'v_addc_co', 'v_subb_co')):
                self.wr = R(o[0]) | R(o[1]); self.rd = set().union(*[R(x) for x in o[2:]])
            else:
                self.wr = R(o[0]); self.rd = set().union(*[R(x) for x in o[1:]]) if len(o) > 1 else set()
                if mn.startswith(('v_fmac', 'v_dot2c', 'v_mac')) or self.dpp or mn.startswith('v_writelane'): self.rd |= self.wr
                if mn.startswith('v_cndmask') and len(o) == 3: self.rd.add('vcc')
        elif self.ds:
            if mn.startswith(('ds_read', 'ds_bpermute', 'ds_swizzle', 'ds_permute')):
                self.wr = R(o[0]); self.rd = set().union(*[R(x) for x in o[1:]])
            else:
                self.rd = set().union(*[R(x) for x in o])
        elif self.vmem:
            if 'store' in mn or self.lds_dma or mn.startswith(('buffer_wbl2', 'buffer_inv')):
                self.rd = set().union(*[R(x) for x in o]) if o else set()
                if self.lds_dma: self.rd.add('m0')
            elif 'atomic' in mn:
                self.rd = set().union(*[R(x) for x in o])
                if 'sc0' in t: self.wr = R(o[0])
            else:
                self.wr = R(o[0]); self.rd = set().union(*[R(x) for x in o[1:]])
            self.store_wide = ('store' in mn and ('x4' in mn or 'x3' in mn))
            if self.store_wide:
                self.sdata = R(o[0]) if mn.startswith('buffer_') else R(o[1])
        elif self.smem:
            self.wr = R(o[0]); self.rd = set().union(*[R(x) for x in o[1:]]) if len(o) > 1 else set()
        elif self.salu:
            if mn.startswith(('s_cmp', 's_bitcmp')):
                self.rd = set().union(*[R(x) for x in o]); self.wr = {'scc'}
            else:
                self.wr = R(o[0]) if o else set(); self.rd = set().union(*[R(x) for x in o[1:]]) if len(o) > 1 else set()
                if 'saveexec' in mn: self.wr |= {'exec'}
    def states(self):
        if self.mn == 's_nop': return int(self.ops[0], 0) + 1
        if self.is_label or self.is_dir or not self.mn: return 0
        return 1
def isv(r): return r[0] in 'va' and r not in ('vcc',)
def required(p, c):
    need = 0
    if p.valu:
        wv = {r for r in p.wr if isv(r)}
        ws = {r for r in p.wr if not isv(r)}
        if c.mfma and wv & c.rd: need = max(need, 2)
        if c.valu and c.dpp and wv & c.rd: need = max(need, 2)
        if c.valu and c.mn.startswith(('v_readlane', 'v_readfirstlane')) and wv & c.rd: need = max(need, 1)
        if c.valu and c.mn.startswith('v_permlane') and wv & c.rd: need = max(need, 2)
        if p.trans and c.valu and not c.trans and wv & c.rd: need = max(need, 1)
        if p.trans and (c.mfma) and wv & c.rd: need = max(need, 2)
        if ws:
            if c.valu and ws & c.rd: need = max(need, 4 if c.mn.startswith(('v_readlane', 'v_writelane')) else 2)
            if c.vmem and ws & c.rd: need = max(need, 5)
            if c.salu and ws & c.rd: need = max(need, 2)
            if 'exec' in ws and (c.mfma): need = max(need, 4)
            if 'exec' in ws and c.valu and c.dpp: need = max(need, 5)
    if p.mfma:
        big = {8: 12, 4: 8}[p.passes]
        if c.mfma:
            if p.wr & (c.srcA | c.srcB): need = max(need, big)
            if p.wr & c.srcC:
                if not (p.wr == c.srcC and p.passes == c.passes): need = max(need, {8: 10, 4: 6}[p.passes])
            if p.wr & c.wr and not (p.wr == c.wr and p.wr == c.srcC and p.passes == c.passes):
                need = max(need, big)
        elif c.valu or c.ds or c.vmem:
            if p.wr & (c.rd | c.wr): need = max(need, big)
            if c.valu and (p.srcC & c.wr): need = max(need, {8: 7, 4: 3}[p.passes])
    if p.salu and 'm0' in p.wr and c.vmem and c.lds_dma: need = max(need, 1)
    if p.salu and 'exec' in p.wr and c.valu and c.dpp: need = max(need, 1)
    if p.vmem and getattr(p, 'store_wide', False) and (c.valu or c.mfma or c.ds or (c.vmem and not 'store' in c.mn)) and p.sdata & c.wr: need = max(need, 2)
    return need
class Asm:
    def __init__(self):
        self.lines = []
        self.vm = []
        self.lg = []
        self.nlabel = 0
        self.seen = set()
    def e(self, text, tag=None, optional=False):
        for ln in text.split('\n'):
            ln = ln.strip()
            if not ln: continue
            i = Ins(ln)
            if i.vmem and len(self.vm) >= 62:
                self.lines.append('s_waitcnt vmcnt(60)'); self.vm = self.vm[len(self.vm) - 60:]
            self.lines.append(ln)
            self.seen.add(tag)
            if i.vmem:
                ent = (tag, ('dma' if i.lds_dma else 'reg') + ('?' if (optional or getattr(self, 'opt_depth', 0)) else ''))
                self.vm.append(ent)
                if getattr(self, 'opt_depth', 0): self._issued = getattr(self, '_issued', []) + [ent]
            if i.ds: self.lg.append(tag)
            if i.mn == 's_waitcnt':
                m = re.search(r'vmcnt\((\d+)\)', ln)
                if m:
                    n = int(m.group(1))
                    keep = []; cnt = 0
                    for x in reversed(self.vm):
                        if x[1].endswith('?'):
                            if cnt < n: keep.append(x)
                            continue
                        if cnt < n: keep.append(x); cnt += 1
                    self.vm = list(reversed(keep))
                m = re.search(r'lgkmcnt\((\d+)\)', ln)
                if m:
                    n = int(m.group(1)); self.lg = self.lg[len(self.lg) - n:] if n and len(self.lg) > n else ([] if n == 0 else self.lg)
    def _cnt(self, q, tags, mx):
        if not isinstance(tags, (list, set)): tags = [tags]
        idx = [i for i, t in enumerate(q) if t in tags]
        if not idx: return None
        n = len(q) - 1 - max(idx)
        return min(n, mx)
    def wait_vm(self, tags):
        if not isinstance(tags, (list, set)): tags = [tags]
        assert any(t in self.seen for t in tags) or not tags, tags
        idx = [i for i, (t, c) in enumerate(self.vm) if t in tags]
        if not idx: return
        n = 63
        for i in idx:
            cls = self.vm[i][1].rstrip('?')
            younger = [x for x in self.vm[i+1:] if not x[1].endswith('?')]
            k = len(younger)
            n = min(n, k)
        self.e(f's_waitcnt vmcnt({n})')
    def wait_lg(self, tags):
        n = self._cnt(self.lg, tags, 15)
        if n is not None: self.e(f's_waitcnt lgkmcnt({n})')
    def label(self, name=None):
        if name is None:
            self.nlabel += 1; name = f'L{self.nlabel}'
        self.lines.append(name + ':')
        return name
    def newlabel(self, base='L'):
        self.nlabel += 1
        return f'{base}{self.nlabel}'
    def comment(self, s): self.lines.append('; ' + s)
    def fix_hazards(self, window=24):
        out = []
        ins = []
        added = 0
        for ln in self.lines:
            if ln.startswith(';'):
                out.append(ln); continue
            c = Ins(ln)
            if c.mn:
                need = 0; dist = 0
                for p in reversed(ins[-window:]):
                    r = required(p, c)
                    if r > dist: need = max(need, r - dist)
                    dist += p.states()
                    if dist >= 20: break
                while need > 0:
                    n = min(need, 16)
                    nop = f's_nop {n-1}'
                    out.append(nop); ins.append(Ins(nop)); need -= n; added += 1
            out.append(ln); ins.append(c)
        self.lines = out
        return added
    def text(self):
        res = []
        for ln in self.lines:
            if ln.endswith(':') or ln.startswith(('.', ';')): res.append(ln)
            else: res.append('    ' + ln)
        return '\n'.join(res) + '\n'
```

```python
import sys, os
sys.path.insert(0, os.path.dirname(os.path.abspath(__file__)))
from asmlib import Asm

NAME = 'recurrent_scan__ssm_conv_h3__dense_activation_squared_relu__prompt'
S, D, F = 2048, 512, 1792
WS_KVT, WS_Y2T, WS_W2F, WS_H, WS_ST, WS_FLAG = 0x000000, 0x200000, 0x400000, 0x600000, 0xE80000, 0xE10000
WS_E = 0xE08000
FK, FW, FAR, FH, FY = 0xE10000, 0xE30000, 0xE34000, 0xE40000, 0xE60000
FS = 7
S_TAG, S_SPIN = 16, 17
TAGC = 0x9E3779B9
SPIN_MAX = 100000
WS_STAMP = 0xF00000
WS_SIZE = 0x10000000
SCHEDS = {0: {'pre': 4, 'pay': 5, 'pub': 6, 'spoll': 5, 'touch': 7, 'first': [],
              'items': {0: ['s2'], 1: ['s3', 'cold', 'filt', 'b1'], 2: ['s4'], 3: ['s5'], 4: ['s6'], 5: ['s7', 'weval', 'touch']}},
          1: {'pre': 3, 'pay': 6, 'pub': 5, 'spoll': 5, 'touch': 7, 'first': [],
              'items': {0: ['s2', 'cold'], 1: ['s3'], 2: ['s4', 'filt'], 3: ['s5', 'b1'], 4: ['s6'], 5: ['s7']}}}
class Opt:
    stamps = 0
    codepf = 1
    dbgwg = -1
    stagestamps = 0
    sched = 0
    defer = 0
    touch = 1
    rot1 = 1
    rot2 = 1
    prestage = 2
P_Q, P_K, P_V, P_SK, P_SSMK, P_SSMD, P_BX, P_W1 = 4, 6, 8, 10, 12, 14, 16, 18
P_B1, P_W2, P_B2, P_OUT, P_DBG, P_WS = 20, 22, 24, 26, 28, 30
S_WAVE = 3
R_WS, R_A, R_B, R_C = 32, 36, 40, 44
def sp(p): return f's[{p}:{p+1}]'
def sq(r): return f's[{r}:{r+3}]'
def v(i, n=1): return f'v{i}' if n == 1 else f'v[{i}:{i+n-1}]'
def ac(i, n=1): return f'a{i}' if n == 1 else f'a[{i}:{i+n-1}]'
def srd(a, dst, ptr, size):
    a.e(f's_mov_b32 s{dst}, s{ptr}'); a.e(f's_mov_b32 s{dst+1}, s{ptr+1}')
    a.e(f's_mov_b32 s{dst+2}, {hex(size)}'); a.e(f's_mov_b32 s{dst+3}, 0x20000')
V_LANE = 1
R_T = 92
def srd_items(ptr, size, R=R_T):
    return [(f's_mov_b32 s{R}, s{ptr}', None), (f's_mov_b32 s{R+1}, s{ptr+1}', None), (f's_mov_b32 s{R+2}, {hex(size)}', None), (f's_mov_b32 s{R+3}, 0x20000', None)]
def unpack_lo(a, d, s): a.e(f'v_lshlrev_b32 v{d}, 16, v{s}')
def unpack_hi(a, d, s): a.e(f'v_and_b32 v{d}, 0xffff0000, v{s}')

STAMP_NAMES = []
def stamp(a, name, cyc=False):
    if not Opt.stamps: return
    if name not in STAMP_NAMES: STAMP_NAMES.append(name)
    i = STAMP_NAMES.index(name)
    a.e('s_memtime s[90:91]' if cyc else 's_memrealtime s[90:91]'); a.e('s_waitcnt lgkmcnt(0)'); a.e(f'v_writelane_b32 v255, s90, {i}')
def write_stamps(a):
    if not Opt.stamps: return
    a.e(f's_lshl_b32 s90, s2, 2'); a.e(f's_add_u32 s90, s90, s{S_WAVE}'); a.e('s_lshl_b32 s90, s90, 8'); a.e(f's_add_u32 s90, s90, {WS_STAMP}')
    a.e(f'v_lshlrev_b32 v2, 2, v{V_LANE}')
    a.e(f'buffer_store_dword v255, v2, {sq(R_WS)}, s90 offen')
    if Opt.dbgwg >= 0:
        lab = a.newlabel('Ldbg')
        a.e(f's_cmp_lg_u32 s2, {Opt.dbgwg}'); a.e(f's_cbranch_scc1 {lab}')
        a.e(f's_cmp_lg_u32 s{S_WAVE}, 0'); a.e(f's_cbranch_scc1 {lab}')
        sel = ['kernarg', 'issued', 'g1_s0', 'pre_arrived', 'pre_done', 'g1_s4', 'g1_s6', 'g1_main', 'g1_epi', 'conv_prep', 'conv_main', 'hflag_ok', 'g2_k0', 'g2_k20', 'g2_main', 'end']
        a.e('v_readlane_b32 s92, v255, 0'); a.e('v_mov_b32 v3, 0')
        for i, nm in enumerate(sel):
            if nm not in STAMP_NAMES: continue
            a.e(f'v_readlane_b32 s93, v255, {STAMP_NAMES.index(nm)}'); a.e('s_sub_u32 s93, s93, s92'); a.e(f'v_writelane_b32 v3, s93, {i}')
        a.e('s_mov_b64 exec, 0xffff'); a.e(f'global_store_dword v2, v3, {sp(P_DBG)}'); a.e('s_mov_b64 exec, -1')
        a.label(lab)
def publish(a, addrs, vt=2, optional=False):
    a.e(f'v_mov_b32 v{vt}, 0')
    for i, sr in enumerate(addrs): a.e(f'v_writelane_b32 v{vt}, {sr}, {i}')
    a.e(f'v_mov_b32 v{vt+1}, s{S_TAG}')
    a.e(f's_mov_b64 exec, {(1 << len(addrs)) - 1}')
    a.e(f'buffer_store_dword v{vt+1}, v{vt}, {sq(R_WS)}, 0 offen sc1', tag='flag', optional=optional)
    a.e('s_mov_b64 exec, -1')
def poll_issue(a, vaddr, vdst, width=1, tag='poll'):
    op = {1: 'dword', 2: 'dwordx2'}[width]
    a.e(f'buffer_load_{op} {v(vdst, width)}, v{vaddr}, {sq(R_WS)}, 0 offen sc1', tag=tag)
def poll_check(a, items, tag='poll', sleep=4):
    top = a.newlabel('Lpc'); done = a.newlabel('Lpd')
    a.wait_vm(tag)
    a.e(f's_mov_b32 s{S_SPIN}, 0')
    a.label(top)
    for n, (va, vd, w, vt) in enumerate(items):
        a.e(f'v_cmp_ne_u32 vcc, s{S_TAG}, v{vt}')
        a.e('s_mov_b64 s[90:91], vcc' if n == 0 else 's_or_b64 s[90:91], s[90:91], vcc')
    a.e('s_cmp_eq_u64 s[90:91], 0')
    a.e(f's_cbranch_scc1 {done}')
    a.e(f's_add_u32 s{S_SPIN}, s{S_SPIN}, 1')
    a.e(f's_cmp_gt_u32 s{S_SPIN}, {SPIN_MAX}')
    a.e(f's_cbranch_scc1 {done}')
    a.e(f's_sleep {sleep}')
    saved = (list(a.vm), list(a.lg))
    for (va, vd, w, vt) in items: poll_issue(a, va, vd, w, tag=None)
    a.e('s_waitcnt vmcnt(0)')
    a.e(f's_branch {top}')
    a.vm, a.lg = saved
    a.label(done)
def on_wave0(a, f):
    lab = a.newlabel('Lw0')
    a.e(f's_cmp_lg_u32 s{S_WAVE}, 0'); a.e(f's_cbranch_scc1 {lab}')
    before = list(a.vm); a._issued = []
    a.opt_depth = getattr(a, 'opt_depth', 0) + 1
    f(a)
    a.opt_depth -= 1
    a.vm = before + [(t, c if c.endswith('?') else c + '?') for (t, c) in getattr(a, '_issued', [])]
    a._issued = []
    a.label(lab)
def allreduce2(a, x, y, t0, t1):
    for ctl in ('quad_perm:[1,0,3,2]', 'quad_perm:[2,3,0,1]', 'row_half_mirror', 'row_mirror'):
        a.e(f'v_add_f32_dpp v{x}, v{x}, v{x} {ctl} row_mask:0xf bank_mask:0xf')
        a.e(f'v_add_f32_dpp v{y}, v{y}, v{y} {ctl} row_mask:0xf bank_mask:0xf')
    for sw in ('v_permlane16_swap_b32', 'v_permlane32_swap_b32'):
        a.e(f'v_mov_b32 v{t0}, v{x}'); a.e(f'v_mov_b32 v{t1}, v{y}')
        a.e(f'{sw} v{x}, v{t0}'); a.e(f'{sw} v{y}, v{t1}')
        a.e(f'v_add_f32 v{x}, v{x}, v{t0}'); a.e(f'v_add_f32 v{y}, v{y}, v{t1}')
def emit_items(a, items):
    for it in items:
        if callable(it):
            it(a); continue
        for t, tag in it:
            if t.endswith(':'): a.label(t[:-1])
            elif isinstance(tag, tuple) and len(tag) == 2 and tag[1] == 'opt': a.e(t, tag=tag[0], optional=True)
            else: a.e(t, tag=tag)

PRE_LDS = 131072
KIMG, VIMG, WIMG = PRE_LDS, PRE_LDS + 9216, PRE_LDS + 9216 + 8192
SC = 'sc1'
A_PAY = 192
A_HRAW, A_KV = 224, 236

class Pre:
    VE, XR, SKR, T, WR, SK, VD = 62, 32, 40, 42, 46, 54, 58
    KR, VR, U = 188, 200, 208
    def issue_stats(self, a):
        L = V_LANE; t = self.T
        a.e(f'v_mov_b32 v{t}, {WS_E}')
        a.e(f'buffer_load_dword v{self.VE}, v{t}, {sq(R_WS)}, 0 offen sc1', tag='pre0')
        a.e('s_and_b32 s58, s2, 7'); a.e('s_lshr_b32 s59, s58, 1'); a.e('s_lshl_b32 s59, s59, 9'); a.e('s_and_b32 s58, s58, 1'); a.e('s_lshl_b32 s58, s58, 5')
        a.e('s_lshr_b32 s60, s2, 3'); a.e('s_add_u32 s58, s58, s60'); a.e('s_lshl_b32 s58, s58, 3'); a.e('s_add_u32 s58, s58, s59')
        a.e(f's_lshl_b32 s59, s{S_WAVE}, 1'); a.e('s_add_u32 s58, s58, s59')
        a.e(f's_lshl_b32 s59, s58, 10')
        a.e(f'v_lshl_add_u32 v{t}, v{L}, 4, s59')
        srd(a, R_T, P_Q, S*D*2)
        a.e(f'buffer_load_dwordx4 {v(self.XR,4)}, v{t}, {sq(R_T)}, 0 offen', tag='pre0')
        a.e(f'buffer_load_dwordx4 {v(self.XR+4,4)}, v{t}, {sq(R_T)}, 0 offen offset:1024', tag='pre0')
    def setup(self, a):
        L = V_LANE; t = self.T
        a.e('s_lshr_b32 s48, s2, 3'); a.e('s_lshl_b32 s48, s48, 6')
        a.e('s_and_b32 s49, s2, 7'); a.e('s_lshl_b32 s49, s49, 7')
        a.e(f'v_lshrrev_b32 v{t}, 3, v{L}'); a.e(f'v_lshlrev_b32 v{t}, 10, v{t}')
        a.e(f'v_and_b32 v{t+1}, 7, v{L}'); a.e(f'v_lshl_add_u32 v{t}, v{t+1}, 4, v{t}')
        a.e('s_lshl_b32 s50, s48, 10'); a.e('s_add_u32 s50, s50, s49')
        a.e(f's_sub_u32 s51, s50, 8192'); a.e(f'v_add_u32 v{t+1}, s51, v{t}')
        a.e(f's_lshl_b32 s51, s{S_WAVE}, 14'); a.e('s_add_u32 s51, s51, s50')
        a.e(f's_lshl_b32 s52, s{S_WAVE}, 11')
        a.e(f'v_and_b32 v{t+2}, 15, v{L}'); a.e(f's_lshl_b32 s59, s{S_WAVE}, 4'); a.e('s_lshr_b32 s60, s49, 1'); a.e('s_add_u32 s59, s59, s60')
        a.e(f'v_add_u32 v{self.VD}, s59, v{t+2}')
        a.e(f'v_lshlrev_b32 v{t+2}, 3, v{self.VD}')
    def items(self):
        t = self.T; R = 96
        def mk(ptr, size): return [(f's_mov_b32 s{R}, s{ptr}', None), (f's_mov_b32 s{R+1}, s{ptr+1}', None), (f's_mov_b32 s{R+2}, {hex(size)}', None), (f's_mov_b32 s{R+3}, 0x20000', None)]
        it = []
        lab = f'Lpre_hist{id(self) % 1000}_{len(Pre.labs)}'; Pre.labs.append(lab)
        it.append(mk(P_K, S*D*2) + [(f's_cmp_lg_u32 s{S_WAVE}, 0', None), (f's_cbranch_scc1 {lab}', None), (f's_mov_b32 m0, {KIMG}', None),
                  (f'buffer_load_dwordx4 v{t+1}, {sq(R)}, 0 offen lds', ('pre', 'opt')), (f'{lab}:', None)])
        for jj in range(2):
            it.append([(f's_add_u32 s53, s51, {jj*8192}', None), (f's_add_u32 m0, s52, {KIMG + 1024 + jj*1024}', None), (f'buffer_load_dwordx4 v{t}, {sq(R)}, s53 offen lds', 'pre')])
        for jj in range(2):
            it.append((mk(P_V, S*D*2) if jj == 0 else []) + [(f's_add_u32 s53, s51, {jj*8192}', None), (f's_add_u32 m0, s52, {VIMG + jj*1024}', None), (f'buffer_load_dwordx4 v{t}, {sq(R)}, s53 offen lds', 'pre')])
        it.append(srd_items(P_SK, D*8) + [(f'buffer_load_dwordx2 {v(self.SKR,2)}, v{t+2}, {sq(R_T)}, 0 offen', 'pre')])
        return it
    labs = []
    def tag(self, a):
        a.wait_vm('pre0')
        a.e(f'v_readfirstlane_b32 s{S_TAG}, v{self.VE}')
        a.e('s_nop 3')
        a.e(f's_add_u32 s{S_TAG}, s{S_TAG}, {TAGC}')
    def stats(self, a, tag_done=False):
        L = V_LANE; X = self.U
        a.wait_vm('pre0')
        if not tag_done: a.e(f'v_readfirstlane_b32 s{S_TAG}, v{self.VE}')
        for rr in range(2):
            for j in range(4):
                unpack_lo(a, X+8*rr+2*j, self.XR+4*rr+j); unpack_hi(a, X+8*rr+2*j+1, self.XR+4*rr+j)
        if not tag_done: a.e(f's_add_u32 s{S_TAG}, s{S_TAG}, {TAGC}')
        SA, SB, t0, t1, QA, QB = X+16, X+17, X+18, X+19, X+20, X+21
        for rr, Sx in ((0, SA), (1, SB)): a.e(f'v_add_f32 v{Sx}, v{X+8*rr}, v{X+8*rr+1}')
        for j in range(2, 8):
            for rr, Sx in ((0, SA), (1, SB)): a.e(f'v_add_f32 v{Sx}, v{Sx}, v{X+8*rr+j}')
        allreduce2(a, SA, SB, t0, t1)
        a.e(f'v_mul_f32 v{SA}, 0x3b000000, v{SA}'); a.e(f'v_mul_f32 v{SB}, 0x3b000000, v{SB}')
        for j in range(8):
            for rr, Sx in ((0, SA), (1, SB)): a.e(f'v_sub_f32 v{X+8*rr+j}, v{X+8*rr+j}, v{Sx}')
        for rr, Q in ((0, QA), (1, QB)): a.e(f'v_mul_f32 v{Q}, v{X+8*rr}, v{X+8*rr}')
        for j in range(1, 8):
            for rr, Q in ((0, QA), (1, QB)): a.e(f'v_fmac_f32 v{Q}, v{X+8*rr+j}, v{X+8*rr+j}')
        allreduce2(a, QA, QB, t0, t1)
        a.e(f'v_mul_f32 v{QA}, 0x3b000000, v{QA}'); a.e(f'v_mul_f32 v{QB}, 0x3b000000, v{QB}')
        a.e(f'v_and_b32 v{t0}, 1, v{L}'); a.e(f'v_cmp_eq_u32 vcc, 1, v{t0}')
        a.e(f'v_cndmask_b32 v{SA}, v{SA}, v{SB}, vcc'); a.e(f'v_cndmask_b32 v{QA}, v{QA}, v{QB}, vcc')
        G = X + 24
        a.e(f'v_cvt_pk_bf16_f32 v{G}, v{SA}, v{QA}')
        unpack_hi(a, t1, G)
        a.e(f'v_add_f32 v{t1}, 0x3727c5ac, v{t1}')
        a.e(f'v_cvt_pk_bf16_f32 v{t1}, v{t1}, v{t1}'); unpack_lo(a, t1, t1)
        a.e(f'v_sqrt_f32 v{t1}, v{t1}')
        a.e(f'v_cvt_pk_bf16_f32 v{t1}, v{t1}, v{t1}')
        a.e(f'v_and_b32 v{G}, 0xffff, v{G}'); a.e(f'v_and_b32 v{t1}, 0xffff0000, v{t1}'); a.e(f'v_or_b32 v{G}, v{G}, v{t1}')
        a.e(f'v_mov_b32 v{G+1}, s{S_TAG}')
        a.e(f'v_mov_b32 v60, v{G}'); a.e(f'v_mov_b32 v61, v{G+1}')
        if not Opt.defer: self.store_stats(a)
    def store_stats(self, a):
        L = V_LANE
        a.e(f's_lshl_b32 s59, s58, 6'); a.e(f's_add_u32 s59, s59, {WS_ST}')
        a.e(f'v_lshlrev_b32 v59, 3, v{L}')
        a.e('s_mov_b64 exec, 3')
        a.e(f'buffer_store_dwordx2 v[60:61], v59, {sq(R_WS)}, s59 offen {SC}', tag='prest')
        a.e('s_mov_b64 exec, -1')
    def compute(self, a):
        L = V_LANE; T = self.T
        KR, VR, WR, SK, U = self.KR, self.VR, self.WR, self.SK, self.U
        a.wait_vm('pre')
        stamp(a, 'pre_arrived')
        a.e('s_barrier')
        a.e(f'v_lshrrev_b32 v{T}, 4, v{L}'); a.e(f'v_lshlrev_b32 v{T}, 3, v{T}')
        a.e(f'v_bfe_u32 v{T+1}, v{L}, 2, 2'); a.e(f'v_add_u32 v{T}, v{T}, v{T+1}'); a.e(f'v_lshlrev_b32 v{T}, 7, v{T}')
        a.e(f'v_and_b32 v{T+1}, 3, v{L}'); a.e(f'v_lshl_add_u32 v{T}, v{T+1}, 3, v{T}')
        a.e(f's_lshl_b32 s59, s{S_WAVE}, 5'); a.e(f'v_add_u32 v{T}, s59, v{T}')
        a.e(f'v_add_u32 v{T+1}, {KIMG}, v{T}'); a.e(f'v_add_u32 v{T+2}, {VIMG}, v{T}')
        for run in range(2):
            for j in range(3):
                a.e(f'ds_read_b64_tr_b16 {v(KR+run*6+2*j,2)}, v{T+1} offset:{512 + j*512 + run*4096}', tag=('kvr', run))
            for j in range(2):
                a.e(f'ds_read_b64_tr_b16 {v(VR+run*4+2*j,2)}, v{T+2} offset:{j*512 + run*4096}', tag=('kvr', run))
        unpack_lo(a, SK, self.SKR); unpack_hi(a, SK+1, self.SKR); unpack_lo(a, SK+2, self.SKR+1); unpack_hi(a, SK+3, self.SKR+1)
        a.e(f'v_lshlrev_b32 v{T}, 12, v{self.VD}')
        a.e(f'v_lshrrev_b32 v{T+1}, 4, v{L}'); a.e(f'v_lshl_add_u32 v{T}, v{T+1}, 4, v{T}')
        a.e('s_lshl_b32 s59, s48, 1'); a.e(f's_add_u32 s59, s59, {WS_KVT}')
        for run in range(2):
            a.wait_lg(('kvr', run))
            for j in range(6):
                if j > 0: unpack_lo(a, U+2*j, KR+run*6+j)
                unpack_hi(a, U+2*j+1, KR+run*6+j)
            for j in range(4):
                unpack_lo(a, U+12+2*j, VR+run*4+j); unpack_hi(a, U+12+2*j+1, VR+run*4+j)
            A0 = U + 20
            for t in range(8): a.e(f'v_mul_f32 v{A0+t}, v{U+1+t}, v{SK+3}')
            for t in range(8): a.e(f'v_fmac_f32 v{A0+t}, v{U+2+t}, v{SK+2}')
            for t in range(8): a.e(f'v_fmac_f32 v{A0+t}, v{U+3+t}, v{SK+1}')
            for t in range(8): a.e(f'v_fmac_f32 v{A0+t}, v{U+4+t}, v{SK}')
            for t in range(8): a.e(f'v_mul_f32 v{A0+t}, v{A0+t}, v{U+12+t}')
            O = U + 28 + run*4
            for j in range(4): a.e(f'v_cvt_pk_bf16_f32 v{O+j}, v{A0+2*j}, v{A0+2*j+1}')
        a.e('s_mov_b32 s57, s59')
        if not Opt.defer: self.store_kv(a)
    def store_kv(self, a):
        T = self.T
        for run in range(2):
            O = self.U + 28 + run*4
            a.e(f'buffer_store_dwordx4 {v(O,4)}, v{T}, {sq(R_WS)}, s57 offen offset:{run*64} {SC}', tag='prest')
    def publish(self, a, vt, optional=False):
        a.e('s_and_b32 s59, s2, 7'); a.e('s_lshl_b32 s59, s59, 2'); a.e(f's_add_u32 s59, s59, s{S_WAVE}'); a.e('s_lshl_b32 s59, s59, 5')
        a.e('s_lshr_b32 s60, s2, 3'); a.e('s_add_u32 s59, s59, s60'); a.e(f's_lshl_b32 s59, s59, {FS}'); a.e(f's_add_u32 s59, s59, {FK}')
        a.e(f's_lshl_b32 s53, s2, {FS}'); a.e(f's_lshl_b32 s60, s{S_WAVE}, 2'); a.e('s_add_u32 s53, s53, s60'); a.e(f's_add_u32 s53, s53, {FAR}')
        publish(a, ['s59', 's53'], vt=vt, optional=optional)

class W2T:
    def issue(self, a):
        L = V_LANE; t = 8
        srd(a, R_C, P_W2, F*D*2)
        a.e('s_sub_u32 s54, s62, 28')
        a.e('s_mul_i32 s55, s54, 448'); a.e(f's_mul_i32 s56, s{S_WAVE}, 112'); a.e('s_add_u32 s55, s55, s56'); a.e('s_lshl_b32 s55, s55, 10')
        a.e('s_lshl_b32 s56, s61, 7'); a.e('s_add_u32 s55, s55, s56')
        a.e(f'v_lshrrev_b32 v{t}, 3, v{L}'); a.e(f'v_lshlrev_b32 v{t}, 10, v{t}'); a.e(f'v_and_b32 v{t+1}, 7, v{L}'); a.e(f'v_lshl_add_u32 v{t}, v{t+1}, 4, v{t}')
        a.e(f's_mul_i32 s56, s{S_WAVE}, {112*128}')
        for j in range(14):
            a.e(f's_add_u32 m0, s56, {j*1024}'); a.e(f's_add_u32 s57, s55, {j*8192}')
            a.e(f'buffer_load_dwordx4 v{t}, {sq(R_C)}, s57 offen lds', tag='w2t')
    def compute(self, a):
        L = V_LANE; t = 8
        a.wait_vm('w2t')
        a.e(f'v_lshrrev_b32 v{t}, 5, v{L}'); a.e(f'v_lshlrev_b32 v{t}, 2, v{t}'); a.e(f'v_bfe_u32 v{t+1}, v{L}, 2, 2'); a.e(f'v_add_u32 v{t}, v{t}, v{t+1}'); a.e(f'v_lshlrev_b32 v{t}, 7, v{t}')
        a.e(f'v_bfe_u32 v{t+1}, v{L}, 4, 1'); a.e(f'v_lshl_add_u32 v{t}, v{t+1}, 5, v{t}'); a.e(f'v_and_b32 v{t+1}, 3, v{L}'); a.e(f'v_lshl_add_u32 v{t}, v{t+1}, 3, v{t}')
        a.e(f'v_add_u32 v{t}, s56, v{t}')
        a.e(f'v_lshlrev_b32 v{t+1}, 4, v{L}')
        a.e('s_lshl_b32 s57, s61, 1'); a.e('s_mul_i32 s57, s57, 112'); a.e('s_mul_i32 s55, s54, 28'); a.e('s_add_u32 s57, s57, s55'); a.e(f's_mul_i32 s55, s{S_WAVE}, 7'); a.e('s_add_u32 s57, s57, s55')
        a.e('s_lshl_b32 s57, s57, 10'); a.e(f's_add_u32 s57, s57, {WS_W2F}')
        R0 = 64
        for j in range(7):
            for h in range(2):
                r = R0 + (j*2+h)*4
                a.e(f'ds_read_b64_tr_b16 {v(r,2)}, v{t} offset:{j*2048 + h*64}', tag=('w2r', j, h))
                a.e(f'ds_read_b64_tr_b16 {v(r+2,2)}, v{t} offset:{j*2048 + h*64 + 1024}', tag=('w2r', j, h))
        for j in range(7):
            for h in range(2):
                r = R0 + (j*2+h)*4
                a.wait_lg(('w2r', j, h))
                a.e(f's_add_u32 s55, s57, {(h*112 + j)*1024}')
                a.e(f'buffer_store_dwordx4 {v(r,4)}, v{t+1}, {sq(R_WS)}, s55 offen {SC}', tag='w2st')
    def publish(self, a, vt):
        a.e('s_lshl_b32 s55, s61, 2'); a.e('s_add_u32 s55, s55, s54')
        a.e(f's_lshl_b32 s55, s55, {FS}'); a.e(f's_add_u32 s55, s55, {FW}')
        publish(a, ['s55'], vt=vt)

class Gemm1:
    ACC, FR, VW, VX, VA, VB, CS, SEL, B1, ST = 64, 128, 8, 9, 12, 16, 160, 168, 172, 28
    def decode(self, a):
        a.e('s_and_b32 s61, s2, 7'); a.e('s_lshr_b32 s62, s2, 3')
        a.e('s_lshr_b32 s63, s61, 1'); a.e('s_lshl_b32 s63, s63, 9'); a.e('s_and_b32 s64, s62, 3'); a.e('s_lshl_b32 s64, s64, 7'); a.e('s_add_u32 s63, s63, s64')
        a.e('s_and_b32 s64, s61, 1'); a.e('s_mul_i32 s64, s64, 896'); a.e('s_lshr_b32 s65, s62, 2'); a.e('s_lshl_b32 s65, s65, 7'); a.e('s_add_u32 s64, s64, s65')
        a.e(f's_and_b32 s70, s{S_WAVE}, 1'); a.e(f's_lshr_b32 s71, s{S_WAVE}, 1')
        if Opt.rot1:
            a.e('s_and_b32 s69, s62, 3'); a.e('s_lshl_b32 s69, s69, 1'); a.e('s_lshr_b32 s65, s62, 2'); a.e('s_add_u32 s65, s65, s69'); a.e('s_and_b32 s65, s65, 7')
        else:
            a.e('s_mov_b32 s65, 0')
    def setup(self, a):
        L = V_LANE
        srd(a, R_A, P_W1, D*F*2); srd(a, R_B, P_Q, S*D*2)
        t = 24
        a.e(f'v_lshrrev_b32 v{t}, 4, v{L}')
        a.e(f'v_mul_u32_u24 v{self.VW}, 3584, v{t}')
        a.e(f'v_lshlrev_b32 v{t+1}, 2, v{t}'); a.e(f'v_and_b32 v{t+2}, 15, v{L}'); a.e(f'v_xor_b32 v{t+1}, v{t+1}, v{t+2}')
        a.e(f'v_lshl_add_u32 v{self.VW}, v{t+1}, 4, v{self.VW}')
        a.e(f'v_lshrrev_b32 v{t+1}, 3, v{L}'); a.e(f'v_lshlrev_b32 v{t+1}, 10, v{t+1}')
        a.e(f'v_and_b32 v{t+2}, 7, v{L}')
        a.e(f'v_xor_b32 v{t+3}, v{t+2}, v{t}'); a.e(f'v_lshl_add_u32 v{self.VX}, v{t+3}, 4, v{t+1}')
        a.e(f'v_xor_b32 v{t+3}, 4, v{t+3}'); a.e(f'v_lshl_add_u32 v{self.VX+1}, v{t+3}, 4, v{t+1}')
        a.e(f's_mul_i32 s66, s{S_WAVE}, {16*3584}'); a.e('s_lshl_b32 s69, s64, 1'); a.e('s_add_u32 s66, s66, s69')
        a.e(f's_lshl_b32 s67, s{S_WAVE}, 5'); a.e('s_add_u32 s67, s67, s63'); a.e('s_lshl_b32 s67, s67, 10')
        a.e(f's_lshl_b32 s68, s{S_WAVE}, 12')
    VB1 = 252
    def b1_setup(self, a):
        L = V_LANE; t = self.VB1
        a.e(f'v_lshrrev_b32 v{t}, 5, v{L}'); a.e(f'v_lshlrev_b32 v{t}, 3, v{t}')
        a.e(f's_lshl_b32 s69, s70, 6'); a.e('s_add_u32 s69, s69, s64'); a.e('s_lshl_b32 s69, s69, 1')
        a.e('s_lshl_b32 s72, s71, 6'); a.e('s_add_u32 s69, s69, s72')
        a.e(f'v_add_u32 v{t}, s69, v{t}')
        a.e(f'v_xor_b32 v{t+1}, 64, v{t}')
    def b1_items(self):
        L = [[(f'buffer_load_dwordx2 {v(self.B1+(aa*4+q)*2,2)}, v{self.VB1+aa}, {sq(R_T)}, 0 offen offset:{q*16}', 'b1')] for aa in range(2) for q in range(4)]
        L[0] = srd_items(P_B1, F*2) + L[0]
        return L
    def dma_items(self, s):
        slot = (s & 3) * 32768
        head = [(f's_add_u32 s46, s65, {s}', None), ('s_and_b32 s46, s46, 7', None), ('s_lshl_b32 s47, s46, 7', None), ('s_add_u32 s47, s47, s67', None),
                (f's_mul_i32 s46, s46, {64*3584}', None), ('s_add_u32 s46, s46, s66', None)]
        items = []
        for jj in range(4):
            w = [(f's_add_u32 m0, s68, {slot + jj*1024}', None), (f's_add_u32 s69, s46, {4*jj*3584}', None),
                 (f'buffer_load_dwordx4 v{self.VW}, {sq(R_A)}, s69 offen lds', ('g1', s))]
            x = [(f's_add_u32 m0, s68, {slot + 16384 + jj*1024}', None), (f's_add_u32 s69, s47, {8*jj*1024}', None),
                 (f'buffer_load_dwordx4 v{self.VX + (jj&1)}, {sq(R_B)}, s69 offen lds', ('g1', s))]
            items += [w, x]
        items[0] = head + items[0]
        return items
    def setup2(self, a):
        L = V_LANE; t = 24
        a.e(f'v_lshrrev_b32 v{t}, 5, v{L}'); a.e(f'v_lshlrev_b32 v{t}, 3, v{t}'); a.e(f'v_bfe_u32 v{t+1}, v{L}, 2, 2'); a.e(f'v_add_u32 v{t}, v{t}, v{t+1}')
        a.e(f'v_lshlrev_b32 v{t}, 8, v{t}')
        a.e(f'v_and_b32 v{t+2}, 1, v{L}'); a.e(f'v_lshl_add_u32 v{t}, v{t+2}, 3, v{t}')
        a.e(f'v_bfe_u32 v{t+2}, v{L}, 4, 1'); a.e(f'v_lshlrev_b32 v{t+2}, 1, v{t+2}'); a.e(f'v_bfe_u32 v{t+3}, v{L}, 1, 1'); a.e(f'v_add_u32 v{t+2}, v{t+2}, v{t+3}')
        a.e(f's_lshl_b32 s69, s70, 3'); a.e(f'v_add_u32 v{t+2}, s69, v{t+2}')
        a.e(f'v_lshlrev_b32 v{t+1}, 2, v{t+1}')
        a.e('s_lshl_b32 s69, s71, 2')
        for aa in range(2):
            a.e(f's_xor_b32 s72, s69, {4*aa}')
            a.e(f'v_add_u32 v{t+3}, s72, v{t+2}'); a.e(f'v_xor_b32 v{t+3}, v{t+3}, v{t+1}')
            a.e(f'v_lshl_add_u32 v{self.VA+2*aa}, v{t+3}, 4, v{t}')
            a.e(f'v_add_u32 v{self.VA+2*aa+1}, 0x10000, v{self.VA+2*aa}')
        a.e(f'v_and_b32 v{t}, 31, v{L}'); a.e(f's_lshl_b32 s69, s71, 6'); a.e(f'v_add_u32 v{t}, s69, v{t}'); a.e(f'v_lshlrev_b32 v{t}, 7, v{t}')
        a.e(f'v_add_u32 v{t}, 16384, v{t}')
        a.e(f'v_bfe_u32 v{t+1}, v{L}, 1, 3'); a.e(f'v_lshrrev_b32 v{t+2}, 5, v{L}'); a.e(f'v_xor_b32 v{t+1}, v{t+1}, v{t+2}')
        for kk in range(4):
            a.e(f'v_xor_b32 v{t+2}, {2*kk}, v{t+1}'); a.e(f'v_lshl_add_u32 v{self.VB+2*kk}, v{t+2}, 4, v{t}')
            a.e(f'v_add_u32 v{self.VB+2*kk+1}, 0x10000, v{self.VB+2*kk}')
        a.e(f'v_bfe_u32 v{t}, v{L}, 4, 1'); a.e(f'v_and_b32 v{t+1}, 1, v{L}'); a.e(f'v_cmp_eq_u32 vcc, v{t}, v{t+1}')
        a.e(f'v_mov_b32 v{t+2}, 0x3f803f80')
        for j in range(4): a.e(f'v_cndmask_b32 v{self.SEL+j}, 0, v{t+2}, vcc')
        for i in range(32): a.e(f'v_mov_b64 {v(self.ACC+2*i,2)}, 0')
        for i in range(2): a.e(f'v_mov_b64 {v(self.CS+2*i,2)}, 0')
    def read_list(self, s, kk, p):
        slot = (s & 3); hi = slot >> 1; base = (slot & 1) * 32768
        F0 = self.FR + 16*p; tg = ('fr', s, kk)
        return [
          (f'ds_read_b64_tr_b16 {v(F0,2)}, v{self.VA+hi} offset:{base + kk*4096}', tg+('A0',)),
          (f'ds_read_b64_tr_b16 {v(F0+2,2)}, v{self.VA+hi} offset:{base + kk*4096 + 1024}', tg+('A0',)),
          (f'ds_read_b128 {v(F0+8,4)}, v{self.VB+2*kk+hi} offset:{base}', tg+('B0',)),
          (f'ds_read_b128 {v(F0+12,4)}, v{self.VB+2*kk+hi} offset:{base + 4096}', tg+('B1',)),
          (f'ds_read_b64_tr_b16 {v(F0+4,2)}, v{self.VA+2+hi} offset:{base + kk*4096}', tg+('A1',)),
          (f'ds_read_b64_tr_b16 {v(F0+6,2)}, v{self.VA+2+hi} offset:{base + kk*4096 + 1024}', tg+('A1',))]
    def mfmas(self, a, s, kk, p, reads, vmem):
        F0 = self.FR + 16*p; tg = ('fr', s, kk)
        order = [(0, 0), (0, 1), (1, 0), (1, 1)]
        need = [[tg+('A0',), tg+('B0',)], [tg+('B1',)], [tg+('A1',)], []]
        reads = list(reads); vmem = list(vmem)
        for i, (aa, bb) in enumerate(order):
            if need[i]: a.wait_lg(need[i])
            acc = self.ACC + (aa*2+bb)*16
            a.e(f'v_mfma_f32_32x32x16_bf16 {v(acc,16)}, {v(F0+4*aa,4)}, {v(F0+8+4*bb,4)}, {v(acc,16)}')
            for _ in range(2):
                if reads:
                    t, tag = reads.pop(0); a.e(t, tag=tag)
            if (i & 1) and vmem: emit_items(a, [vmem.pop(0)])
        a.e(f'v_mfma_f32_16x16x32_bf16 {v(self.CS,4)}, {v(F0,4)}, {v(self.SEL,4)}, {v(self.CS,4)}')
        emit_items(a, vmem)
    def main(self, a, hooks, vm_extra):
        a.comment('gemm1: main loop')
        prev = None; p = 0; pend = []
        for s in range(8):
            a.wait_vm(('g1', s))
            if s > 0: a.wait_lg([('fr', s-1, 3, x) for x in ('A0', 'A1', 'B0', 'B1')])
            a.e('s_barrier')
            if Opt.stagestamps or s in (0, 5): stamp(a, f'g1_s{s}')
            if s == 5: stamp(a, 'cycA', True)
            if s in hooks: hooks[s](a)
            pend = vm_extra[s]() if s in vm_extra else []
            for kk in range(4):
                reads = self.read_list(s, kk, p)
                n = (len(pend) + (3 - kk)) // (4 - kk)
                cur, pend = pend[:n], pend[n:]
                if prev is None:
                    for t, tag in reads: a.e(t, tag=tag)
                    emit_items(a, cur)
                else:
                    self.mfmas(a, prev[0], prev[1], prev[2], reads, cur)
                prev = (s, kk, p); p ^= 1
        self.mfmas(a, prev[0], prev[1], prev[2], [], [])
    def stats_addr(self, a, vd):
        L = V_LANE
        a.e(f'v_and_b32 v{vd}, 31, v{L}'); a.e(f's_lshl_b32 s69, s71, 6'); a.e('s_add_u32 s69, s69, s63'); a.e(f'v_add_u32 v{vd}, s69, v{vd}')
        a.e(f'v_and_b32 v{vd+1}, 1, v{vd}'); a.e(f'v_lshrrev_b32 v{vd}, 1, v{vd}'); a.e(f'v_lshlrev_b32 v{vd}, 7, v{vd}'); a.e(f'v_lshl_add_u32 v{vd}, v{vd+1}, 3, v{vd}')
        a.e(f'v_add_u32 v{vd}, {WS_ST}, v{vd}')
        a.e(f'v_add_u32 v{vd+1}, 2048, v{vd}')
    OUTL = [40, 44, 48, 52, 56, 60, 224, 228]
    def epilogue_a(self, a):
        L = V_LANE
        t = 24
        a.e('s_barrier')
        a.e(f'v_and_b32 v{t}, 1, v{L}'); a.e(f'v_lshlrev_b32 v{t}, 6, v{t}'); a.e(f'v_lshrrev_b32 v{t+1}, 4, v{L}'); a.e(f'v_lshl_add_u32 v{t}, v{t+1}, 4, v{t}')
        a.e(f's_lshl_b32 s69, s70, 8'); a.e('s_lshl_b32 s72, s71, 7'); a.e('s_add_u32 s69, s69, s72'); a.e(f'v_add_u32 v{t}, s69, v{t}')
        a.e(f'v_add_u32 v{t}, {PRE_LDS}, v{t}')
        a.e(f'ds_write_b128 v{t}, {v(self.CS,4)}', tag='csw')
    def epilogue(self, a, mid, pre_bar, post_bar, items=()):
        L = V_LANE; ST = self.ST; t = 24
        for bb in range(2):
            g = ST + 2*bb
            unpack_hi(a, g+1, g); unpack_lo(a, g, g)
            a.e(f'v_rcp_f32 v{g+1}, v{g+1}')
            a.e(f'v_xor_b32 v{g}, 0x80000000, v{g}')
        TMP = 192
        a.wait_vm('b1')
        for i in range(16):
            unpack_lo(a, TMP+2*i, self.B1+i); unpack_hi(a, TMP+2*i+1, self.B1+i)
        a.wait_lg('csw')
        pre_bar(a)
        a.e('s_barrier')
        post_bar(a)
        CSV = self.FR
        a.e(f'v_lshrrev_b32 v{t}, 5, v{L}'); a.e(f'v_lshlrev_b32 v{t}, 4, v{t}'); a.e('s_lshl_b32 s69, s70, 8'); a.e('s_lshl_b32 s72, s71, 7'); a.e('s_add_u32 s69, s69, s72')
        a.e(f's_add_u32 s69, s69, {PRE_LDS}')
        a.e(f'v_add_u32 v{t}, s69, v{t}'); a.e(f'v_xor_b32 v{t+1}, 128, v{t}')
        for aa in range(2):
            for q in range(4):
                a.e(f'ds_read_b128 {v(CSV+(aa*4+q)*4,4)}, v{t+aa} offset:{q*32}', tag=('csr', aa))
        a.e('s_lshl_b32 s69, s71, 6'); a.e('s_add_u32 s69, s69, s63'); a.e('s_lshr_b32 s69, s69, 5'); a.e('s_mul_i32 s69, s69, 112')
        a.e('s_lshl_b32 s72, s70, 6'); a.e('s_add_u32 s72, s72, s64'); a.e('s_lshr_b32 s72, s72, 4'); a.e('s_add_u32 s69, s69, s72')
        a.e('s_lshl_b32 s69, s69, 10'); a.e(f's_add_u32 s69, s69, {WS_H}')
        a.e('s_lshl_b32 s47, s71, 11')
        n = 0
        items = list(items)
        for aa in range(2):
            a.wait_lg(('csr', aa))
            for bb in range(2):
                acc = self.ACC + (aa*2+bb)*16
                for half in range(2):
                    O = self.OUTL[n]; n += 1
                    R = [half*8 + 2*j for j in range(4)]
                    for r in R: a.e(f'v_pk_fma_f32 {v(acc+r,2)}, {v(CSV+aa*16+r,2)}, {v(ST+2*bb,2)}, {v(acc+r,2)} op_sel_hi:[1,0,1]')
                    for r in R: a.e(f'v_pk_fma_f32 {v(acc+r,2)}, {v(acc+r,2)}, {v(ST+2*bb,2)}, {v(TMP+aa*16+r,2)} op_sel:[0,1,0] op_sel_hi:[1,1,1]')
                    if items: emit_items(a, [items.pop(0)])
                    for r in R:
                        a.e(f'v_max_f32 v{acc+r}, 0, v{acc+r}'); a.e(f'v_max_f32 v{acc+r+1}, 0, v{acc+r+1}')
                    for r in R: a.e(f'v_pk_mul_f32 {v(acc+r,2)}, {v(acc+r,2)}, {v(acc+r,2)}')
                    if items: emit_items(a, [items.pop(0)])
                    for j, r in enumerate(R): a.e(f'v_cvt_pk_bf16_f32 v{O+j}, v{acc+r}, v{acc+r+1}')
        emit_items(a, items)
        mid(a)
        a.e(f'v_lshlrev_b32 v{t}, 4, v{L}')
        n = 0
        for aa in range(2):
            a.e(f's_xor_b32 s72, s47, {2048*aa}'); a.e('s_add_u32 s72, s72, s69')
            for bb in range(2):
                for half in range(2):
                    O = self.OUTL[n]; n += 1
                    off = bb*112*1024 + half*1024
                    a.e(f's_add_u32 s46, s72, {off}')
                    a.e(f'buffer_store_dwordx4 {v(O,4)}, v{t}, {sq(R_WS)}, s46 offen {SC}', tag='hst')
    def publish(self, a, vt):
        a.e('s_lshr_b32 s69, s63, 7'); a.e('s_lshl_b32 s69, s69, 6'); a.e('s_lshr_b32 s72, s64, 7'); a.e('s_lshl_b32 s72, s72, 2'); a.e('s_add_u32 s69, s69, s72')
        a.e(f's_add_u32 s69, s69, s{S_WAVE}'); a.e(f's_lshl_b32 s69, s69, {FS}'); a.e(f's_add_u32 s69, s69, {FH}')
        publish(a, ['s69'], vt=vt, optional=True)

HC0 = 32768; HC_CH = 16640; KV0 = 0; KV_CH = 4608; RED0 = 2*KV_CH
class Conv:
    ACC, FA = 8, 64
    VF = 244
    def filter_setup(self, a):
        t = self.VF
        a.e('s_lshl_b32 s73, s2, 13')
        a.e(f'v_lshl_add_u32 v{t}, v0, 4, s73')
        a.e(f'v_subrev_u32 v{t+1}, 8, v{t}'); a.e(f'v_max_i32 v{t+1}, 0, v{t+1}')
        a.e(f'v_add_u32 v{t+2}, 4096, v{t}'); a.e(f'v_add_u32 v{t+3}, 4096, v{t+1}')
        a.e('s_lshl_b32 s74, s2, 2')
        a.e(f's_load_dword s75, {sp(P_SSMD)}, s74')
    def filter_items(self):
        t = self.VF
        R = sq(R_T)
        return [srd_items(P_SSMK, D*S*2) + [(f'buffer_load_dwordx4 {ac(A_HRAW,4)}, v{t}, {R}, 0 offen', 'hraw')], [(f'buffer_load_dwordx2 {ac(A_HRAW+4,2)}, v{t+1}, {R}, 0 offen', 'hraw')],
                [(f'buffer_load_dwordx4 {ac(A_HRAW+8,4)}, v{t+2}, {R}, 0 offen', 'hraw')], [(f'buffer_load_dwordx2 {ac(A_HRAW+6,2)}, v{t+3}, {R}, 0 offen', 'hraw')]]
    def payload(self, a, H):
        a.comment('conv: filter payloads')
        a.wait_vm('hraw')
        for i in range(12): a.e(f'v_accvgpr_read_b32 v{H+i}, a{A_HRAW+i}')
        a.e(f'v_cmp_eq_u32 vcc, 0, v0')
        W = H + 12
        for ch in range(2):
            d0 = H if ch == 0 else H + 8; dm = H + 4 if ch == 0 else H + 6
            a.e(f'v_cndmask_b32_e64 v{dm}, v{dm}, 0, vcc'); a.e(f'v_cndmask_b32_e64 v{dm+1}, v{dm+1}, 0, vcc')
            src = [dm+1, d0, d0+1, d0+2, d0+3]
            P = A_PAY + ch*16
            for j in range(4): a.e(f'v_accvgpr_write_b32 a{P+j}, v{d0+j}')
            for j in range(4): a.e(f'v_alignbit_b32 v{W+j}, v{src[j+1]}, v{src[j]}, 16')
            for j in range(4): a.e(f'v_accvgpr_write_b32 a{P+8+j}, v{src[j]}')
            for j in range(4): a.e(f'v_accvgpr_write_b32 a{P+4+j}, v{W+j}')
            for j in range(3): a.e(f'v_accvgpr_write_b32 a{P+13+j}, v{W+j}')
            a.e(f'v_alignbit_b32 v{W}, v{dm+1}, v{dm}, 16')
            a.e(f'v_accvgpr_write_b32 a{P+12}, v{W}')
    def flag_addr(self, a, vd):
        a.e('s_lshr_b32 s73, s2, 5'); a.e('s_lshl_b32 s73, s73, 2'); a.e('s_bfe_u32 s74, s2, 0x20003'); a.e('s_add_u32 s73, s73, s74')
        a.e(f's_lshl_b32 s73, s73, {5+FS}'); a.e(f's_add_u32 s73, s73, {FK}')
        a.e(f'v_and_b32 v{vd}, 31, v{V_LANE}'); a.e(f'v_lshl_add_u32 v{vd}, v{vd}, {FS}, s73')
    def load_kv(self, a, t):
        a.e('s_lshl_b32 s73, s2, 13'); a.e(f's_add_u32 s73, s73, {WS_KVT}')
        a.e(f'v_lshlrev_b32 v{t}, 4, v{V_LANE}')
        for j in range(8):
            if j % 4 == 0 and j: a.e('s_add_u32 s73, s73, 4096')
            a.e(f'buffer_load_dwordx4 {ac(224+4*j,4)}, v{t}, {sq(R_WS)}, s73 offen offset:{(j%4)*1024} {SC}', tag='kvl')
    def prep_hc(self, a, t):
        a.comment('conv: filter copies to LDS')
        a.e(f'v_lshlrev_b32 v{t}, 4, v0')
        a.e(f'v_add_u32 v{t+1}, {HC0 + 32}, v{t}')
        for ch in range(2):
            for r in range(4):
                a.e(f'ds_write_b128 v{t+1}, {ac(A_PAY + (ch*4+r)*4, 4)} offset:{ch*HC_CH + r*4160}', tag='hw')
        Z = t + 4
        a.e(f'v_mov_b64 {v(Z,2)}, 0'); a.e(f'v_mov_b64 {v(Z+2,2)}, 0')
        a.e(f'v_lshrrev_b32 v{t+2}, 1, v0'); a.e(f'v_and_b32 v{t+3}, 3, v{t+2}'); a.e(f'v_mul_u32_u24 v{t+3}, 4160, v{t+3}')
        a.e(f'v_bfe_u32 v{t+2}, v0, 3, 1'); a.e(f'v_mul_u32_u24 v{t+2}, {HC_CH}, v{t+2}'); a.e(f'v_add_u32 v{t+3}, v{t+3}, v{t+2}')
        a.e(f'v_and_b32 v{t+2}, 1, v0'); a.e(f'v_lshl_add_u32 v{t+3}, v{t+2}, 4, v{t+3}'); a.e(f'v_add_u32 v{t+3}, {HC0}, v{t+3}')
        a.e(f'v_subrev_u32 v{t+2}, 16, v0'); a.e(f'v_and_b32 v{t+8}, 31, v{t+2}'); a.e(f'v_lshlrev_b32 v{t+8}, 4, v{t+8}')
        a.e(f'v_bfe_u32 v{t+2}, v{t+2}, 5, 1'); a.e(f'v_mul_u32_u24 v{t+2}, {KV_CH}, v{t+2}'); a.e(f'v_add_u32 v{t+8}, v{t+8}, v{t+2}')
        a.e(f'v_cmp_gt_u32 vcc, 16, v0')
        a.e(f'v_cndmask_b32 v{t+3}, v{t+8}, v{t+3}, vcc')
        a.e(f'v_cmp_gt_u32 vcc, 80, v0')
        a.e('s_and_saveexec_b64 s[76:77], vcc')
        lab = a.newlabel('Lcz')
        a.e(f's_cbranch_execz {lab}')
        a.e(f'ds_write_b128 v{t+3}, {v(Z,4)}', tag='hw')
        a.label(lab)
        a.e('s_mov_b64 exec, s[76:77]')
    def prep(self, a):
        def f(a):
            t = 8
            a.e(f'v_lshlrev_b32 v{t}, 4, v{V_LANE}')
            a.wait_vm('kvl')
            for j in range(8):
                a.e(f'ds_write_b128 v{t}, {ac(224+4*j,4)} offset:{KV0 + (j//4)*KV_CH + 512 + (j%4)*1024}', tag='hw')
        on_wave0(a, f)
    def setup_main(self, a):
        L = V_LANE; VA_, VB_ = 2, 3; t = 4
        a.e(f's_lshr_b32 s76, s{S_WAVE}, 1'); a.e(f's_and_b32 s77, s{S_WAVE}, 1')
        a.e(f'v_bfe_u32 v{t}, v{L}, 2, 2'); a.e(f'v_mul_u32_u24 v{VA_}, 4160, v{t}')
        a.e(f'v_and_b32 v{t}, 3, v{L}'); a.e(f'v_lshl_add_u32 v{VA_}, v{t}, 3, v{VA_}')
        a.e(f'v_lshrrev_b32 v{t}, 4, v{L}'); a.e(f'v_lshlrev_b32 v{t}, 4, v{t}'); a.e(f'v_sub_u32 v{VA_}, v{VA_}, v{t}')
        a.e(f's_mul_i32 s78, s76, {HC_CH}'); a.e(f's_lshl_b32 s79, s77, 8'); a.e('s_add_u32 s78, s78, s79'); a.e(f's_add_u32 s78, s78, {HC0 + 56}')
        a.e(f'v_add_u32 v{VA_}, s78, v{VA_}')
        a.e(f'v_and_b32 v{t}, 15, v{L}'); a.e(f'v_lshlrev_b32 v{VB_}, 5, v{t}')
        a.e(f'v_lshrrev_b32 v{t}, 4, v{L}'); a.e(f'v_lshl_add_u32 v{VB_}, v{t}, 4, v{VB_}')
        a.e(f's_mul_i32 s78, s76, {KV_CH}'); a.e(f's_lshl_b32 s79, s77, 8'); a.e('s_sub_u32 s78, s78, s79'); a.e(f's_add_u32 s78, s78, {KV0 + 32 + 256}')
        a.e(f'v_add_u32 v{VB_}, s78, v{VB_}')
        for i in range(16): a.e(f'v_mov_b64 {v(self.ACC+2*i,2)}, 0')
    def main(self, a, hooks, vm_items):
        VA_, VB_ = 2, 3
        def rd(it, p):
            FA = self.FA + 64*p; res = []
            for j in range(8):
                res.append((f'ds_read_b64_tr_b16 {v(FA+4*j,2)}, v{VA_} offset:{512*j + 64*it + 8}', ('cA', it, j)))
                res.append((f'ds_read_b64_tr_b16 {v(FA+4*j+2,2)}, v{VA_} offset:{512*j + 64*it}', ('cA', it, j)))
                res.append((f'ds_read_b128 {v(FA+32+4*j,4)}, v{VB_} offset:{512*j + (3-it)*64}', ('cB', it, j)))
            return res
        for tx, tg in rd(0, 0): a.e(tx, tag=tg)
        for it in range(4):
            p = it & 1; FA = self.FA + 64*p
            fill = rd(it+1, p ^ 1) if it < 3 else []
            vmi = list(vm_items.get(it, lambda: [])())
            pairs = [(j1, d) for j1 in range(8) for d in range(8) if j1 + d <= 7]
            pairs.sort(key=lambda x: (max(x), x))
            seen = set(); nf = len(fill); k = 0; nv = len(vmi); kv = 0
            for idx, (j1, d) in enumerate(pairs):
                need = []
                if ('cA', it, j1) not in seen: need.append(('cA', it, j1)); seen.add(('cA', it, j1))
                if ('cB', it, d) not in seen: need.append(('cB', it, d)); seen.add(('cB', it, d))
                if need: a.wait_lg(need)
                q = j1 + d
                a.e(f'v_mfma_f32_16x16x32_bf16 {v(self.ACC+4*q,4)}, {v(FA+4*j1,4)}, {v(FA+32+4*d,4)}, {v(self.ACC+4*q,4)}')
                want = ((idx + 1) * nf) // 30
                while k < min(want, nf):
                    tx, tg = fill[k]; a.e(tx, tag=tg); k += 1
                wantv = ((idx + 1) * nv) // 36
                while kv < wantv:
                    emit_items(a, [vmi[kv]]); kv += 1
                if (it, idx) in hooks: hooks[(it, idx)](a)
            while k < nf:
                tx, tg = fill[k]; a.e(tx, tag=tg); k += 1
    def epilogue(self, a):
        L = V_LANE; t = 4
        a.e(f'v_lshlrev_b32 v{t}, 4, v{L}')
        a.e(f's_lshl_b32 s78, s{S_WAVE}, 12'); a.e(f's_add_u32 s78, s78, {RED0}'); a.e(f'v_add_u32 v{t+1}, s78, v{t}')
        a.e(f's_xor_b32 s79, s{S_WAVE}, 1'); a.e('s_lshl_b32 s79, s79, 12'); a.e(f's_add_u32 s79, s79, {RED0}'); a.e(f'v_add_u32 v{t+2}, s79, v{t}')
        lab1 = a.newlabel('Lce'); lab2 = a.newlabel('Lce'); K = 40
        a.e('s_cmp_eq_u32 s77, 0'); a.e(f's_cbranch_scc0 {lab1}')
        for j in range(4): a.e(f'ds_write_b128 v{t+1}, {v(self.ACC+16+4*j,4)} offset:{j*1024}')
        for j in range(8): a.e(f'v_mov_b64 {v(K+2*j,2)}, {v(self.ACC+2*j,2)}')
        a.e(f's_branch {lab2}')
        a.label(lab1)
        a.e('s_nop 7')
        for j in range(4): a.e(f'ds_write_b128 v{t+1}, {v(self.ACC+4*j,4)} offset:{j*1024}')
        for j in range(8): a.e(f'v_mov_b64 {v(K+2*j,2)}, {v(self.ACC+16+2*j,2)}')
        a.label(lab2)
        a.e('s_waitcnt lgkmcnt(0)')
        a.e('s_barrier')
        P, KVv, U, OO = 184, 200, 208, 220
        for j in range(4): a.e(f'ds_read_b128 {v(P+4*j,4)}, v{t+2} offset:{j*1024}', tag='red')
        a.e(f'v_and_b32 v{t}, 15, v{L}'); a.e(f'v_lshlrev_b32 v{t}, 5, v{t}'); a.e(f'v_lshrrev_b32 v{t+1}, 4, v{L}'); a.e(f'v_lshl_add_u32 v{t}, v{t+1}, 3, v{t}')
        a.e(f's_mul_i32 s78, s76, {KV_CH}'); a.e('s_lshl_b32 s79, s77, 11'); a.e('s_add_u32 s78, s78, s79'); a.e(f's_add_u32 s78, s78, {KV0+512}')
        a.e(f'v_add_u32 v{t+1}, s78, v{t}')
        for j in range(4): a.e(f'ds_read_b64 {v(KVv+2*j,2)}, v{t+1} offset:{j*512}', tag='kvv')
        a.e('s_lshl_b32 s78, s75, 16'); a.e('s_and_b32 s79, s75, 0xffff0000'); a.e('s_cmp_eq_u32 s76, 0'); a.e('s_cselect_b32 s78, s78, s79')
        a.e('s_lshl_b32 s79, s2, 1'); a.e('s_add_u32 s79, s79, s76'); a.e('s_lshl_b32 s79, s79, 12'); a.e('s_lshl_b32 s80, s77, 11'); a.e('s_add_u32 s79, s79, s80')
        a.e(f's_add_u32 s79, s79, {WS_Y2T}')
        a.wait_lg('red')
        for j in range(8): a.e(f'v_pk_add_f32 {v(K+2*j,2)}, {v(K+2*j,2)}, {v(P+2*j,2)}')
        a.wait_lg('kvv')
        for j in range(4):
            for e in range(2):
                unpack_lo(a, U+2*e, KVv+2*j+e); unpack_hi(a, U+2*e+1, KVv+2*j+e)
            for e in range(4): a.e(f'v_fmac_f32 v{K+4*j+e}, s78, v{U+e}')
            O = OO + 2*j
            a.e(f'v_cvt_pk_bf16_f32 v{O}, v{K+4*j}, v{K+4*j+1}'); a.e(f'v_cvt_pk_bf16_f32 v{O+1}, v{K+4*j+2}, v{K+4*j+3}')
            a.e(f'buffer_store_dwordx2 {v(O,2)}, v{t}, {sq(R_WS)}, s79 offen offset:{j*512} {SC}', tag='yst')
    def publish(self, a, vt):
        a.e('s_lshr_b32 s78, s2, 5'); a.e('s_lshl_b32 s78, s78, 1'); a.e('s_add_u32 s78, s78, s77'); a.e('s_lshl_b32 s78, s78, 6')
        a.e('s_and_b32 s79, s2, 31'); a.e('s_lshl_b32 s79, s79, 1'); a.e('s_add_u32 s78, s78, s79'); a.e('s_add_u32 s78, s78, s76')
        a.e(f's_lshl_b32 s78, s78, {FS}'); a.e(f's_add_u32 s78, s78, {FY}')
        publish(a, ['s78'], vt=vt)

Y2L = 0; RED2 = 8192
class Gemm2:
    ACC, RB, NR, E = 8, 72, 14, 184
    VW0, VW1 = 240, 241
    VH0, VH1 = 218, 219
    def decode(self, a):
        a.e('s_and_b32 s81, s2, 7'); a.e('s_lshl_b32 s81, s81, 8'); a.e('s_lshr_b32 s82, s2, 3'); a.e('s_and_b32 s83, s82, 3'); a.e('s_lshl_b32 s84, s83, 6'); a.e('s_add_u32 s81, s81, s84')
        a.e('s_lshr_b32 s82, s82, 2')
        if Opt.rot2:
            a.e('s_mul_i32 s84, s82, 7'); a.e('s_lshr_b32 s84, s84, 1'); a.e('s_mul_i32 s83, s83, 7'); a.e('s_add_u32 s84, s84, s83')
            a.e('s_cmp_ge_u32 s84, 28'); a.e('s_cselect_b32 s83, 28, 0'); a.e('s_sub_u32 s84, s84, s83')
        else:
            a.e('s_mov_b32 s84, 0')
        a.e('s_lshl_b32 s84, s84, 10'); a.e('s_mov_b32 s86, s84')
        a.e('s_lshl_b32 s82, s82, 6')
        a.e('s_lshr_b32 s83, s82, 5'); a.e('s_mul_i32 s83, s83, 112'); a.e(f's_mul_i32 s45, s{S_WAVE}, 28'); a.e('s_add_u32 s83, s83, s45')
        a.e('s_lshl_b32 s83, s83, 10'); a.e(f's_add_u32 s83, s83, {WS_W2F}')
        a.e('s_lshr_b32 s85, s81, 5'); a.e('s_mul_i32 s85, s85, 112'); a.e('s_add_u32 s85, s85, s45')
        a.e('s_lshl_b32 s85, s85, 10'); a.e(f's_add_u32 s85, s85, {WS_H}')
    def wflag_addr(self, a, vd):
        a.e(f'v_and_b32 v{vd}, 31, v{V_LANE}'); a.e(f'v_lshlrev_b32 v{vd}, {FS}, v{vd}'); a.e(f'v_add_u32 v{vd}, {FW}, v{vd}')
    def touch_items(self, vt, s_ok):
        return [[('s_lshl_b32 s45, s62, 2', None), (f's_add_u32 s45, s45, s{S_WAVE}', None), ('s_lshl_b32 s45, s45, 14', None), (f's_add_u32 s45, s45, {WS_W2F}', None),
                 (f's_cmp_eq_u32 s{s_ok}, 1', None), ('s_cselect_b32 s45, s45, 0x20000000', None), (f'v_lshlrev_b32 v{vt}, 7, v{V_LANE}', None),
                 (f'buffer_load_dword v{vt+1}, v{vt}, {sq(R_WS)}, s45 offen {SC}', 'touch')],
                [('s_add_u32 s45, s45, 8192', None), (f'buffer_load_dword v{vt+2}, v{vt}, {sq(R_WS)}, s45 offen {SC}', 'touch')]]
    def w_setup(self, a):
        a.e(f'v_lshlrev_b32 v{self.VW0}, 4, v{V_LANE}'); a.e(f'v_add_u32 v{self.VW1}, {112*1024}, v{self.VW0}')
    def adv(self, cur):
        return [(f's_add_u32 s{cur}, s{cur}, 1024', None), (f's_cmp_eq_u32 s{cur}, {28*1024}', None), (f's_cselect_b32 s{cur}, 0, s{cur}', None)]
    def w_items(self, lo, hi):
        items = []
        for i in range(lo, hi):
            items.append([('s_add_u32 s45, s83, s84', None), (f'buffer_load_dwordx4 {ac((i*2)*4,4)}, v{self.VW0}, {sq(R_WS)}, s45 offen {SC}', ('w2', i))])
            items.append([(f'buffer_load_dwordx4 {ac((i*2+1)*4,4)}, v{self.VW1}, {sq(R_WS)}, s45 offen {SC}', ('w2', i))] + self.adv(84))
        return items
    def hflag_addr(self, a, vd):
        a.e('s_lshr_b32 s45, s81, 7'); a.e(f's_lshl_b32 s45, s45, {6+FS}'); a.e(f's_add_u32 s45, s45, {FH}')
        a.e('s_bfe_u32 s89, s81, 0x10006'); a.e(f's_lshl_b32 s89, s89, {1+FS}'); a.e('s_add_u32 s45, s45, s89')
        a.e(f'v_lshrrev_b32 v{vd}, 1, v{V_LANE}'); a.e(f'v_min_u32 v{vd}, 13, v{vd}'); a.e(f'v_lshlrev_b32 v{vd}, 2, v{vd}'); a.e(f'v_and_b32 v{vd+1}, 1, v{V_LANE}'); a.e(f'v_add_u32 v{vd}, v{vd}, v{vd+1}')
        a.e(f'v_lshl_add_u32 v{vd}, v{vd}, {FS}, s45')
    def yflag_addr(self, a, vd):
        a.e('s_lshr_b32 s45, s82, 6'); a.e('s_lshl_b32 s45, s45, 1'); a.e('s_lshr_b32 s89, s81, 10'); a.e('s_add_u32 s45, s45, s89'); a.e(f's_lshl_b32 s45, s45, {6+FS}'); a.e(f's_add_u32 s45, s45, {FY}')
        a.e(f'v_lshl_add_u32 v{vd}, v{V_LANE}, {FS}, s45')
    def h_items(self, i):
        r = self.RB + (i % self.NR)*8
        return [[('s_add_u32 s45, s85, s86', None), (f'buffer_load_dwordx4 {v(r,4)}, v{self.VH0}, {sq(R_WS)}, s45 offen {SC}', ('h', i))],
                [(f'buffer_load_dwordx4 {v(r+4,4)}, v{self.VH1}, {sq(R_WS)}, s45 offen {SC}', ('h', i))] + self.adv(86)]
    def start(self, a):
        a.e(f'v_lshlrev_b32 v{self.VH0}, 4, v{V_LANE}'); a.e(f'v_add_u32 v{self.VH1}, {112*1024}, v{self.VH0}')
        for i in range(self.NR): emit_items(a, self.h_items(i))
    def init_acc(self, a):
        for i in range(32): a.e(f'v_mov_b64 {v(self.ACC+2*i,2)}, 0')
    def main(self, a, hooks):
        a.comment('gemm2: main')
        for kl in range(28):
            a.wait_vm([('h', kl), ('w2', kl)])
            r = self.RB + (kl % self.NR)*8
            nxt = self.h_items(kl + self.NR) if kl + self.NR < 28 else []
            n = 0
            for aa in range(2):
                for bb in range(2):
                    acc = self.ACC + (aa*2+bb)*16
                    a.e(f'v_mfma_f32_32x32x16_bf16 {v(acc,16)}, {ac((kl*2+aa)*4,4)}, {v(r+4*bb,4)}, {v(acc,16)}')
                    if aa == 1 and nxt: emit_items(a, [nxt.pop(0)])
            if kl in hooks: hooks[kl](a)
    def issue_epi_loads(self, a):
        L = V_LANE; E = self.E
        a.e(f's_and_b32 s87, s{S_WAVE}, 1'); a.e(f's_lshr_b32 s88, s{S_WAVE}, 1')
        a.e(f'v_and_b32 v3, 31, v{L}'); a.e('s_lshl_b32 s89, s88, 5'); a.e('s_add_u32 s89, s89, s81'); a.e('v_add_u32 v3, s89, v3')
        a.e(f'v_lshrrev_b32 v4, 5, v{L}'); a.e('v_lshlrev_b32 v4, 2, v4'); a.e('s_lshl_b32 s89, s87, 5'); a.e('s_add_u32 s89, s89, s82'); a.e('v_add_u32 v4, s89, v4')
        a.e('v_lshlrev_b32 v5, 10, v3'); a.e('v_lshl_add_u32 v5, v4, 1, v5')
        srd(a, R_T, P_Q, S*D*2)
        for q in range(4): a.e(f'buffer_load_dwordx2 {v(E+2*q,2)}, v5, {sq(R_T)}, 0 offen offset:{q*16}', tag='ex')
        a.e('v_lshlrev_b32 v6, 1, v4')
        srd(a, R_T, P_B2, D*2)
        for q in range(4): a.e(f'buffer_load_dwordx2 {v(E+8+2*q,2)}, v6, {sq(R_T)}, 0 offen offset:{q*16}', tag='eb')
        a.e('v_and_b32 v7, 1, v3'); a.e('v_lshrrev_b32 v6, 1, v3'); a.e('v_lshlrev_b32 v6, 7, v6'); a.e('v_lshl_add_u32 v6, v7, 3, v6'); a.e(f'v_add_u32 v6, {WS_ST}, v6')
        a.e(f'buffer_load_dwordx2 {v(E+16,2)}, v6, {sq(R_WS)}, 0 offen {SC}', tag='es')
    YR = 220
    def load_y2(self, a):
        L = V_LANE
        a.e(f'v_lshrrev_b32 v6, 3, v{L}'); a.e('v_add_u32 v6, s82, v6'); a.e('v_lshlrev_b32 v6, 12, v6')
        a.e(f'v_and_b32 v7, 7, v{L}'); a.e('v_lshl_add_u32 v6, v7, 4, v6')
        a.e('s_lshl_b32 s89, s81, 1'); a.e(f's_add_u32 s89, s89, {WS_Y2T}')
        for j in range(8):
            a.e(f'buffer_load_dwordx4 {v(self.YR+4*j,4)}, v6, {sq(R_WS)}, s89 offen {SC}', tag='ey')
            if j < 7: a.e(f's_add_u32 s89, s89, {8*4096}')
    def epilogue(self, a):
        L = V_LANE; E = self.E
        a.e('s_barrier')
        R = 72
        a.e(f'v_lshlrev_b32 v6, 4, v{L}'); a.e(f's_lshl_b32 s89, s{S_WAVE}, 12'); a.e(f'v_add_u32 v7, s89, v6')
        for j in range(4):
            aa, bb = j & 1, j >> 1
            acc = self.ACC + (aa*2+bb)*16
            own = a.newlabel('Lown'); nx = a.newlabel('Lnx')
            a.e(f's_cmp_eq_u32 s{S_WAVE}, {j}'); a.e(f's_cbranch_scc1 {own}')
            for qd in range(4):
                a.e(f'ds_write_b128 v7, {v(acc+4*qd,4)} offset:{RED2 + j*16384 + qd*1024}')
            a.e(f's_branch {nx}')
            a.label(own)
            if j == 0: a.e('s_nop 7')
            for i in range(8): a.e(f'v_mov_b64 {v(R+2*i,2)}, {v(acc+2*i,2)}')
            a.label(nx)
        def f(a):
            a.wait_vm('ey')
            for j in range(8): a.e(f'ds_write_b128 v6, {v(self.YR+4*j,4)} offset:{Y2L + j*1024}')
        on_wave0(a, f)
        a.e('s_waitcnt lgkmcnt(0)')
        a.e('s_barrier')
        for k in range(1, 4):
            a.e(f's_add_u32 s89, s{S_WAVE}, {k}'); a.e('s_and_b32 s89, s89, 3'); a.e('s_lshl_b32 s89, s89, 12')
            a.e(f's_lshl_b32 s45, s{S_WAVE}, 14'); a.e('s_add_u32 s89, s89, s45'); a.e(f'v_add_u32 v7, s89, v6')
            for qd in range(4):
                a.e(f'ds_read_b128 {v(R+k*16+4*qd,4)}, v7 offset:{RED2 + qd*1024}', tag=('rr', k))
        Y = 136
        a.e(f'v_lshrrev_b32 v6, 5, v{L}'); a.e('v_lshlrev_b32 v6, 2, v6'); a.e(f'v_bfe_u32 v7, v{L}, 2, 2'); a.e('v_add_u32 v6, v6, v7')
        a.e('s_lshl_b32 s89, s87, 5'); a.e('v_add_u32 v6, s89, v6'); a.e('v_lshlrev_b32 v6, 7, v6')
        a.e(f'v_bfe_u32 v7, v{L}, 4, 1'); a.e('v_lshl_add_u32 v6, v7, 5, v6'); a.e(f'v_and_b32 v7, 3, v{L}'); a.e('v_lshl_add_u32 v6, v7, 3, v6')
        a.e('s_lshl_b32 s89, s88, 6'); a.e('v_add_u32 v6, s89, v6')
        for q in range(4): a.e(f'ds_read_b64_tr_b16 {v(Y+2*q,2)}, v6 offset:{Y2L + q*1024}', tag='yt')
        a.wait_vm(['ex', 'eb', 'es'])
        unpack_hi(a, E+17, E+16); unpack_lo(a, E+16, E+16)
        a.e(f'v_rcp_f32 v{E+17}, v{E+17}')
        a.wait_lg(('rr', 1))
        for i in range(8): a.e(f'v_pk_add_f32 {v(R+2*i,2)}, {v(R+2*i,2)}, {v(R+16+2*i,2)}')
        a.e(f'v_mul_f32 v{E+18}, v{E+16}, v{E+17}'); a.e(f'v_xor_b32 v{E+18}, 0x80000000, v{E+18}')
        a.wait_lg(('rr', 3))
        for i in range(8): a.e(f'v_pk_add_f32 {v(R+32+2*i,2)}, {v(R+32+2*i,2)}, {v(R+48+2*i,2)}')
        for i in range(8): a.e(f'v_pk_add_f32 {v(R+2*i,2)}, {v(R+2*i,2)}, {v(R+32+2*i,2)}')
        a.wait_lg('yt')
        U = 144
        srd(a, R_T, P_OUT, S*D*2)
        for q in range(4):
            for e in range(2):
                unpack_lo(a, U+2*e, E+2*q+e); unpack_hi(a, U+2*e+1, E+2*q+e)
                unpack_lo(a, U+4+2*e, E+8+2*q+e); unpack_hi(a, U+4+2*e+1, E+8+2*q+e)
                unpack_lo(a, U+8+2*e, Y+2*q+e); unpack_hi(a, U+8+2*e+1, Y+2*q+e)
            for e in range(4): a.e(f'v_add_f32 v{R+4*q+e}, v{R+4*q+e}, v{U+4+e}')
            for e in range(4): a.e(f'v_mul_f32 v{U+12+e}, 0xbfb8aa3b, v{R+4*q+e}')
            for e in range(4): a.e(f'v_exp_f32 v{U+12+e}, v{U+12+e}')
            for e in range(4): a.e(f'v_fma_f32 v{U+4+e}, v{U+e}, v{E+17}, v{E+18}')
            for e in range(4): a.e(f'v_add_f32 v{U+12+e}, 1.0, v{U+12+e}')
            for e in range(4): a.e(f'v_rcp_f32 v{U+12+e}, v{U+12+e}')
            for e in range(4): a.e(f'v_mul_f32 v{U+4+e}, v{U+4+e}, v{U+8+e}')
            for e in range(4): a.e(f'v_mul_f32 v{U+12+e}, v{U+12+e}, v{R+4*q+e}')
            for e in range(4): a.e(f'v_fma_f32 v{U+e}, v{U+4+e}, v{U+12+e}, v{U+e}')
            O = 160 + 2*q
            a.e(f'v_cvt_pk_bf16_f32 v{O}, v{U}, v{U+1}'); a.e(f'v_cvt_pk_bf16_f32 v{O+1}, v{U+2}, v{U+3}')
            a.e(f'buffer_store_dwordx2 {v(O,2)}, v5, {sq(R_T)}, 0 offen offset:{q*16}', tag='ost')

def fused_body(a):
    end = 'Lend'
    a.e('s_cmp_ge_u32 s2, 256'); a.e(f's_cbranch_scc1 {end}')
    a.e('s_load_dwordx16 s[4:19], s[0:1], 0'); a.e('s_load_dwordx8 s[20:27], s[0:1], 64'); a.e('s_load_dwordx4 s[28:31], s[0:1], 96')
    a.e(f'v_and_b32 v{V_LANE}, 63, v0'); a.e('v_lshrrev_b32 v2, 6, v0'); a.e('s_nop 0'); a.e(f'v_readfirstlane_b32 s{S_WAVE}, v2')
    if Opt.stamps: a.e('v_mov_b32 v255, 0')
    stamp(a, 'start'); stamp(a, 'cyc0', True)
    pre, g1, cv, g2 = Pre(), Gemm1(), Conv(), Gemm2()
    if Opt.codepf:
        lab = a.newlabel('Lcpf')
        a.e('s_and_b32 s90, s2, 0x38'); a.e('s_cmp_lg_u32 s90, 0'); a.e(f's_cbranch_scc1 {lab}')
        a.e('s_getpc_b64 s[90:91]')
        a.label('Lpcbase')
        a.e('v_lshlrev_b32 v63, 7, v0')
        a.e('v_min_u32 v63, Lend-Lpcbase, v63')
        a.e('global_load_dword v63, v63, s[90:91]', tag='cpf', optional=True)
        a.label(lab)
    g1.decode(a)
    a.e('s_waitcnt lgkmcnt(0)')
    stamp(a, 'kernarg')
    srd(a, R_WS, P_WS, WS_SIZE)
    pre.issue_stats(a)
    g2.decode(a)
    idle = 'Lidle'; join = 'Ljoin'
    a.e('s_cmp_ge_u32 s62, 28'); a.e(f's_cbranch_scc1 {idle}')
    saved0 = (list(a.vm), list(a.lg))
    g1.setup(a)
    if 'cold' in SCHEDS[Opt.sched]['first']:
        pre.setup(a); emit_items(a, pre.items())
        emit_items(a, g1.dma_items(0)); emit_items(a, g1.dma_items(1))
    else:
        emit_items(a, g1.dma_items(0)); emit_items(a, g1.dma_items(1))
        pre.setup(a)
    cv.filter_setup(a); g1.b1_setup(a)
    g1.setup2(a)
    stamp(a, 'issued')
    pre.stats(a)
    stamp(a, 'stats_done')
    if SCHEDS[Opt.sched]['pre'] < 0:
        pre.compute(a); stamp(a, 'pre_done')
    VS, VFK, VFW = 32, 34, 35
    S_PUB, S_WOK = 100, 101
    def hpre(a):
        pre.compute(a); stamp(a, 'pre_done')
    def hpay(a): cv.payload(a, 188)
    def hspoll(a):
        g1.stats_addr(a, VS)
        poll_issue(a, VS, g1.ST, 2, tag='spoll'); poll_issue(a, VS+1, g1.ST+2, 2, tag='spoll')
    def hpoll(a):
        def f(a):
            cv.flag_addr(a, VFK); poll_issue(a, VFK, 36)
        on_wave0(a, f)
    def hw0(a):
        wcheck(a); g2.w_setup(a)
    def hwpoll(a):
        g2.wflag_addr(a, VFW); poll_issue(a, VFW, 38, 1, tag='wpoll')
    def hweval(a):
        a.wait_vm('wpoll')
        a.e(f'v_cmp_ne_u32 vcc, s{S_TAG}, v38'); a.e('s_cmp_eq_u64 vcc, 0'); a.e(f's_cselect_b32 s{S_WOK}, 1, 0')
    def wcheck(a):
        lab = a.newlabel('Lwk')
        a.e(f's_cmp_eq_u32 s{S_WOK}, 1'); a.e(f's_cbranch_scc1 {lab}')
        saved = (list(a.vm), list(a.lg))
        a.opt_depth = getattr(a, 'opt_depth', 0) + 1
        poll_issue(a, VFW, 38, 1, tag='wpoll2')
        poll_check(a, [(VFW, 38, 1, 38)], tag='wpoll2')
        a.opt_depth -= 1; a._issued = []
        a.vm, a.lg = saved
        a.label(lab)
    def hkv(a):
        def f(a):
            poll_check(a, [(VFK, 36, 1, 36)])
            cv.load_kv(a, 37)
        on_wave0(a, f)
        stamp(a, 'flags_ok')
    def hmid(a):
        stamp(a, 'epi_comp')
    S_PUB2 = 99
    def hstore(a):
        pre.store_stats(a); pre.store_kv(a)
        a.e(f's_mov_b32 s{S_PUB2}, 0')
    def trypre(a, block=False):
        lab = a.newlabel('Ltq')
        a.e(f's_cmp_lg_u32 s{S_PUB2}, 0'); a.e(f's_cbranch_scc1 {lab}')
        saved = (list(a.vm), list(a.lg))
        idx = [i for i, (t, c) in enumerate(a.vm) if t == 'prest']
        if idx:
            n = len([x for x in a.vm[idx[-1]+1:] if not x[1].endswith('?')])
            if block: a.e(f's_waitcnt vmcnt({n})')
            else:
                a.e('s_getreg_b32 s90, hwreg(HW_REG_IB_STS)'); a.e('s_and_b32 s91, s90, 15'); a.e('s_lshr_b32 s90, s90, 18'); a.e('s_and_b32 s90, s90, 0x30'); a.e('s_or_b32 s90, s90, s91')
                a.e(f's_cmp_gt_u32 s90, {n}'); a.e(f's_cbranch_scc1 {lab}')
        a.vm, a.lg = saved
        pre.publish(a, 56, optional=True)
        a.e(f's_mov_b32 s{S_PUB2}, 1')
        a.label(lab)
    def hpub(a):
        a.wait_vm('prest'); pre.publish(a, 42)
    sched = SCHEDS[Opt.sched]
    hooks = {}
    def addhook(st, f):
        prev = hooks.get(st)
        hooks[st] = (lambda a, p=prev, f=f: (p(a) if p else None, f(a)))
    if sched['pre'] >= 0: addhook(sched['pre'], hpre)
    addhook(sched['pay'], hpay)
    if Opt.defer:
        addhook(6, hstore)
    else:
        addhook(sched['pre'], lambda a: a.e(f's_mov_b32 s{S_PUB2}, 0'))
        addhook(5, trypre); addhook(6, trypre)
    addhook(7, trypre); addhook(7, hpoll)
    addhook(sched['pre'], hwpoll); addhook(5, hspoll); addhook(7, hw0)
    def items_for(st):
        L = []
        for nm in sched['items'].get(st, []):
            if nm.startswith('s'): L += g1.dma_items(int(nm[1:]))
            elif nm == 'cold': L += pre.items()
            elif nm == 'filt': L += cv.filter_items()
            elif nm == 'b1': L += g1.b1_items()
            elif nm == 'weval': L += [hweval]
            elif nm == 'touch' and Opt.touch: L += g2.touch_items(252, S_WOK)
            elif nm == 'w2a': L += g2.w_items(0, 4)
        return L
    g1.main(a, hooks, {st: (lambda st=st: items_for(st)) for st in range(8)})
    stamp(a, 'g1_main'); stamp(a, 'cycB', True)
    g1.epilogue_a(a)
    trypre(a)
    cv.prep_hc(a, 8)
    trypre(a)
    poll_check(a, [(VS, g1.ST, 2, g1.ST+1), (VS+1, g1.ST+2, 2, g1.ST+3)], tag='spoll')
    stamp(a, 'stats_ok')
    trypre(a, True)
    stamp(a, 'pre_pub')
    hkv(a)
    g1.epilogue(a, hmid, lambda a: None, lambda a: None, g2.w_items(0, 8))
    stamp(a, 'g1_epi')
    a.e(f's_mov_b32 s{S_PUB}, 0')
    cv.prep(a)
    after_g1 = (list(a.vm), list(a.lg))
    a.e(f's_branch {join}')
    a.label(idle)
    a.vm, a.lg = list(saved0[0]), list(saved0[1])
    w2t = W2T()
    w2t.issue(a)
    pre.setup(a); cv.filter_setup(a)
    emit_items(a, pre.items()); emit_items(a, cv.filter_items())
    w2t.compute(a)
    a.wait_vm('w2st')
    a.e('s_barrier')
    pre.tag(a)
    on_wave0(a, lambda a: w2t.publish(a, 10))
    pre.stats(a, True)
    if Opt.defer: pre.store_stats(a)
    pre.compute(a)
    if Opt.defer: pre.store_kv(a)
    cv.payload(a, 188)
    a.e('s_waitcnt vmcnt(0)')
    pre.publish(a, 42)
    a.e('s_barrier')
    cv.prep_hc(a, 8)
    def idlepoll(a):
        cv.flag_addr(a, VFK); g2.wflag_addr(a, VFW)
        a.e('s_sleep 32')
        poll_issue(a, VFW, 38, 1)
        poll_check(a, [(VFW, 38, 1, 38)], sleep=16)
        poll_issue(a, VFK, 36)
        poll_check(a, [(VFK, 36, 1, 36)], sleep=16)
        cv.load_kv(a, 37)
    on_wave0(a, idlepoll)
    a.e('s_barrier')
    a.e(f's_mov_b32 s{S_PUB}, 1')
    g2.w_setup(a); emit_items(a, g2.w_items(0, 8))
    cv.prep(a)
    a.label(join)
    a.vm, a.lg = after_g1
    cv.setup_main(a)
    a.e('s_waitcnt lgkmcnt(0)')
    a.e('s_barrier')
    stamp(a, 'conv_prep'); stamp(a, 'cycC', True)
    def trypub(a, block=False):
        lab = a.newlabel('Ltp')
        a.e(f's_cmp_lg_u32 s{S_PUB}, 0'); a.e(f's_cbranch_scc1 {lab}')
        saved = (list(a.vm), list(a.lg))
        idx = [i for i, (t, c) in enumerate(a.vm) if t == 'hst']
        if idx:
            n = len([x for x in a.vm[idx[-1]+1:] if not x[1].endswith('?')])
            if block: a.e(f's_waitcnt vmcnt({n})')
            else:
                a.e('s_getreg_b32 s90, hwreg(HW_REG_IB_STS)'); a.e('s_and_b32 s91, s90, 15'); a.e('s_lshr_b32 s90, s90, 18'); a.e('s_and_b32 s90, s90, 0x30'); a.e('s_or_b32 s90, s90, s91')
                a.e(f's_cmp_gt_u32 s90, {n}'); a.e(f's_cbranch_scc1 {lab}')
        a.vm, a.lg = saved
        g1.publish(a, 4)
        a.e(f's_mov_b32 s{S_PUB}, 1')
        a.label(lab)
    ch = {(0, 17): trypub, (0, 35): trypub, (1, 17): trypub, (1, 35): trypub, (2, 17): trypub, (2, 35): trypub, (3, 35): lambda a: trypub(a, True)}
    cv.main(a, ch, {0: lambda: g2.w_items(8, 13), 1: lambda: g2.w_items(13, 18), 2: lambda: g2.w_items(18, 23), 3: lambda: g2.w_items(23, 28)})
    stamp(a, 'conv_main'); stamp(a, 'cycD', True)
    def hf(a):
        g2.hflag_addr(a, 216); poll_issue(a, 216, 217)
    on_wave0(a, hf)
    cv.epilogue(a)
    stamp(a, 'conv_epi')
    g2.init_acc(a)
    on_wave0(a, lambda a: poll_check(a, [(216, 217, 1, 217)], sleep=2))
    a.e('s_barrier')
    stamp(a, 'hflag_ok')
    g2.start(a)
    a.wait_vm('yst'); cv.publish(a, 3)
    def k0(a):
        stamp(a, 'g2_k0')
    def k8(a):
        g2.issue_epi_loads(a)
        def f(a):
            g2.yflag_addr(a, 212); poll_issue(a, 212, 213)
        on_wave0(a, f)
        lab = a.newlabel('Lfar')
        a.e('s_cmp_lg_u32 s2, 0'); a.e(f's_cbranch_scc1 {lab}')
        a.e(f'v_lshlrev_b32 v214, {FS}, v0'); a.e(f'v_add_u32 v214, {FAR}, v214')
        a.e(f'buffer_load_dword v215, v214, {sq(R_WS)}, 0 offen sc1', tag='far', optional=True)
        a.label(lab)
    def k20(a):
        stamp(a, 'g2_k20')
        def f(a):
            poll_check(a, [(212, 213, 1, 213)], sleep=2)
            g2.load_y2(a)
        on_wave0(a, f)
        stamp(a, 'yflag_ok')
    g2.main(a, {0: k0, 8: k8, 23: k20})
    stamp(a, 'g2_main')
    g2.epilogue(a)
    lab = a.newlabel('Lfin')
    a.e('s_cmp_lg_u32 s2, 0'); a.e(f's_cbranch_scc1 {lab}')
    poll_check(a, [(214, 215, 1, 215)], tag='far')
    a.e('s_barrier')
    a.e(f's_cmp_lg_u32 s{S_WAVE}, 0'); a.e(f's_cbranch_scc1 {lab}')
    a.e(f's_mov_b32 s90, {WS_E}')
    publish(a, ['s90'], vt=2)
    a.label(lab)
    stamp(a, 'end'); stamp(a, 'cyc1', True)
    write_stamps(a)
    a.label(end)
    a.e('s_endpgm')

def header():
    ref = open('cdna_kernels/' + NAME + '.s.ref').read().split('\n')
    hdr = []
    for ln in ref:
        if ln.startswith('; @launch') or ln.startswith('; Override') or ln.startswith('; grid=ceil'): break
        hdr.append(ln)
    return '\n'.join(hdr) + '\n'

def fused():
    name = NAME + '_kernel'
    a = Asm()
    fused_body(a)
    n = a.fix_hazards()
    out = header() + '; @launch grid=(256,1,1) block=(256,1,1) lds=163840\n'
    out += '.amdgcn_target "amdgcn-amd-amdhsa--gfx950"\n.text\n'
    out += f'.globl {name}\n.p2align 8\n.type {name},@function\n{name}:\n' + a.text()
    out += f'''.section .rodata,"a"
.p2align 6
.amdhsa_kernel {name}
  .amdhsa_next_free_vgpr 512
  .amdhsa_next_free_sgpr 102
  .amdhsa_accum_offset 256
  .amdhsa_group_segment_fixed_size 0
  .amdhsa_kernarg_size 112
  .amdhsa_user_sgpr_count 2
  .amdhsa_user_sgpr_kernarg_segment_ptr 1
  .amdhsa_system_sgpr_workgroup_id_x 1
.end_amdhsa_kernel
'''
    return out

if __name__ == '__main__':
    dst = sys.argv[1]
    for o in sys.argv[2:]:
        k, val = o.split('='); setattr(Opt, k, int(val))
    txt = fused()
    if Opt.stamps: open(dst + '.names', 'w').write(' '.join(STAMP_NAMES))
    open(dst, 'w').write(txt)
    print('wrote', dst, len(txt), 'bytes')
```

```python
import sys, os
sys.path.insert(0, os.path.dirname(os.path.abspath(__file__)))
from asmlib import Asm

NAME = 'recurrent_scan__ssm_conv_h3__dense_activation_squared_relu__prompt'
S, D, F = 2048, 512, 1792
WS_KVT, WS_Y2T, WS_W2F, WS_H, WS_ST, WS_FLAG = 0x000000, 0x200000, 0x400000, 0x600000, 0xE80000, 0xE10000
WS_E = 0xE08000
FK, FW, FAR, FH, FY = 0xE10000, 0xE30000, 0xE34000, 0xE40000, 0xE60000
FS = 7
S_TAG, S_SPIN = 16, 17
TAGC = 0x9E3779B9
SPIN_MAX = 100000
WS_STAMP = 0xF00000
WS_SIZE = 0x10000000
SCHEDS = {0: {'pre': 4, 'pay': 5, 'pub': 6, 'spoll': 5, 'touch': 7, 'first': [],
              'items': {0: ['s2'], 1: ['s3', 'cold', 'filt', 'b1'], 2: ['s4'], 3: ['s5'], 4: ['s6'], 5: ['s7', 'weval', 'touch']}},
          1: {'pre': 3, 'pay': 6, 'pub': 5, 'spoll': 5, 'touch': 7, 'first': [],
              'items': {0: ['s2', 'cold'], 1: ['s3'], 2: ['s4', 'filt'], 3: ['s5', 'b1'], 4: ['s6'], 5: ['s7']}}}
class Opt:
    stamps = 0
    codepf = 1
    dbgwg = -1
    stagestamps = 0
    sched = 0
    defer = 0
    hearly = 8
    g2map = 0
    nw1 = 10
    touch = 1
    rot1 = 1
    rot2 = 1
    prestage = 2
P_Q, P_K, P_V, P_SK, P_SSMK, P_SSMD, P_BX, P_W1 = 4, 6, 8, 10, 12, 14, 16, 18
P_B1, P_W2, P_B2, P_OUT, P_DBG, P_WS = 20, 22, 24, 26, 28, 30
S_WAVE = 3
R_WS, R_A, R_B, R_C = 32, 36, 40, 44
def sp(p): return f's[{p}:{p+1}]'
def sq(r): return f's[{r}:{r+3}]'
def v(i, n=1): return f'v{i}' if n == 1 else f'v[{i}:{i+n-1}]'
def ac(i, n=1): return f'a{i}' if n == 1 else f'a[{i}:{i+n-1}]'
def srd(a, dst, ptr, size):
    a.e(f's_mov_b32 s{dst}, s{ptr}'); a.e(f's_mov_b32 s{dst+1}, s{ptr+1}')
    a.e(f's_mov_b32 s{dst+2}, {hex(size)}'); a.e(f's_mov_b32 s{dst+3}, 0x20000')
V_LANE = 1
R_T = 92
def srd_items(ptr, size, R=R_T):
    return [(f's_mov_b32 s{R}, s{ptr}', None), (f's_mov_b32 s{R+1}, s{ptr+1}', None), (f's_mov_b32 s{R+2}, {hex(size)}', None), (f's_mov_b32 s{R+3}, 0x20000', None)]
def unpack_lo(a, d, s): a.e(f'v_lshlrev_b32 v{d}, 16, v{s}')
def unpack_hi(a, d, s): a.e(f'v_and_b32 v{d}, 0xffff0000, v{s}')

STAMP_NAMES = []
def stamp(a, name, cyc=False):
    if not Opt.stamps: return
    if name not in STAMP_NAMES: STAMP_NAMES.append(name)
    i = STAMP_NAMES.index(name)
    a.e('s_memtime s[90:91]' if cyc else 's_memrealtime s[90:91]'); a.e('s_waitcnt lgkmcnt(0)'); a.e(f'v_writelane_b32 v255, s90, {i}')
def write_stamps(a):
    if not Opt.stamps: return
    a.e(f's_lshl_b32 s90, s2, 2'); a.e(f's_add_u32 s90, s90, s{S_WAVE}'); a.e('s_lshl_b32 s90, s90, 8'); a.e(f's_add_u32 s90, s90, {WS_STAMP}')
    a.e(f'v_lshlrev_b32 v2, 2, v{V_LANE}')
    a.e(f'buffer_store_dword v255, v2, {sq(R_WS)}, s90 offen')
    if Opt.dbgwg >= 0:
        lab = a.newlabel('Ldbg')
        a.e(f's_cmp_lg_u32 s2, {Opt.dbgwg}'); a.e(f's_cbranch_scc1 {lab}')
        a.e(f's_cmp_lg_u32 s{S_WAVE}, 0'); a.e(f's_cbranch_scc1 {lab}')
        sel = ['kernarg', 'issued', 'g1_s0', 'pre_arrived', 'pre_done', 'g1_s4', 'g1_s6', 'g1_main', 'g1_epi', 'conv_prep', 'conv_main', 'hflag_ok', 'g2_k0', 'g2_k20', 'g2_main', 'end']
        a.e('v_readlane_b32 s92, v255, 0'); a.e('v_mov_b32 v3, 0')
        for i, nm in enumerate(sel):
            if nm not in STAMP_NAMES: continue
            a.e(f'v_readlane_b32 s93, v255, {STAMP_NAMES.index(nm)}'); a.e('s_sub_u32 s93, s93, s92'); a.e(f'v_writelane_b32 v3, s93, {i}')
        a.e('s_mov_b64 exec, 0xffff'); a.e(f'global_store_dword v2, v3, {sp(P_DBG)}'); a.e('s_mov_b64 exec, -1')
        a.label(lab)
def publish(a, addrs, vt=2, optional=False):
    a.e(f'v_mov_b32 v{vt}, 0')
    for i, sr in enumerate(addrs): a.e(f'v_writelane_b32 v{vt}, {sr}, {i}')
    a.e(f'v_mov_b32 v{vt+1}, s{S_TAG}')
    a.e(f's_mov_b64 exec, {(1 << len(addrs)) - 1}')
    a.e(f'buffer_store_dword v{vt+1}, v{vt}, {sq(R_WS)}, 0 offen sc1', tag='flag', optional=optional)
    a.e('s_mov_b64 exec, -1')
def poll_issue(a, vaddr, vdst, width=1, tag='poll'):
    op = {1: 'dword', 2: 'dwordx2'}[width]
    a.e(f'buffer_load_{op} {v(vdst, width)}, v{vaddr}, {sq(R_WS)}, 0 offen sc1', tag=tag)
def poll_check(a, items, tag='poll', sleep=4):
    top = a.newlabel('Lpc'); done = a.newlabel('Lpd')
    a.wait_vm(tag)
    a.e(f's_mov_b32 s{S_SPIN}, 0')
    a.label(top)
    for n, (va, vd, w, vt) in enumerate(items):
        a.e(f'v_cmp_ne_u32 vcc, s{S_TAG}, v{vt}')
        a.e('s_mov_b64 s[90:91], vcc' if n == 0 else 's_or_b64 s[90:91], s[90:91], vcc')
    a.e('s_cmp_eq_u64 s[90:91], 0')
    a.e(f's_cbranch_scc1 {done}')
    a.e(f's_add_u32 s{S_SPIN}, s{S_SPIN}, 1')
    a.e(f's_cmp_gt_u32 s{S_SPIN}, {SPIN_MAX}')
    a.e(f's_cbranch_scc1 {done}')
    a.e(f's_sleep {sleep}')
    saved = (list(a.vm), list(a.lg))
    for (va, vd, w, vt) in items: poll_issue(a, va, vd, w, tag=None)
    a.e('s_waitcnt vmcnt(0)')
    a.e(f's_branch {top}')
    a.vm, a.lg = saved
    a.label(done)
def on_wave0(a, f):
    lab = a.newlabel('Lw0')
    a.e(f's_cmp_lg_u32 s{S_WAVE}, 0'); a.e(f's_cbranch_scc1 {lab}')
    before = list(a.vm); a._issued = []
    a.opt_depth = getattr(a, 'opt_depth', 0) + 1
    f(a)
    a.opt_depth -= 1
    a.vm = before + [(t, c if c.endswith('?') else c + '?') for (t, c) in getattr(a, '_issued', [])]
    a._issued = []
    a.label(lab)
def allreduce2(a, x, y, t0, t1):
    for ctl in ('quad_perm:[1,0,3,2]', 'quad_perm:[2,3,0,1]', 'row_half_mirror', 'row_mirror'):
        a.e(f'v_add_f32_dpp v{x}, v{x}, v{x} {ctl} row_mask:0xf bank_mask:0xf')
        a.e(f'v_add_f32_dpp v{y}, v{y}, v{y} {ctl} row_mask:0xf bank_mask:0xf')
    for sw in ('v_permlane16_swap_b32', 'v_permlane32_swap_b32'):
        a.e(f'v_mov_b32 v{t0}, v{x}'); a.e(f'v_mov_b32 v{t1}, v{y}')
        a.e(f'{sw} v{x}, v{t0}'); a.e(f'{sw} v{y}, v{t1}')
        a.e(f'v_add_f32 v{x}, v{x}, v{t0}'); a.e(f'v_add_f32 v{y}, v{y}, v{t1}')
class Rec:
    def __init__(self, a): self.a = a; self.ops = []
    def e(self, text, tag=None, optional=False):
        for ln in text.split('\n'):
            if ln.strip(): self.ops.append(('e', ln.strip(), tag, optional))
    def wait_vm(self, tags): self.ops.append(('vm', tags))
    def wait_lg(self, tags): self.ops.append(('lg', tags))
    def label(self, name=None): self.ops.append(('label', name)); return name
    def newlabel(self, base='L'): return self.a.newlabel(base)
    def comment(self, s): pass
    def call(self, f): self.ops.append(('call', f))
def units_of(ops):
    units = []; cur = []; mode = None; target = None
    for op in ops:
        cur.append(op)
        if op[0] == 'e':
            t = op[1]; mn = t.split()[0]
            if mode is None:
                if (mn == 's_mov_b64' and t.split()[1].startswith('exec') and not t.endswith('-1')) or 'saveexec' in mn: mode = 'exec'
                elif mn.startswith('s_cmp') : mode = 'scc'
                elif ' m0,' in t + ',' and mn.startswith('s_') and t.split()[1].startswith('m0'): mode = 'm0'
                elif mn.startswith('v_cmp') and 'vcc' in t: mode = 'vcc'
                elif mn.startswith('s_getreg'): mode = 'scc0'
            elif mode == 'exec':
                if mn == 's_mov_b64' and t.split()[1].startswith('exec') and (t.endswith('-1') or 's[' in t.split(',')[1]): mode = None
            elif mode == 'scc0':
                if mn.startswith('s_cmp'): mode = 'scc'
            elif mode == 'scc':
                if mn.startswith('s_cbranch'): mode = 'branch'; target = t.split()[1]
                elif mn.startswith(('s_cselect', 's_addc', 's_subb')): mode = None
            elif mode == 'm0':
                if mn.startswith('buffer_load') and t.endswith('lds'): mode = None
            elif mode == 'vcc':
                if mn.startswith('v_cndmask') or (mn.startswith('s_') and 'vcc' in t) : mode = 'vcc2'
            elif mode == 'vcc2':
                if not (mn.startswith('v_cndmask') or 'vcc' in t):
                    last = cur.pop(); units.append(cur); cur = [last]; mode = None
                    if (mn == 's_mov_b64' and t.split()[1].startswith('exec') and not t.endswith('-1')): mode = 'exec'
                    elif mn.startswith('s_cmp'): mode = 'scc'
        elif op[0] == 'label' and mode == 'branch' and op[1] == target: mode = None
        if mode is None:
            units.append(cur); cur = []
    if cur: units.append(cur)
    return units
def play(a, unit):
    for op in unit:
        if op[0] == 'e': a.e(op[1], tag=op[2], optional=op[3])
        elif op[0] == 'vm': a.wait_vm(op[1])
        elif op[0] == 'lg': a.wait_lg(op[1])
        elif op[0] == 'label': a.label(op[1])
        elif op[0] == 'call': op[1](a)
def ucost(unit):
    c = 0
    for op in unit:
        if op[0] == 'e':
            mn = op[1].split()[0]
            c += 3.0 if mn.startswith(('buffer_', 'global_')) else (1.5 if mn.startswith('ds_') else 1.0)
        elif op[0] == 'call': c += 6
    return c
def record(a, f):
    r = Rec(a); f(r); return units_of(r.ops)
def item_units(items):
    U = []
    for it in items:
        if callable(it): U.append([('call', it)]); continue
        u = []
        for t, tag in it:
            if t.endswith(':'): u.append(('label', t[:-1]))
            elif isinstance(tag, tuple) and len(tag) == 2 and tag[1] == 'opt': u.append(('e', t, tag[0], True))
            else: u.append(('e', t, tag, False))
        U.append(u)
    return U
class Spreader:
    def __init__(self, units, n):
        self.u = list(units); self.n = n; self.i = 0; self.total = sum(ucost(x) for x in self.u); self.done = 0.0
    def slot(self, a):
        self.i += 1
        want = self.total * self.i / self.n
        while self.u and self.done + 0.5*ucost(self.u[0]) <= want:
            x = self.u.pop(0); self.done += ucost(x); play(a, x)
    def flush(self, a):
        while self.u: play(a, self.u.pop(0))
def emit_items(a, items):
    for it in items:
        if callable(it):
            it(a); continue
        for t, tag in it:
            if t.endswith(':'): a.label(t[:-1])
            elif isinstance(tag, tuple) and len(tag) == 2 and tag[1] == 'opt': a.e(t, tag=tag[0], optional=True)
            else: a.e(t, tag=tag)

PRE_LDS = 131072
KIMG, VIMG, WIMG = PRE_LDS, PRE_LDS + 9216, PRE_LDS + 9216 + 8192
SC = 'sc1'
A_PAY = 192
A_HRAW, A_KV = 224, 236

class Pre:
    VE, XR, SKR, T, WR, SK, VD = 62, 32, 40, 42, 46, 54, 58
    KR, VR, U = 188, 200, 208
    def issue_stats(self, a):
        L = V_LANE; t = self.T
        a.e(f'v_mov_b32 v{t}, {WS_E}')
        a.e(f'buffer_load_dword v{self.VE}, v{t}, {sq(R_WS)}, 0 offen sc1', tag='pre0')
        a.e('s_and_b32 s58, s2, 7'); a.e('s_lshr_b32 s59, s58, 1'); a.e('s_lshl_b32 s59, s59, 9'); a.e('s_and_b32 s58, s58, 1'); a.e('s_lshl_b32 s58, s58, 5')
        a.e('s_lshr_b32 s60, s2, 3'); a.e('s_add_u32 s58, s58, s60'); a.e('s_lshl_b32 s58, s58, 3'); a.e('s_add_u32 s58, s58, s59')
        a.e(f's_lshl_b32 s59, s{S_WAVE}, 1'); a.e('s_add_u32 s58, s58, s59')
        a.e(f's_lshl_b32 s59, s58, 10')
        a.e(f'v_lshl_add_u32 v{t}, v{L}, 4, s59')
        srd(a, R_T, P_Q, S*D*2)
        a.e(f'buffer_load_dwordx4 {v(self.XR,4)}, v{t}, {sq(R_T)}, 0 offen', tag='pre0')
        a.e(f'buffer_load_dwordx4 {v(self.XR+4,4)}, v{t}, {sq(R_T)}, 0 offen offset:1024', tag='pre0')
    def setup(self, a):
        L = V_LANE; t = self.T
        a.e('s_lshr_b32 s48, s2, 3'); a.e('s_lshl_b32 s48, s48, 6')
        a.e('s_and_b32 s49, s2, 7'); a.e('s_lshl_b32 s49, s49, 7')
        a.e(f'v_lshrrev_b32 v{t}, 3, v{L}'); a.e(f'v_lshlrev_b32 v{t}, 10, v{t}')
        a.e(f'v_and_b32 v{t+1}, 7, v{L}'); a.e(f'v_lshl_add_u32 v{t}, v{t+1}, 4, v{t}')
        a.e('s_lshl_b32 s50, s48, 10'); a.e('s_add_u32 s50, s50, s49')
        a.e(f's_sub_u32 s51, s50, 8192'); a.e(f'v_add_u32 v{t+1}, s51, v{t}')
        a.e(f's_lshl_b32 s51, s{S_WAVE}, 14'); a.e('s_add_u32 s51, s51, s50')
        a.e(f's_lshl_b32 s52, s{S_WAVE}, 11')
        a.e(f'v_and_b32 v{t+2}, 15, v{L}'); a.e(f's_lshl_b32 s59, s{S_WAVE}, 4'); a.e('s_lshr_b32 s60, s49, 1'); a.e('s_add_u32 s59, s59, s60')
        a.e(f'v_add_u32 v{self.VD}, s59, v{t+2}')
        a.e(f'v_lshlrev_b32 v{t+2}, 3, v{self.VD}')
    def items(self):
        t = self.T; R = 96
        def mk(ptr, size): return [(f's_mov_b32 s{R}, s{ptr}', None), (f's_mov_b32 s{R+1}, s{ptr+1}', None), (f's_mov_b32 s{R+2}, {hex(size)}', None), (f's_mov_b32 s{R+3}, 0x20000', None)]
        it = []
        lab = f'Lpre_hist{id(self) % 1000}_{len(Pre.labs)}'; Pre.labs.append(lab)
        it.append(mk(P_K, S*D*2) + [(f's_cmp_lg_u32 s{S_WAVE}, 0', None), (f's_cbranch_scc1 {lab}', None), (f's_mov_b32 m0, {KIMG}', None),
                  (f'buffer_load_dwordx4 v{t+1}, {sq(R)}, 0 offen lds', ('pre', 'opt')), (f'{lab}:', None)])
        for jj in range(2):
            it.append([(f's_add_u32 s53, s51, {jj*8192}', None), (f's_add_u32 m0, s52, {KIMG + 1024 + jj*1024}', None), (f'buffer_load_dwordx4 v{t}, {sq(R)}, s53 offen lds', 'pre')])
        for jj in range(2):
            it.append((mk(P_V, S*D*2) if jj == 0 else []) + [(f's_add_u32 s53, s51, {jj*8192}', None), (f's_add_u32 m0, s52, {VIMG + jj*1024}', None), (f'buffer_load_dwordx4 v{t}, {sq(R)}, s53 offen lds', 'pre')])
        it.append(srd_items(P_SK, D*8) + [(f'buffer_load_dwordx2 {v(self.SKR,2)}, v{t+2}, {sq(R_T)}, 0 offen', 'pre')])
        return it
    labs = []
    def tag(self, a):
        a.wait_vm('pre0')
        a.e(f'v_readfirstlane_b32 s{S_TAG}, v{self.VE}')
        a.e('s_nop 3')
        a.e(f's_add_u32 s{S_TAG}, s{S_TAG}, {TAGC}')
    def stats(self, a, tag_done=False, store=True):
        L = V_LANE; X = self.U
        a.wait_vm('pre0')
        if not tag_done: a.e(f'v_readfirstlane_b32 s{S_TAG}, v{self.VE}')
        for rr in range(2):
            for j in range(4):
                unpack_lo(a, X+8*rr+2*j, self.XR+4*rr+j); unpack_hi(a, X+8*rr+2*j+1, self.XR+4*rr+j)
        if not tag_done: a.e(f's_add_u32 s{S_TAG}, s{S_TAG}, {TAGC}')
        SA, SB, t0, t1, QA, QB = X+16, X+17, X+18, X+19, X+20, X+21
        for rr, Sx in ((0, SA), (1, SB)): a.e(f'v_add_f32 v{Sx}, v{X+8*rr}, v{X+8*rr+1}')
        for j in range(2, 8):
            for rr, Sx in ((0, SA), (1, SB)): a.e(f'v_add_f32 v{Sx}, v{Sx}, v{X+8*rr+j}')
        allreduce2(a, SA, SB, t0, t1)
        a.e(f'v_mul_f32 v{SA}, 0x3b000000, v{SA}'); a.e(f'v_mul_f32 v{SB}, 0x3b000000, v{SB}')
        for j in range(8):
            for rr, Sx in ((0, SA), (1, SB)): a.e(f'v_sub_f32 v{X+8*rr+j}, v{X+8*rr+j}, v{Sx}')
        for rr, Q in ((0, QA), (1, QB)): a.e(f'v_mul_f32 v{Q}, v{X+8*rr}, v{X+8*rr}')
        for j in range(1, 8):
            for rr, Q in ((0, QA), (1, QB)): a.e(f'v_fmac_f32 v{Q}, v{X+8*rr+j}, v{X+8*rr+j}')
        allreduce2(a, QA, QB, t0, t1)
        a.e(f'v_mul_f32 v{QA}, 0x3b000000, v{QA}'); a.e(f'v_mul_f32 v{QB}, 0x3b000000, v{QB}')
        a.e(f'v_and_b32 v{t0}, 1, v{L}'); a.e(f'v_cmp_eq_u32 vcc, 1, v{t0}')
        a.e(f'v_cndmask_b32 v{SA}, v{SA}, v{SB}, vcc'); a.e(f'v_cndmask_b32 v{QA}, v{QA}, v{QB}, vcc')
        G = X + 24
        a.e(f'v_cvt_pk_bf16_f32 v{G}, v{SA}, v{QA}')
        unpack_hi(a, t1, G)
        a.e(f'v_add_f32 v{t1}, 0x3727c5ac, v{t1}')
        a.e(f'v_cvt_pk_bf16_f32 v{t1}, v{t1}, v{t1}'); unpack_lo(a, t1, t1)
        a.e(f'v_sqrt_f32 v{t1}, v{t1}')
        a.e(f'v_cvt_pk_bf16_f32 v{t1}, v{t1}, v{t1}')
        a.e(f'v_and_b32 v{G}, 0xffff, v{G}'); a.e(f'v_and_b32 v{t1}, 0xffff0000, v{t1}'); a.e(f'v_or_b32 v{G}, v{G}, v{t1}')
        a.e(f'v_mov_b32 v{G+1}, s{S_TAG}')
        a.e(f'v_mov_b32 v60, v{G}'); a.e(f'v_mov_b32 v61, v{G+1}')
        if store: self.store_stats(a)
    def store_stats(self, a):
        L = V_LANE
        a.e(f's_lshl_b32 s59, s58, 6'); a.e(f's_add_u32 s59, s59, {WS_ST}')
        a.e(f'v_lshlrev_b32 v59, 3, v{L}')
        a.e('s_mov_b64 exec, 3')
        a.e(f'buffer_store_dwordx2 v[60:61], v59, {sq(R_WS)}, s59 offen {SC}', tag='prest')
        a.e('s_mov_b64 exec, -1')
    def compute(self, a):
        L = V_LANE; T = self.T
        KR, VR, WR, SK, U = self.KR, self.VR, self.WR, self.SK, self.U
        a.wait_vm('pre')
        if not isinstance(a, Rec): stamp(a, 'pre_arrived')
        a.e('s_barrier')
        a.e(f'v_lshrrev_b32 v{T}, 4, v{L}'); a.e(f'v_lshlrev_b32 v{T}, 3, v{T}')
        a.e(f'v_bfe_u32 v{T+1}, v{L}, 2, 2'); a.e(f'v_add_u32 v{T}, v{T}, v{T+1}'); a.e(f'v_lshlrev_b32 v{T}, 7, v{T}')
        a.e(f'v_and_b32 v{T+1}, 3, v{L}'); a.e(f'v_lshl_add_u32 v{T}, v{T+1}, 3, v{T}')
        a.e(f's_lshl_b32 s59, s{S_WAVE}, 5'); a.e(f'v_add_u32 v{T}, s59, v{T}')
        a.e(f'v_add_u32 v{T+1}, {KIMG}, v{T}'); a.e(f'v_add_u32 v{T+2}, {VIMG}, v{T}')
        for run in range(2):
            for j in range(3):
                a.e(f'ds_read_b64_tr_b16 {v(KR+run*6+2*j,2)}, v{T+1} offset:{512 + j*512 + run*4096}', tag=('kvr', run))
            for j in range(2):
                a.e(f'ds_read_b64_tr_b16 {v(VR+run*4+2*j,2)}, v{T+2} offset:{j*512 + run*4096}', tag=('kvr', run))
        unpack_lo(a, SK, self.SKR); unpack_hi(a, SK+1, self.SKR); unpack_lo(a, SK+2, self.SKR+1); unpack_hi(a, SK+3, self.SKR+1)
        a.e(f'v_lshlrev_b32 v{T}, 12, v{self.VD}')
        a.e(f'v_lshrrev_b32 v{T+1}, 4, v{L}'); a.e(f'v_lshl_add_u32 v{T}, v{T+1}, 4, v{T}')
        a.e('s_lshl_b32 s57, s48, 1'); a.e(f's_add_u32 s57, s57, {WS_KVT}')
        for run in range(2):
            a.wait_lg(('kvr', run))
            for j in range(6):
                if j > 0: unpack_lo(a, U+2*j, KR+run*6+j)
                unpack_hi(a, U+2*j+1, KR+run*6+j)
            for j in range(4):
                unpack_lo(a, U+12+2*j, VR+run*4+j); unpack_hi(a, U+12+2*j+1, VR+run*4+j)
            A0 = U + 20
            for t in range(8): a.e(f'v_mul_f32 v{A0+t}, v{U+1+t}, v{SK+3}')
            for t in range(8): a.e(f'v_fmac_f32 v{A0+t}, v{U+2+t}, v{SK+2}')
            for t in range(8): a.e(f'v_fmac_f32 v{A0+t}, v{U+3+t}, v{SK+1}')
            for t in range(8): a.e(f'v_fmac_f32 v{A0+t}, v{U+4+t}, v{SK}')
            for t in range(8): a.e(f'v_mul_f32 v{A0+t}, v{A0+t}, v{U+12+t}')
            O = U + 28 + run*4
            for j in range(4): a.e(f'v_cvt_pk_bf16_f32 v{O+j}, v{A0+2*j}, v{A0+2*j+1}')
        if not Opt.defer: self.store_kv(a)
    def store_kv(self, a):
        T = self.T
        for run in range(2):
            O = self.U + 28 + run*4
            a.e(f'buffer_store_dwordx4 {v(O,4)}, v{T}, {sq(R_WS)}, s57 offen offset:{run*64} {SC}', tag='prest')
    def publish(self, a, vt, optional=False):
        a.e('s_and_b32 s59, s2, 7'); a.e('s_lshl_b32 s59, s59, 2'); a.e(f's_add_u32 s59, s59, s{S_WAVE}'); a.e('s_lshl_b32 s59, s59, 5')
        a.e('s_lshr_b32 s60, s2, 3'); a.e('s_add_u32 s59, s59, s60'); a.e(f's_lshl_b32 s59, s59, {FS}'); a.e(f's_add_u32 s59, s59, {FK}')
        a.e(f's_lshl_b32 s53, s2, {FS}'); a.e(f's_lshl_b32 s60, s{S_WAVE}, 2'); a.e('s_add_u32 s53, s53, s60'); a.e(f's_add_u32 s53, s53, {FAR}')
        publish(a, ['s59', 's53'], vt=vt, optional=optional)

class W2T:
    def issue(self, a):
        L = V_LANE; t = 8
        srd(a, R_C, P_W2, F*D*2)
        a.e('s_sub_u32 s54, s62, 28')
        a.e('s_mul_i32 s55, s54, 448'); a.e(f's_mul_i32 s56, s{S_WAVE}, 112'); a.e('s_add_u32 s55, s55, s56'); a.e('s_lshl_b32 s55, s55, 10')
        a.e('s_lshl_b32 s56, s61, 7'); a.e('s_add_u32 s55, s55, s56')
        a.e(f'v_lshrrev_b32 v{t}, 3, v{L}'); a.e(f'v_lshlrev_b32 v{t}, 10, v{t}'); a.e(f'v_and_b32 v{t+1}, 7, v{L}'); a.e(f'v_lshl_add_u32 v{t}, v{t+1}, 4, v{t}')
        a.e(f's_mul_i32 s56, s{S_WAVE}, {112*128}')
        for j in range(14):
            a.e(f's_add_u32 m0, s56, {j*1024}'); a.e(f's_add_u32 s57, s55, {j*8192}')
            a.e(f'buffer_load_dwordx4 v{t}, {sq(R_C)}, s57 offen lds', tag='w2t')
    def compute(self, a):
        L = V_LANE; t = 8
        a.wait_vm('w2t')
        stamp(a, 'w2t_arr')
        a.e(f'v_lshrrev_b32 v{t}, 5, v{L}'); a.e(f'v_lshlrev_b32 v{t}, 2, v{t}'); a.e(f'v_bfe_u32 v{t+1}, v{L}, 2, 2'); a.e(f'v_add_u32 v{t}, v{t}, v{t+1}'); a.e(f'v_lshlrev_b32 v{t}, 7, v{t}')
        a.e(f'v_bfe_u32 v{t+1}, v{L}, 4, 1'); a.e(f'v_lshl_add_u32 v{t}, v{t+1}, 5, v{t}'); a.e(f'v_and_b32 v{t+1}, 3, v{L}'); a.e(f'v_lshl_add_u32 v{t}, v{t+1}, 3, v{t}')
        a.e(f'v_add_u32 v{t}, s56, v{t}')
        a.e(f'v_lshlrev_b32 v{t+1}, 4, v{L}')
        a.e('s_lshl_b32 s57, s61, 1'); a.e('s_mul_i32 s57, s57, 112'); a.e('s_mul_i32 s55, s54, 28'); a.e('s_add_u32 s57, s57, s55'); a.e(f's_mul_i32 s55, s{S_WAVE}, 7'); a.e('s_add_u32 s57, s57, s55')
        a.e('s_lshl_b32 s57, s57, 10'); a.e(f's_add_u32 s57, s57, {WS_W2F}')
        R0 = 64
        for j in range(7):
            for h in range(2):
                r = R0 + (j*2+h)*4
                a.e(f'ds_read_b64_tr_b16 {v(r,2)}, v{t} offset:{j*2048 + h*64}', tag=('w2r', j, h))
                a.e(f'ds_read_b64_tr_b16 {v(r+2,2)}, v{t} offset:{j*2048 + h*64 + 1024}', tag=('w2r', j, h))
        for j in range(7):
            for h in range(2):
                r = R0 + (j*2+h)*4
                a.wait_lg(('w2r', j, h))
                a.e(f's_add_u32 s55, s57, {(h*112 + j)*1024}')
                a.e(f'buffer_store_dwordx4 {v(r,4)}, v{t+1}, {sq(R_WS)}, s55 offen {SC}', tag='w2st')
    def publish(self, a, vt):
        a.e('s_lshl_b32 s55, s61, 2'); a.e('s_add_u32 s55, s55, s54')
        a.e(f's_lshl_b32 s55, s55, {FS}'); a.e(f's_add_u32 s55, s55, {FW}')
        publish(a, ['s55'], vt=vt)

class Gemm1:
    ACC, FR, VW, VX, VA, VB, CS, SEL, B1, ST = 64, 128, 8, 9, 12, 16, 160, 168, 172, 28
    def decode(self, a):
        a.e('s_and_b32 s61, s2, 7'); a.e('s_lshr_b32 s62, s2, 3')
        a.e('s_lshr_b32 s63, s61, 1'); a.e('s_lshl_b32 s63, s63, 9'); a.e('s_and_b32 s64, s62, 3'); a.e('s_lshl_b32 s64, s64, 7'); a.e('s_add_u32 s63, s63, s64')
        a.e('s_and_b32 s64, s61, 1'); a.e('s_mul_i32 s64, s64, 896'); a.e('s_lshr_b32 s65, s62, 2'); a.e('s_lshl_b32 s65, s65, 7'); a.e('s_add_u32 s64, s64, s65')
        a.e(f's_and_b32 s70, s{S_WAVE}, 1'); a.e(f's_lshr_b32 s71, s{S_WAVE}, 1')
        if Opt.rot1:
            a.e('s_and_b32 s69, s62, 3'); a.e('s_lshl_b32 s69, s69, 1'); a.e('s_lshr_b32 s65, s62, 2'); a.e('s_add_u32 s65, s65, s69'); a.e('s_and_b32 s65, s65, 7')
        else:
            a.e('s_mov_b32 s65, 0')
    def setup(self, a):
        L = V_LANE
        srd(a, R_A, P_W1, D*F*2); srd(a, R_B, P_Q, S*D*2)
        t = 24
        a.e(f'v_lshrrev_b32 v{t}, 4, v{L}')
        a.e(f'v_mul_u32_u24 v{self.VW}, 3584, v{t}')
        a.e(f'v_lshlrev_b32 v{t+1}, 2, v{t}'); a.e(f'v_and_b32 v{t+2}, 15, v{L}'); a.e(f'v_xor_b32 v{t+1}, v{t+1}, v{t+2}')
        a.e(f'v_lshl_add_u32 v{self.VW}, v{t+1}, 4, v{self.VW}')
        a.e(f'v_lshrrev_b32 v{t+1}, 3, v{L}'); a.e(f'v_lshlrev_b32 v{t+1}, 10, v{t+1}')
        a.e(f'v_and_b32 v{t+2}, 7, v{L}')
        a.e(f'v_xor_b32 v{t+3}, v{t+2}, v{t}'); a.e(f'v_lshl_add_u32 v{self.VX}, v{t+3}, 4, v{t+1}')
        a.e(f'v_xor_b32 v{t+3}, 4, v{t+3}'); a.e(f'v_lshl_add_u32 v{self.VX+1}, v{t+3}, 4, v{t+1}')
        a.e(f's_mul_i32 s66, s{S_WAVE}, {16*3584}'); a.e('s_lshl_b32 s69, s64, 1'); a.e('s_add_u32 s66, s66, s69')
        a.e(f's_lshl_b32 s67, s{S_WAVE}, 5'); a.e('s_add_u32 s67, s67, s63'); a.e('s_lshl_b32 s67, s67, 10')
        a.e(f's_lshl_b32 s68, s{S_WAVE}, 12')
    VB1 = 252
    B1L = 156672
    def b1_setup(self, a):
        a.e('s_lshl_b32 s69, s64, 1'); a.e(f'v_lshl_add_u32 v{self.VB1}, v{V_LANE}, 4, s69')
    def b1_items(self):
        return [srd_items(P_B1, F*2) + [(f's_mov_b32 m0, {self.B1L}', None), ('s_nop 0', None), (f'buffer_load_dwordx4 v{self.VB1}, {sq(R_T)}, 0 offen lds', 'b1')]]
    def dma_items(self, s):
        slot = (s & 3) * 32768
        head = [(f's_add_u32 s46, s65, {s}', None), ('s_and_b32 s46, s46, 7', None), ('s_lshl_b32 s47, s46, 7', None), ('s_add_u32 s47, s47, s67', None),
                (f's_mul_i32 s46, s46, {64*3584}', None), ('s_add_u32 s46, s46, s66', None)]
        items = []
        for jj in range(4):
            w = [(f's_add_u32 m0, s68, {slot + jj*1024}', None), (f's_add_u32 s69, s46, {4*jj*3584}', None),
                 (f'buffer_load_dwordx4 v{self.VW}, {sq(R_A)}, s69 offen lds', ('g1', s))]
            x = [(f's_add_u32 m0, s68, {slot + 16384 + jj*1024}', None), (f's_add_u32 s69, s47, {8*jj*1024}', None),
                 (f'buffer_load_dwordx4 v{self.VX + (jj&1)}, {sq(R_B)}, s69 offen lds', ('g1', s))]
            items += [w, x]
        items[0] = head + items[0]
        return items
    def setup2(self, a):
        L = V_LANE; t = 24
        a.e(f'v_lshrrev_b32 v{t}, 5, v{L}'); a.e(f'v_lshlrev_b32 v{t}, 3, v{t}'); a.e(f'v_bfe_u32 v{t+1}, v{L}, 2, 2'); a.e(f'v_add_u32 v{t}, v{t}, v{t+1}')
        a.e(f'v_lshlrev_b32 v{t}, 8, v{t}')
        a.e(f'v_and_b32 v{t+2}, 1, v{L}'); a.e(f'v_lshl_add_u32 v{t}, v{t+2}, 3, v{t}')
        a.e(f'v_bfe_u32 v{t+2}, v{L}, 4, 1'); a.e(f'v_lshlrev_b32 v{t+2}, 1, v{t+2}'); a.e(f'v_bfe_u32 v{t+3}, v{L}, 1, 1'); a.e(f'v_add_u32 v{t+2}, v{t+2}, v{t+3}')
        a.e(f's_lshl_b32 s69, s70, 3'); a.e(f'v_add_u32 v{t+2}, s69, v{t+2}')
        a.e(f'v_lshlrev_b32 v{t+1}, 2, v{t+1}')
        a.e('s_lshl_b32 s69, s71, 2')
        for aa in range(2):
            a.e(f's_xor_b32 s72, s69, {4*aa}')
            a.e(f'v_add_u32 v{t+3}, s72, v{t+2}'); a.e(f'v_xor_b32 v{t+3}, v{t+3}, v{t+1}')
            a.e(f'v_lshl_add_u32 v{self.VA+2*aa}, v{t+3}, 4, v{t}')
            a.e(f'v_add_u32 v{self.VA+2*aa+1}, 0x10000, v{self.VA+2*aa}')
        a.e(f'v_and_b32 v{t}, 31, v{L}'); a.e(f's_lshl_b32 s69, s71, 6'); a.e(f'v_add_u32 v{t}, s69, v{t}'); a.e(f'v_lshlrev_b32 v{t}, 7, v{t}')
        a.e(f'v_add_u32 v{t}, 16384, v{t}')
        a.e(f'v_bfe_u32 v{t+1}, v{L}, 1, 3'); a.e(f'v_lshrrev_b32 v{t+2}, 5, v{L}'); a.e(f'v_xor_b32 v{t+1}, v{t+1}, v{t+2}')
        for kk in range(4):
            a.e(f'v_xor_b32 v{t+2}, {2*kk}, v{t+1}'); a.e(f'v_lshl_add_u32 v{self.VB+2*kk}, v{t+2}, 4, v{t}')
            a.e(f'v_add_u32 v{self.VB+2*kk+1}, 0x10000, v{self.VB+2*kk}')
        a.e(f'v_bfe_u32 v{t}, v{L}, 4, 1'); a.e(f'v_and_b32 v{t+1}, 1, v{L}'); a.e(f'v_cmp_eq_u32 vcc, v{t}, v{t+1}')
        a.e(f'v_mov_b32 v{t+2}, 0x3f803f80')
        for j in range(4): a.e(f'v_cndmask_b32 v{self.SEL+j}, 0, v{t+2}, vcc')
        for i in range(32): a.e(f'v_mov_b64 {v(self.ACC+2*i,2)}, 0')
        for i in range(2): a.e(f'v_mov_b64 {v(self.CS+2*i,2)}, 0')
    def read_list(self, s, kk, p):
        slot = (s & 3); hi = slot >> 1; base = (slot & 1) * 32768
        F0 = self.FR + 16*p; tg = ('fr', s, kk)
        return [
          (f'ds_read_b64_tr_b16 {v(F0,2)}, v{self.VA+hi} offset:{base + kk*4096}', tg+('A0',)),
          (f'ds_read_b64_tr_b16 {v(F0+2,2)}, v{self.VA+hi} offset:{base + kk*4096 + 1024}', tg+('A0',)),
          (f'ds_read_b128 {v(F0+8,4)}, v{self.VB+2*kk+hi} offset:{base}', tg+('B0',)),
          (f'ds_read_b128 {v(F0+12,4)}, v{self.VB+2*kk+hi} offset:{base + 4096}', tg+('B1',)),
          (f'ds_read_b64_tr_b16 {v(F0+4,2)}, v{self.VA+2+hi} offset:{base + kk*4096}', tg+('A1',)),
          (f'ds_read_b64_tr_b16 {v(F0+6,2)}, v{self.VA+2+hi} offset:{base + kk*4096 + 1024}', tg+('A1',))]
    def mfmas(self, a, s, kk, p, reads, sp):
        F0 = self.FR + 16*p; tg = ('fr', s, kk)
        order = [(0, 0), (0, 1), (1, 0), (1, 1)]
        need = [[tg+('A0',), tg+('B0',)], [tg+('B1',)], [tg+('A1',)], []]
        reads = list(reads)
        for i, (aa, bb) in enumerate(order):
            if need[i]: a.wait_lg(need[i])
            acc = self.ACC + (aa*2+bb)*16
            a.e(f'v_mfma_f32_32x32x16_bf16 {v(acc,16)}, {v(F0+4*aa,4)}, {v(F0+8+4*bb,4)}, {v(acc,16)}')
            for _ in range(2):
                if reads:
                    t, tag = reads.pop(0); a.e(t, tag=tag)
            if sp: sp.slot(a)
            if i == 1: a.e(f'v_mfma_f32_16x16x32_bf16 {v(self.CS,4)}, {v(F0,4)}, {v(self.SEL,4)}, {v(self.CS,4)}')
    def main(self, a, hooks, fill):
        a.comment('gemm1: main loop')
        prev = None; p = 0
        for s in range(8):
            a.wait_vm(('g1', s))
            if s > 0: a.wait_lg([('fr', s-1, 3, x) for x in ('A0', 'A1', 'B0', 'B1')])
            a.e('s_barrier')
            if Opt.stagestamps == 2: stamp(a, f'cycS{s}', True)
            elif Opt.stagestamps or s in (0,): stamp(a, f'g1_s{s}')
            if s in hooks: hooks[s](a)
            sp = Spreader(fill[s]() if s in fill else [], 16 if s > 0 else 12)
            for kk in range(4):
                reads = self.read_list(s, kk, p)
                if prev is None:
                    for t, tag in reads: a.e(t, tag=tag)
                else:
                    self.mfmas(a, prev[0], prev[1], prev[2], reads, sp)
                prev = (s, kk, p); p ^= 1
            sp.flush(a)
        sp = Spreader(fill[8]() if 8 in fill else [], 4)
        self.mfmas(a, prev[0], prev[1], prev[2], [], sp); sp.flush(a)
    def stats_addr(self, a, vd):
        L = V_LANE
        a.e(f'v_and_b32 v{vd}, 31, v{L}'); a.e(f's_lshl_b32 s69, s71, 6'); a.e('s_add_u32 s69, s69, s63'); a.e(f'v_add_u32 v{vd}, s69, v{vd}')
        a.e(f'v_and_b32 v{vd+1}, 1, v{vd}'); a.e(f'v_lshrrev_b32 v{vd}, 1, v{vd}'); a.e(f'v_lshlrev_b32 v{vd}, 7, v{vd}'); a.e(f'v_lshl_add_u32 v{vd}, v{vd+1}, 3, v{vd}')
        a.e(f'v_add_u32 v{vd}, {WS_ST}, v{vd}')
        a.e(f'v_add_u32 v{vd+1}, 2048, v{vd}')
    OUTL = [40, 44, 48, 52, 56, 60, 224, 228]
    def b1_unpack(self, a):
        TMP = 192; t = self.VB1; L = V_LANE
        a.e(f'v_lshrrev_b32 v{t}, 5, v{L}'); a.e(f'v_lshlrev_b32 v{t}, 3, v{t}')
        a.e('s_lshl_b32 s51, s70, 7'); a.e('s_lshl_b32 s52, s71, 6'); a.e('s_add_u32 s51, s51, s52'); a.e(f's_add_u32 s51, s51, {self.B1L}')
        a.e(f'v_add_u32 v{t}, s51, v{t}'); a.e(f'v_xor_b32 v{t+1}, 64, v{t}')
        for aa in range(2):
            for q in range(4):
                a.e(f'ds_read_b64 {v(self.B1+(aa*4+q)*2,2)}, v{t+aa} offset:{q*16}', tag=('b1r', aa))
        for aa in range(2):
            a.wait_lg(('b1r', aa))
            for i in range(8*aa, 8*aa+8):
                unpack_lo(a, TMP+2*i, self.B1+i); unpack_hi(a, TMP+2*i+1, self.B1+i)
    def epilogue_a(self, a):
        L = V_LANE
        t = 24
        a.e('s_barrier')
        a.e(f'v_and_b32 v{t}, 1, v{L}'); a.e(f'v_lshlrev_b32 v{t}, 6, v{t}'); a.e(f'v_lshrrev_b32 v{t+1}, 4, v{L}'); a.e(f'v_lshl_add_u32 v{t}, v{t+1}, 4, v{t}')
        a.e(f's_lshl_b32 s69, s70, 8'); a.e('s_lshl_b32 s72, s71, 7'); a.e('s_add_u32 s69, s69, s72'); a.e(f'v_add_u32 v{t}, s69, v{t}')
        a.e(f'v_add_u32 v{t}, {PRE_LDS}, v{t}')
        a.e(f'ds_write_b128 v{t}, {v(self.CS,4)}', tag='csw')
    def epilogue(self, a, mid, pre_bar, post_bar, items=()):
        L = V_LANE; ST = self.ST; t = 24
        for bb in range(2):
            g = ST + 2*bb
            unpack_hi(a, g+1, g); unpack_lo(a, g, g)
            a.e(f'v_rcp_f32 v{g+1}, v{g+1}')
            a.e(f'v_xor_b32 v{g}, 0x80000000, v{g}')
        TMP = 192
        a.wait_lg('csw')
        pre_bar(a)
        a.e('s_barrier')
        post_bar(a)
        CSV = self.FR
        a.e(f'v_lshrrev_b32 v{t}, 5, v{L}'); a.e(f'v_lshlrev_b32 v{t}, 4, v{t}'); a.e('s_lshl_b32 s69, s70, 8'); a.e('s_lshl_b32 s72, s71, 7'); a.e('s_add_u32 s69, s69, s72')
        a.e(f's_add_u32 s69, s69, {PRE_LDS}')
        a.e(f'v_add_u32 v{t}, s69, v{t}'); a.e(f'v_xor_b32 v{t+1}, 128, v{t}')
        for aa in range(2):
            for q in range(4):
                a.e(f'ds_read_b128 {v(CSV+(aa*4+q)*4,4)}, v{t+aa} offset:{q*32}', tag=('csr', aa))
        self.hst_setup(a)
        n = 0
        stamp(a, 'cycE', True)
        for aa in range(2):
            a.wait_lg(('csr', aa))
            for bb in range(2):
                acc = self.ACC + (aa*2+bb)*16
                for half in range(2):
                    O = self.OUTL[n]; n += 1
                    R = [half*8 + 2*j for j in range(4)]
                    for r in R: a.e(f'v_pk_fma_f32 {v(acc+r,2)}, {v(CSV+aa*16+r,2)}, {v(ST+2*bb,2)}, {v(acc+r,2)} op_sel_hi:[1,0,1]')
                    for r in R: a.e(f'v_pk_fma_f32 {v(acc+r,2)}, {v(acc+r,2)}, {v(ST+2*bb,2)}, {v(TMP+aa*16+r,2)} op_sel:[0,1,0] op_sel_hi:[1,1,1]')
                    for r in R:
                        a.e(f'v_max_f32 v{acc+r}, 0, v{acc+r}'); a.e(f'v_max_f32 v{acc+r+1}, 0, v{acc+r+1}')
                    for r in R: a.e(f'v_pk_mul_f32 {v(acc+r,2)}, {v(acc+r,2)}, {v(acc+r,2)}')
                    for j, r in enumerate(R): a.e(f'v_cvt_pk_bf16_f32 v{O+j}, v{acc+r}, v{acc+r+1}')
                    if n <= Opt.hearly: emit_items(a, [self.hst_item(n-1)])
        stamp(a, 'cycF', True)
        mid(a)
    VHS = 232
    def hst_setup(self, a):
        a.e('s_lshl_b32 s98, s71, 6'); a.e('s_add_u32 s98, s98, s63'); a.e('s_lshr_b32 s98, s98, 5'); a.e('s_mul_i32 s98, s98, 112')
        a.e('s_lshl_b32 s97, s70, 6'); a.e('s_add_u32 s97, s97, s64'); a.e('s_lshr_b32 s97, s97, 4'); a.e('s_add_u32 s98, s98, s97')
        a.e('s_lshl_b32 s98, s98, 10'); a.e(f's_add_u32 s98, s98, {WS_H}')
        a.e('s_lshl_b32 s97, s71, 11')
        a.e(f'v_lshlrev_b32 v{self.VHS}, 4, v{V_LANE}')
    def hst_item(self, n):
        aa, bb, half = n >> 2, (n >> 1) & 1, n & 1
        off = bb*112*1024 + half*1024
        return [(f's_xor_b32 s46, s97, {2048*aa}', None), ('s_add_u32 s46, s46, s98', None), (f's_add_u32 s46, s46, {off}', None),
                (f'buffer_store_dwordx4 {v(self.OUTL[n],4)}, v{self.VHS}, {sq(R_WS)}, s46 offen {SC}', 'hst')]
    def publish(self, a, vt):
        a.e('s_lshr_b32 s69, s63, 7'); a.e('s_lshl_b32 s69, s69, 6'); a.e('s_lshr_b32 s72, s64, 7'); a.e('s_lshl_b32 s72, s72, 2'); a.e('s_add_u32 s69, s69, s72')
        a.e(f's_add_u32 s69, s69, s{S_WAVE}'); a.e(f's_lshl_b32 s69, s69, {FS}'); a.e(f's_add_u32 s69, s69, {FH}')
        publish(a, ['s69'], vt=vt, optional=True)

HC0 = 32768; HC_CH = 16640; KV0 = 0; KV_CH = 4608; RED0 = 2*KV_CH
class Conv:
    ACC, FA = 8, 64
    VF = 244
    def filter_setup(self, a):
        t = self.VF
        a.e('s_lshl_b32 s73, s2, 13')
        a.e(f'v_lshl_add_u32 v{t}, v0, 4, s73')
        a.e(f'v_subrev_u32 v{t+1}, 8, v{t}'); a.e(f'v_max_i32 v{t+1}, 0, v{t+1}')
        a.e(f'v_add_u32 v{t+2}, 4096, v{t}'); a.e(f'v_add_u32 v{t+3}, 4096, v{t+1}')
        a.e('s_lshl_b32 s74, s2, 2')
        a.e(f's_load_dword s75, {sp(P_SSMD)}, s74')
    def filter_items(self):
        t = self.VF
        R = sq(R_T)
        return [srd_items(P_SSMK, D*S*2) + [(f'buffer_load_dwordx4 {ac(A_HRAW,4)}, v{t}, {R}, 0 offen', 'hraw')], [(f'buffer_load_dwordx2 {ac(A_HRAW+4,2)}, v{t+1}, {R}, 0 offen', 'hraw')],
                [(f'buffer_load_dwordx4 {ac(A_HRAW+8,4)}, v{t+2}, {R}, 0 offen', 'hraw')], [(f'buffer_load_dwordx2 {ac(A_HRAW+6,2)}, v{t+3}, {R}, 0 offen', 'hraw')]]
    def payload(self, a, H):
        a.comment('conv: filter payloads')
        a.wait_vm('hraw')
        for i in range(12): a.e(f'v_accvgpr_read_b32 v{H+i}, a{A_HRAW+i}')
        a.e(f'v_cmp_eq_u32 vcc, 0, v0')
        W = H + 12
        for ch in range(2):
            d0 = H if ch == 0 else H + 8; dm = H + 4 if ch == 0 else H + 6
            a.e(f'v_cndmask_b32_e64 v{dm}, v{dm}, 0, vcc'); a.e(f'v_cndmask_b32_e64 v{dm+1}, v{dm+1}, 0, vcc')
            src = [dm+1, d0, d0+1, d0+2, d0+3]
            P = A_PAY + ch*16
            for j in range(4): a.e(f'v_accvgpr_write_b32 a{P+j}, v{d0+j}')
            for j in range(4): a.e(f'v_alignbit_b32 v{W+j}, v{src[j+1]}, v{src[j]}, 16')
            for j in range(4): a.e(f'v_accvgpr_write_b32 a{P+8+j}, v{src[j]}')
            for j in range(4): a.e(f'v_accvgpr_write_b32 a{P+4+j}, v{W+j}')
            for j in range(3): a.e(f'v_accvgpr_write_b32 a{P+13+j}, v{W+j}')
            a.e(f'v_alignbit_b32 v{W}, v{dm+1}, v{dm}, 16')
            a.e(f'v_accvgpr_write_b32 a{P+12}, v{W}')
    def flag_addr(self, a, vd):
        a.e('s_lshr_b32 s73, s2, 5'); a.e('s_lshl_b32 s73, s73, 2'); a.e('s_bfe_u32 s74, s2, 0x20003'); a.e('s_add_u32 s73, s73, s74')
        a.e(f's_lshl_b32 s73, s73, {5+FS}'); a.e(f's_add_u32 s73, s73, {FK}')
        a.e(f'v_and_b32 v{vd}, 31, v{V_LANE}'); a.e(f'v_lshl_add_u32 v{vd}, v{vd}, {FS}, s73')
    def load_kv(self, a, t):
        a.e('s_lshl_b32 s73, s2, 13'); a.e(f's_add_u32 s73, s73, {WS_KVT}')
        a.e(f'v_lshlrev_b32 v{t}, 4, v{V_LANE}')
        for j in range(8):
            if j % 4 == 0 and j: a.e('s_add_u32 s73, s73, 4096')
            a.e(f'buffer_load_dwordx4 {ac(224+4*j,4)}, v{t}, {sq(R_WS)}, s73 offen offset:{(j%4)*1024} {SC}', tag='kvl')
    def prep_hc(self, a, t):
        a.comment('conv: filter copies to LDS')
        a.e(f'v_lshlrev_b32 v{t}, 4, v0')
        a.e(f'v_add_u32 v{t+1}, {HC0 + 32}, v{t}')
        for ch in range(2):
            for r in range(4):
                a.e(f'ds_write_b128 v{t+1}, {ac(A_PAY + (ch*4+r)*4, 4)} offset:{ch*HC_CH + r*4160}', tag='hw')
        Z = t + 4
        a.e(f'v_mov_b64 {v(Z,2)}, 0'); a.e(f'v_mov_b64 {v(Z+2,2)}, 0')
        a.e(f'v_lshrrev_b32 v{t+2}, 1, v0'); a.e(f'v_and_b32 v{t+3}, 3, v{t+2}'); a.e(f'v_mul_u32_u24 v{t+3}, 4160, v{t+3}')
        a.e(f'v_bfe_u32 v{t+2}, v0, 3, 1'); a.e(f'v_mul_u32_u24 v{t+2}, {HC_CH}, v{t+2}'); a.e(f'v_add_u32 v{t+3}, v{t+3}, v{t+2}')
        a.e(f'v_and_b32 v{t+2}, 1, v0'); a.e(f'v_lshl_add_u32 v{t+3}, v{t+2}, 4, v{t+3}'); a.e(f'v_add_u32 v{t+3}, {HC0}, v{t+3}')
        a.e(f'v_subrev_u32 v{t+2}, 16, v0'); a.e(f'v_and_b32 v{t+8}, 31, v{t+2}'); a.e(f'v_lshlrev_b32 v{t+8}, 4, v{t+8}')
        a.e(f'v_bfe_u32 v{t+2}, v{t+2}, 5, 1'); a.e(f'v_mul_u32_u24 v{t+2}, {KV_CH}, v{t+2}'); a.e(f'v_add_u32 v{t+8}, v{t+8}, v{t+2}')
        a.e(f'v_cmp_gt_u32 vcc, 16, v0')
        a.e(f'v_cndmask_b32 v{t+3}, v{t+8}, v{t+3}, vcc')
        a.e(f'v_cmp_gt_u32 vcc, 80, v0')
        a.e('s_and_saveexec_b64 s[76:77], vcc')
        lab = a.newlabel('Lcz')
        a.e(f's_cbranch_execz {lab}')
        a.e(f'ds_write_b128 v{t+3}, {v(Z,4)}', tag='hw')
        a.label(lab)
        a.e('s_mov_b64 exec, s[76:77]')
    def prep(self, a):
        def f(a):
            t = 8
            a.e(f'v_lshlrev_b32 v{t}, 4, v{V_LANE}')
            a.wait_vm('kvl')
            for j in range(8):
                a.e(f'ds_write_b128 v{t}, {ac(224+4*j,4)} offset:{KV0 + (j//4)*KV_CH + 512 + (j%4)*1024}', tag='hw')
        on_wave0(a, f)
    def setup_main(self, a):
        L = V_LANE; VA_, VB_ = 2, 3; t = 4
        a.e(f's_lshr_b32 s76, s{S_WAVE}, 1'); a.e(f's_and_b32 s77, s{S_WAVE}, 1')
        a.e(f'v_bfe_u32 v{t}, v{L}, 2, 2'); a.e(f'v_mul_u32_u24 v{VA_}, 4160, v{t}')
        a.e(f'v_and_b32 v{t}, 3, v{L}'); a.e(f'v_lshl_add_u32 v{VA_}, v{t}, 3, v{VA_}')
        a.e(f'v_lshrrev_b32 v{t}, 4, v{L}'); a.e(f'v_lshlrev_b32 v{t}, 4, v{t}'); a.e(f'v_sub_u32 v{VA_}, v{VA_}, v{t}')
        a.e(f's_mul_i32 s78, s76, {HC_CH}'); a.e(f's_lshl_b32 s79, s77, 8'); a.e('s_add_u32 s78, s78, s79'); a.e(f's_add_u32 s78, s78, {HC0 + 56}')
        a.e(f'v_add_u32 v{VA_}, s78, v{VA_}')
        a.e(f'v_and_b32 v{t}, 15, v{L}'); a.e(f'v_lshlrev_b32 v{VB_}, 5, v{t}')
        a.e(f'v_lshrrev_b32 v{t}, 4, v{L}'); a.e(f'v_lshl_add_u32 v{VB_}, v{t}, 4, v{VB_}')
        a.e(f's_mul_i32 s78, s76, {KV_CH}'); a.e(f's_lshl_b32 s79, s77, 8'); a.e('s_sub_u32 s78, s78, s79'); a.e(f's_add_u32 s78, s78, {KV0 + 32 + 256}')
        a.e(f'v_add_u32 v{VB_}, s78, v{VB_}')
        for i in range(16): a.e(f'v_mov_b64 {v(self.ACC+2*i,2)}, 0')
    def main(self, a, hooks, vm_items):
        VA_, VB_ = 2, 3
        def rd(it, p):
            FA = self.FA + 64*p; res = []
            for j in range(8):
                res.append((f'ds_read_b64_tr_b16 {v(FA+4*j,2)}, v{VA_} offset:{512*j + 64*it + 8}', ('cA', it, j)))
                res.append((f'ds_read_b64_tr_b16 {v(FA+4*j+2,2)}, v{VA_} offset:{512*j + 64*it}', ('cA', it, j)))
                res.append((f'ds_read_b128 {v(FA+32+4*j,4)}, v{VB_} offset:{512*j + (3-it)*64}', ('cB', it, j)))
            return res
        for tx, tg in rd(0, 0): a.e(tx, tag=tg)
        for it in range(4):
            p = it & 1; FA = self.FA + 64*p
            fill = rd(it+1, p ^ 1) if it < 3 else []
            vmi = list(vm_items.get(it, lambda: [])())
            pairs = [(j1, d) for j1 in range(8) for d in range(8) if j1 + d <= 7]
            pairs.sort(key=lambda x: (max(x), x))
            seen = set(); nf = len(fill); k = 0; nv = len(vmi); kv = 0
            for idx, (j1, d) in enumerate(pairs):
                need = []
                if ('cA', it, j1) not in seen: need.append(('cA', it, j1)); seen.add(('cA', it, j1))
                if ('cB', it, d) not in seen: need.append(('cB', it, d)); seen.add(('cB', it, d))
                if need: a.wait_lg(need)
                q = j1 + d
                a.e(f'v_mfma_f32_16x16x32_bf16 {v(self.ACC+4*q,4)}, {v(FA+4*j1,4)}, {v(FA+32+4*d,4)}, {v(self.ACC+4*q,4)}')
                want = ((idx + 1) * nf) // 30
                while k < min(want, nf):
                    tx, tg = fill[k]; a.e(tx, tag=tg); k += 1
                wantv = ((idx + 1) * nv) // 36
                while kv < wantv:
                    emit_items(a, [vmi[kv]]); kv += 1
                if (it, idx) in hooks: hooks[(it, idx)](a)
            while k < nf:
                tx, tg = fill[k]; a.e(tx, tag=tg); k += 1
    def epilogue(self, a, units=()):
        L = V_LANE; t = 4
        a.e(f'v_lshlrev_b32 v{t}, 4, v{L}')
        a.e(f's_lshl_b32 s78, s{S_WAVE}, 12'); a.e(f's_add_u32 s78, s78, {RED0}'); a.e(f'v_add_u32 v{t+1}, s78, v{t}')
        a.e(f's_xor_b32 s79, s{S_WAVE}, 1'); a.e('s_lshl_b32 s79, s79, 12'); a.e(f's_add_u32 s79, s79, {RED0}'); a.e(f'v_add_u32 v{t+2}, s79, v{t}')
        lab1 = a.newlabel('Lce'); lab2 = a.newlabel('Lce'); K = 40
        a.e('s_cmp_eq_u32 s77, 0'); a.e(f's_cbranch_scc0 {lab1}')
        for j in range(4): a.e(f'ds_write_b128 v{t+1}, {v(self.ACC+16+4*j,4)} offset:{j*1024}')
        for j in range(8): a.e(f'v_mov_b64 {v(K+2*j,2)}, {v(self.ACC+2*j,2)}')
        a.e(f's_branch {lab2}')
        a.label(lab1)
        a.e('s_nop 7')
        for j in range(4): a.e(f'ds_write_b128 v{t+1}, {v(self.ACC+4*j,4)} offset:{j*1024}')
        for j in range(8): a.e(f'v_mov_b64 {v(K+2*j,2)}, {v(self.ACC+16+2*j,2)}')
        a.label(lab2)
        a.e('s_waitcnt lgkmcnt(0)')
        a.e('s_barrier')
        P, KVv, U, OO = 184, 200, 208, 220
        for j in range(4): a.e(f'ds_read_b128 {v(P+4*j,4)}, v{t+2} offset:{j*1024}', tag='red')
        a.e(f'v_and_b32 v{t}, 15, v{L}'); a.e(f'v_lshlrev_b32 v{t}, 5, v{t}'); a.e(f'v_lshrrev_b32 v{t+1}, 4, v{L}'); a.e(f'v_lshl_add_u32 v{t}, v{t+1}, 3, v{t}')
        a.e(f's_mul_i32 s78, s76, {KV_CH}'); a.e('s_lshl_b32 s79, s77, 11'); a.e('s_add_u32 s78, s78, s79'); a.e(f's_add_u32 s78, s78, {KV0+512}')
        a.e(f'v_add_u32 v{t+1}, s78, v{t}')
        for j in range(4): a.e(f'ds_read_b64 {v(KVv+2*j,2)}, v{t+1} offset:{j*512}', tag='kvv')
        a.e('s_lshl_b32 s78, s75, 16'); a.e('s_and_b32 s79, s75, 0xffff0000'); a.e('s_cmp_eq_u32 s76, 0'); a.e('s_cselect_b32 s78, s78, s79')
        a.e('s_lshl_b32 s79, s2, 1'); a.e('s_add_u32 s79, s79, s76'); a.e('s_lshl_b32 s79, s79, 12'); a.e('s_lshl_b32 s80, s77, 11'); a.e('s_add_u32 s79, s79, s80')
        a.e(f's_add_u32 s79, s79, {WS_Y2T}')
        sp = Spreader(units, 6)
        sp.slot(a); sp.slot(a)
        a.wait_lg('red')
        for j in range(8): a.e(f'v_pk_add_f32 {v(K+2*j,2)}, {v(K+2*j,2)}, {v(P+2*j,2)}')
        a.wait_lg('kvv')
        for j in range(4):
            for e in range(2):
                unpack_lo(a, U+2*e, KVv+2*j+e); unpack_hi(a, U+2*e+1, KVv+2*j+e)
            for e in range(4): a.e(f'v_fmac_f32 v{K+4*j+e}, s78, v{U+e}')
            sp.slot(a)
            O = OO + 2*j
            a.e(f'v_cvt_pk_bf16_f32 v{O}, v{K+4*j}, v{K+4*j+1}'); a.e(f'v_cvt_pk_bf16_f32 v{O+1}, v{K+4*j+2}, v{K+4*j+3}')
            a.e(f'buffer_store_dwordx2 {v(O,2)}, v{t}, {sq(R_WS)}, s79 offen offset:{j*512} {SC}', tag='yst')
        sp.flush(a)
    def publish(self, a, vt):
        a.e('s_lshr_b32 s78, s2, 5'); a.e('s_lshl_b32 s78, s78, 1'); a.e('s_add_u32 s78, s78, s77'); a.e('s_lshl_b32 s78, s78, 6')
        a.e('s_and_b32 s79, s2, 31'); a.e('s_lshl_b32 s79, s79, 1'); a.e('s_add_u32 s78, s78, s79'); a.e('s_add_u32 s78, s78, s76')
        a.e(f's_lshl_b32 s78, s78, {FS}'); a.e(f's_add_u32 s78, s78, {FY}')
        publish(a, ['s78'], vt=vt)

Y2L = 0; RED2 = 8192
class Gemm2:
    ACC, RB, NR, E = 8, 72, 14, 184
    VW0, VW1 = 240, 241
    VH0, VH1 = 218, 219
    def decode(self, a):
        if Opt.g2map == 1:
            a.e('s_bfe_u32 s81, s2, 0x20001'); a.e('s_lshl_b32 s81, s81, 9'); a.e('s_bfe_u32 s83, s2, 0x30003'); a.e('s_lshl_b32 s84, s83, 6'); a.e('s_add_u32 s81, s81, s84')
            a.e('s_lshr_b32 s82, s2, 6')
            a.e('s_mul_i32 s84, s83, 7'); a.e('s_lshr_b32 s84, s84, 1'); a.e('s_mul_i32 s83, s82, 7'); a.e('s_add_u32 s84, s84, s83')
            a.e('s_cmp_ge_u32 s84, 28'); a.e('s_cselect_b32 s83, 28, 0'); a.e('s_sub_u32 s84, s84, s83')
            a.e('s_and_b32 s83, s2, 1'); a.e('s_lshl_b32 s83, s83, 2'); a.e('s_add_u32 s82, s82, s83')
        else:
            a.e('s_and_b32 s81, s2, 7'); a.e('s_lshl_b32 s81, s81, 8'); a.e('s_lshr_b32 s82, s2, 3'); a.e('s_and_b32 s83, s82, 3'); a.e('s_lshl_b32 s84, s83, 6'); a.e('s_add_u32 s81, s81, s84')
            a.e('s_lshr_b32 s82, s82, 2')
            a.e('s_mul_i32 s84, s82, 7'); a.e('s_lshr_b32 s84, s84, 1'); a.e('s_mul_i32 s83, s83, 7'); a.e('s_add_u32 s84, s84, s83')
            a.e('s_cmp_ge_u32 s84, 28'); a.e('s_cselect_b32 s83, 28, 0'); a.e('s_sub_u32 s84, s84, s83')
        a.e('s_lshl_b32 s84, s84, 10'); a.e('s_mov_b32 s86, s84')
        a.e('s_lshl_b32 s82, s82, 6')
        a.e('s_lshr_b32 s83, s82, 5'); a.e('s_mul_i32 s83, s83, 112'); a.e(f's_mul_i32 s45, s{S_WAVE}, 28'); a.e('s_add_u32 s83, s83, s45')
        a.e('s_lshl_b32 s83, s83, 10'); a.e(f's_add_u32 s83, s83, {WS_W2F}')
        a.e('s_lshr_b32 s85, s81, 5'); a.e('s_mul_i32 s85, s85, 112'); a.e('s_add_u32 s85, s85, s45')
        a.e('s_lshl_b32 s85, s85, 10'); a.e(f's_add_u32 s85, s85, {WS_H}')
    def wflag_addr(self, a, vd):
        a.e(f'v_and_b32 v{vd}, 31, v{V_LANE}'); a.e(f'v_lshlrev_b32 v{vd}, {FS}, v{vd}'); a.e(f'v_add_u32 v{vd}, {FW}, v{vd}')
    def touch_items(self, vt, s_ok):
        return [[('s_lshl_b32 s45, s62, 2', None), (f's_add_u32 s45, s45, s{S_WAVE}', None), ('s_lshl_b32 s45, s45, 13', None), (f's_add_u32 s45, s45, {WS_W2F}', None),
                 ('s_and_b32 s44, s2, 1', None), (f's_mul_i32 s44, s44, {8*112*1024}', None), ('s_add_u32 s45, s45, s44', None),
                 (f's_cmp_eq_u32 s{s_ok}, 1', None), ('s_cselect_b32 s44, 0, 0x20000000', None), (f'v_lshlrev_b32 v{vt}, 7, v{V_LANE}', None), (f'v_add_u32 v{vt}, s44, v{vt}', None),
                 (f'buffer_load_dword v{vt-5}, v{vt}, {sq(R_WS)}, s45 offen {SC}', 'touch')]]
    def w_setup(self, a):
        a.e(f'v_lshlrev_b32 v{self.VW0}, 4, v{V_LANE}'); a.e(f'v_add_u32 v{self.VW1}, {112*1024}, v{self.VW0}')
    def adv(self, cur):
        return [(f's_add_u32 s{cur}, s{cur}, 1024', None), (f's_cmp_eq_u32 s{cur}, {28*1024}', None), (f's_cselect_b32 s{cur}, 0, s{cur}', None)]
    def w_items(self, lo, hi):
        items = []
        for i in range(lo, hi):
            items.append([('s_add_u32 s45, s83, s84', None), (f'buffer_load_dwordx4 {ac((i*2)*4,4)}, v{self.VW0}, {sq(R_WS)}, s45 offen {SC}', ('w2', i))])
            items.append([(f'buffer_load_dwordx4 {ac((i*2+1)*4,4)}, v{self.VW1}, {sq(R_WS)}, s45 offen {SC}', ('w2', i))] + self.adv(84))
        return items
    def hflag_addr(self, a, vd):
        a.e('s_lshr_b32 s45, s81, 7'); a.e(f's_lshl_b32 s45, s45, {6+FS}'); a.e(f's_add_u32 s45, s45, {FH}')
        a.e('s_bfe_u32 s89, s81, 0x10006'); a.e(f's_lshl_b32 s89, s89, {1+FS}'); a.e('s_add_u32 s45, s45, s89')
        a.e(f'v_lshrrev_b32 v{vd}, 1, v{V_LANE}'); a.e(f'v_min_u32 v{vd}, 13, v{vd}'); a.e(f'v_lshlrev_b32 v{vd}, 2, v{vd}'); a.e(f'v_and_b32 v{vd+1}, 1, v{V_LANE}'); a.e(f'v_add_u32 v{vd}, v{vd}, v{vd+1}')
        a.e(f'v_lshl_add_u32 v{vd}, v{vd}, {FS}, s45')
    def yflag_addr(self, a, vd):
        a.e('s_lshr_b32 s45, s82, 6'); a.e('s_lshl_b32 s45, s45, 1'); a.e('s_lshr_b32 s89, s81, 10'); a.e('s_add_u32 s45, s45, s89'); a.e(f's_lshl_b32 s45, s45, {6+FS}'); a.e(f's_add_u32 s45, s45, {FY}')
        a.e(f'v_lshl_add_u32 v{vd}, v{V_LANE}, {FS}, s45')
    def h_items(self, i):
        r = self.RB + (i % self.NR)*8
        return [[('s_add_u32 s45, s85, s86', None), (f'buffer_load_dwordx4 {v(r,4)}, v{self.VH0}, {sq(R_WS)}, s45 offen {SC}', ('h', i))],
                [(f'buffer_load_dwordx4 {v(r+4,4)}, v{self.VH1}, {sq(R_WS)}, s45 offen {SC}', ('h', i))] + self.adv(86)]
    def start(self, a):
        a.e(f'v_lshlrev_b32 v{self.VH0}, 4, v{V_LANE}'); a.e(f'v_add_u32 v{self.VH1}, {112*1024}, v{self.VH0}')
        for i in range(self.NR): emit_items(a, self.h_items(i))
    def init_acc(self, a):
        for i in range(32): a.e(f'v_mov_b64 {v(self.ACC+2*i,2)}, 0')
    def main(self, a, hooks):
        a.comment('gemm2: main')
        for kl in range(28):
            a.wait_vm([('h', kl), ('w2', kl)])
            r = self.RB + (kl % self.NR)*8
            nxt = self.h_items(kl + self.NR) if kl + self.NR < 28 else []
            n = 0
            for aa in range(2):
                for bb in range(2):
                    acc = self.ACC + (aa*2+bb)*16
                    a.e(f'v_mfma_f32_32x32x16_bf16 {v(acc,16)}, {ac((kl*2+aa)*4,4)}, {v(r+4*bb,4)}, {v(acc,16)}')
                    if aa == 1 and nxt: emit_items(a, [nxt.pop(0)])
            if kl in hooks: hooks[kl](a)
    def issue_epi_loads(self, a):
        L = V_LANE; E = self.E
        a.e(f's_and_b32 s87, s{S_WAVE}, 1'); a.e(f's_lshr_b32 s88, s{S_WAVE}, 1')
        a.e(f'v_and_b32 v3, 31, v{L}'); a.e('s_lshl_b32 s89, s88, 5'); a.e('s_add_u32 s89, s89, s81'); a.e('v_add_u32 v3, s89, v3')
        a.e(f'v_lshrrev_b32 v4, 5, v{L}'); a.e('v_lshlrev_b32 v4, 2, v4'); a.e('s_lshl_b32 s89, s87, 5'); a.e('s_add_u32 s89, s89, s82'); a.e('v_add_u32 v4, s89, v4')
        a.e('v_lshlrev_b32 v5, 10, v3'); a.e('v_lshl_add_u32 v5, v4, 1, v5')
        srd(a, R_T, P_Q, S*D*2)
        for q in range(4): a.e(f'buffer_load_dwordx2 {v(E+2*q,2)}, v5, {sq(R_T)}, 0 offen offset:{q*16}', tag='ex')
        a.e('v_lshlrev_b32 v6, 1, v4')
        srd(a, R_T, P_B2, D*2)
        for q in range(4): a.e(f'buffer_load_dwordx2 {v(E+8+2*q,2)}, v6, {sq(R_T)}, 0 offen offset:{q*16}', tag='eb')
        a.e('v_and_b32 v7, 1, v3'); a.e('v_lshrrev_b32 v6, 1, v3'); a.e('v_lshlrev_b32 v6, 7, v6'); a.e('v_lshl_add_u32 v6, v7, 3, v6'); a.e(f'v_add_u32 v6, {WS_ST}, v6')
        a.e(f'buffer_load_dwordx2 {v(E+16,2)}, v6, {sq(R_WS)}, 0 offen {SC}', tag='es')
    YR = 220
    def load_y2(self, a):
        L = V_LANE
        a.e(f'v_lshrrev_b32 v6, 3, v{L}'); a.e('v_add_u32 v6, s82, v6'); a.e('v_lshlrev_b32 v6, 12, v6')
        a.e(f'v_and_b32 v7, 7, v{L}'); a.e('v_lshl_add_u32 v6, v7, 4, v6')
        a.e('s_lshl_b32 s89, s81, 1'); a.e(f's_add_u32 s89, s89, {WS_Y2T}')
        for j in range(8):
            a.e(f'buffer_load_dwordx4 {v(self.YR+4*j,4)}, v6, {sq(R_WS)}, s89 offen {SC}', tag='ey')
            if j < 7: a.e(f's_add_u32 s89, s89, {8*4096}')
    def epilogue(self, a):
        L = V_LANE; E = self.E
        a.e('s_barrier')
        R = 72
        a.e(f'v_lshlrev_b32 v6, 4, v{L}'); a.e(f's_lshl_b32 s89, s{S_WAVE}, 12'); a.e(f'v_add_u32 v7, s89, v6')
        for j in range(4):
            aa, bb = j & 1, j >> 1
            acc = self.ACC + (aa*2+bb)*16
            own = a.newlabel('Lown'); nx = a.newlabel('Lnx')
            a.e(f's_cmp_eq_u32 s{S_WAVE}, {j}'); a.e(f's_cbranch_scc1 {own}')
            for qd in range(4):
                a.e(f'ds_write_b128 v7, {v(acc+4*qd,4)} offset:{RED2 + j*16384 + qd*1024}')
            a.e(f's_branch {nx}')
            a.label(own)
            if j == 0: a.e('s_nop 7')
            for i in range(8): a.e(f'v_mov_b64 {v(R+2*i,2)}, {v(acc+2*i,2)}')
            a.label(nx)
        def f(a):
            a.wait_vm('ey')
            for j in range(8): a.e(f'ds_write_b128 v6, {v(self.YR+4*j,4)} offset:{Y2L + j*1024}')
        on_wave0(a, f)
        a.e('s_waitcnt lgkmcnt(0)')
        a.e('s_barrier')
        for k in range(1, 4):
            a.e(f's_add_u32 s89, s{S_WAVE}, {k}'); a.e('s_and_b32 s89, s89, 3'); a.e('s_lshl_b32 s89, s89, 12')
            a.e(f's_lshl_b32 s45, s{S_WAVE}, 14'); a.e('s_add_u32 s89, s89, s45'); a.e(f'v_add_u32 v7, s89, v6')
            for qd in range(4):
                a.e(f'ds_read_b128 {v(R+k*16+4*qd,4)}, v7 offset:{RED2 + qd*1024}', tag=('rr', k))
        Y = 136
        a.e(f'v_lshrrev_b32 v6, 5, v{L}'); a.e('v_lshlrev_b32 v6, 2, v6'); a.e(f'v_bfe_u32 v7, v{L}, 2, 2'); a.e('v_add_u32 v6, v6, v7')
        a.e('s_lshl_b32 s89, s87, 5'); a.e('v_add_u32 v6, s89, v6'); a.e('v_lshlrev_b32 v6, 7, v6')
        a.e(f'v_bfe_u32 v7, v{L}, 4, 1'); a.e('v_lshl_add_u32 v6, v7, 5, v6'); a.e(f'v_and_b32 v7, 3, v{L}'); a.e('v_lshl_add_u32 v6, v7, 3, v6')
        a.e('s_lshl_b32 s89, s88, 6'); a.e('v_add_u32 v6, s89, v6')
        for q in range(4): a.e(f'ds_read_b64_tr_b16 {v(Y+2*q,2)}, v6 offset:{Y2L + q*1024}', tag='yt')
        a.wait_vm(['ex', 'eb', 'es'])
        unpack_hi(a, E+17, E+16); unpack_lo(a, E+16, E+16)
        a.e(f'v_rcp_f32 v{E+17}, v{E+17}')
        a.wait_lg(('rr', 1))
        for i in range(8): a.e(f'v_pk_add_f32 {v(R+2*i,2)}, {v(R+2*i,2)}, {v(R+16+2*i,2)}')
        a.e(f'v_mul_f32 v{E+18}, v{E+16}, v{E+17}'); a.e(f'v_xor_b32 v{E+18}, 0x80000000, v{E+18}')
        a.wait_lg(('rr', 3))
        for i in range(8): a.e(f'v_pk_add_f32 {v(R+32+2*i,2)}, {v(R+32+2*i,2)}, {v(R+48+2*i,2)}')
        for i in range(8): a.e(f'v_pk_add_f32 {v(R+2*i,2)}, {v(R+2*i,2)}, {v(R+32+2*i,2)}')
        a.wait_lg('yt')
        U = 144
        srd(a, R_T, P_OUT, S*D*2)
        for q in range(4):
            for e in range(2):
                unpack_lo(a, U+2*e, E+2*q+e); unpack_hi(a, U+2*e+1, E+2*q+e)
                unpack_lo(a, U+4+2*e, E+8+2*q+e); unpack_hi(a, U+4+2*e+1, E+8+2*q+e)
                unpack_lo(a, U+8+2*e, Y+2*q+e); unpack_hi(a, U+8+2*e+1, Y+2*q+e)
            for e in range(4): a.e(f'v_add_f32 v{R+4*q+e}, v{R+4*q+e}, v{U+4+e}')
            for e in range(4): a.e(f'v_mul_f32 v{U+12+e}, 0xbfb8aa3b, v{R+4*q+e}')
            for e in range(4): a.e(f'v_exp_f32 v{U+12+e}, v{U+12+e}')
            for e in range(4): a.e(f'v_fma_f32 v{U+4+e}, v{U+e}, v{E+17}, v{E+18}')
            for e in range(4): a.e(f'v_add_f32 v{U+12+e}, 1.0, v{U+12+e}')
            for e in range(4): a.e(f'v_rcp_f32 v{U+12+e}, v{U+12+e}')
            for e in range(4): a.e(f'v_mul_f32 v{U+4+e}, v{U+4+e}, v{U+8+e}')
            for e in range(4): a.e(f'v_mul_f32 v{U+12+e}, v{U+12+e}, v{R+4*q+e}')
            for e in range(4): a.e(f'v_fma_f32 v{U+e}, v{U+4+e}, v{U+12+e}, v{U+e}')
            O = 160 + 2*q
            a.e(f'v_cvt_pk_bf16_f32 v{O}, v{U}, v{U+1}'); a.e(f'v_cvt_pk_bf16_f32 v{O+1}, v{U+2}, v{U+3}')
            a.e(f'buffer_store_dwordx2 {v(O,2)}, v5, {sq(R_T)}, 0 offen offset:{q*16}', tag='ost')

def fused_body(a):
    end = 'Lend'
    a.e('s_cmp_ge_u32 s2, 256'); a.e(f's_cbranch_scc1 {end}')
    a.e('s_load_dwordx16 s[4:19], s[0:1], 0'); a.e('s_load_dwordx8 s[20:27], s[0:1], 64'); a.e('s_load_dwordx4 s[28:31], s[0:1], 96')
    a.e(f'v_and_b32 v{V_LANE}, 63, v0'); a.e('v_lshrrev_b32 v2, 6, v0'); a.e('s_nop 0'); a.e(f'v_readfirstlane_b32 s{S_WAVE}, v2')
    if Opt.stamps: a.e('v_mov_b32 v255, 0')
    stamp(a, 'start'); stamp(a, 'cyc0', True)
    pre, g1, cv, g2 = Pre(), Gemm1(), Conv(), Gemm2()
    if Opt.codepf:
        lab = a.newlabel('Lcpf')
        a.e('s_and_b32 s90, s2, 0x38'); a.e('s_cmp_lg_u32 s90, 0'); a.e(f's_cbranch_scc1 {lab}')
        a.e('s_getpc_b64 s[90:91]')
        a.label('Lpcbase')
        a.e('v_lshlrev_b32 v63, 7, v0')
        a.e('v_min_u32 v63, Lend-Lpcbase, v63')
        a.e('global_load_dword v63, v63, s[90:91]', tag='cpf', optional=True)
        a.label(lab)
    g1.decode(a)
    a.e('s_waitcnt lgkmcnt(0)')
    stamp(a, 'kernarg')
    srd(a, R_WS, P_WS, WS_SIZE)
    pre.issue_stats(a)
    g2.decode(a)
    idle = 'Lidle'; join = 'Ljoin'
    a.e('s_cmp_ge_u32 s62, 28'); a.e(f's_cbranch_scc1 {idle}')
    saved0 = (list(a.vm), list(a.lg))
    g1.setup(a)
    emit_items(a, g1.dma_items(0)); emit_items(a, g1.dma_items(1))
    pre.setup(a); cv.filter_setup(a); g1.b1_setup(a)
    g1.setup2(a)
    emit_items(a, g1.dma_items(2))
    stamp(a, 'issued')
    pre.stats(a, store=False)
    stamp(a, 'stats_done')
    VS, VFK, VFW = 32, 34, 35
    S_PUB, S_WOK = 100, 101
    def hpre(a):
        pre.compute(a); stamp(a, 'pre_done')
    def hpay(a): cv.payload(a, 188)
    def hspoll(a):
        g1.stats_addr(a, VS)
        poll_issue(a, VS, g1.ST, 2, tag='spoll'); poll_issue(a, VS+1, g1.ST+2, 2, tag='spoll')
    def hpoll(a):
        def f(a):
            cv.flag_addr(a, VFK); poll_issue(a, VFK, 36)
        on_wave0(a, f)
    def hw0(a):
        wcheck(a); g2.w_setup(a)
    def hwpoll(a):
        g2.wflag_addr(a, VFW); poll_issue(a, VFW, 38, 1, tag='wpoll')
    def hweval(a):
        a.wait_vm('wpoll')
        a.e(f'v_cmp_ne_u32 vcc, s{S_TAG}, v38'); a.e('s_cmp_eq_u64 vcc, 0'); a.e(f's_cselect_b32 s{S_WOK}, 1, 0')
    def wcheck(a):
        lab = a.newlabel('Lwk')
        a.e(f's_cmp_eq_u32 s{S_WOK}, 1'); a.e(f's_cbranch_scc1 {lab}')
        saved = (list(a.vm), list(a.lg))
        a.opt_depth = getattr(a, 'opt_depth', 0) + 1
        poll_issue(a, VFW, 38, 1, tag='wpoll2')
        poll_check(a, [(VFW, 38, 1, 38)], tag='wpoll2')
        a.opt_depth -= 1; a._issued = []
        a.vm, a.lg = saved
        a.label(lab)
    def hkv(a):
        def f(a):
            poll_check(a, [(VFK, 36, 1, 36)])
            cv.load_kv(a, 37)
        on_wave0(a, f)
        stamp(a, 'flags_ok')
    def hmid(a):
        stamp(a, 'epi_comp')
    S_PUB2 = 99
    def hstore(a):
        pre.store_stats(a); pre.store_kv(a)
        a.e(f's_mov_b32 s{S_PUB2}, 0')
    def trypre(a, block=False):
        lab = a.newlabel('Ltq')
        a.e(f's_cmp_lg_u32 s{S_PUB2}, 0'); a.e(f's_cbranch_scc1 {lab}')
        saved = (list(a.vm), list(a.lg))
        idx = [i for i, (t, c) in enumerate(a.vm) if t == 'prest']
        if idx:
            n = len([x for x in a.vm[idx[-1]+1:] if not x[1].endswith('?')])
            if block: a.e(f's_waitcnt vmcnt({n})')
            else:
                a.e('s_getreg_b32 s90, hwreg(HW_REG_IB_STS)'); a.e('s_and_b32 s91, s90, 15'); a.e('s_lshr_b32 s90, s90, 18'); a.e('s_and_b32 s90, s90, 0x30'); a.e('s_or_b32 s90, s90, s91')
                a.e(f's_cmp_gt_u32 s90, {n}'); a.e(f's_cbranch_scc1 {lab}')
        a.vm, a.lg = saved
        pre.publish(a, 56, optional=True)
        a.e(f's_mov_b32 s{S_PUB2}, 1')
        a.label(lab)
    def hpub(a):
        a.wait_vm('prest'); pre.publish(a, 42)
    def merge(*lists):
        lists = [list(l) for l in lists if l]
        tot = [sum(ucost(u) for u in l) or 1 for l in lists]; done = [0.0]*len(lists); out = []
        while any(lists):
            k = min((i for i in range(len(lists)) if lists[i]), key=lambda i: (done[i] + 0.5*ucost(lists[i][0])) / tot[i])
            u = lists[k].pop(0); done[k] += ucost(u); out.append(u)
        return out
    def split(units, n):
        tot = sum(ucost(u) for u in units); parts = [[] for _ in range(n)]; acc = 0.0
        for u in units:
            parts[min(n-1, int(acc * n / tot))].append(u); acc += ucost(u)
        return parts
    D = lambda st: item_units(g1.dma_items(st))
    C = lambda f: [[('call', f)]]
    prec = record(a, lambda r: pre.compute(r)) + C(lambda a: a.e(f's_mov_b32 s{S_PUB2}, 0'))
    pp = split(prec, 2)
    NW1 = Opt.nw1
    fill = {
        0: lambda: D(3) + item_units(pre.items()) + item_units(cv.filter_items()) + item_units(g1.b1_items()),
        1: lambda: D(4),
        2: lambda: D(5),
        3: lambda: D(6),
        4: lambda: merge(D(7), pp[0]) + C(hwpoll),
        5: lambda: C(pre.store_stats) + pp[1],
        6: lambda: C(hspoll) + C(hweval) + C(hw0) + merge(item_units(g2.w_items(0, NW1//2)), record(a, lambda r: cv.payload(r, 188))) + C(trypre),
        7: lambda: C(trypre) + merge(item_units(g2.w_items(NW1//2, NW1)), record(a, lambda r: g1.b1_unpack(r))) + C(trypre),
    }
    g1.main(a, {}, fill)
    stamp(a, 'g1_main'); stamp(a, 'cycB', True)
    g1.epilogue_a(a)
    trypre(a)
    poll_check(a, [(VS, g1.ST, 2, g1.ST+1), (VS+1, g1.ST+2, 2, g1.ST+3)], tag='spoll')
    stamp(a, 'stats_ok')
    g1.epilogue(a, hmid, lambda a: None, lambda a: None, [])
    trypre(a, True)
    hpoll(a)
    cv.prep_hc(a, 8)
    hkv(a)
    stamp(a, 'g1_epi')
    a.e(f's_mov_b32 s{S_PUB}, 0')
    cv.prep(a)
    after_g1 = (list(a.vm), list(a.lg))
    a.e(f's_branch {join}')
    a.label(idle)
    a.vm, a.lg = list(saved0[0]), list(saved0[1])
    w2t = W2T()
    w2t.issue(a)
    pre.setup(a); cv.filter_setup(a)
    emit_items(a, pre.items()); emit_items(a, cv.filter_items())
    w2t.compute(a)
    stamp(a, 'w2t_st')
    a.wait_vm('w2st')
    stamp(a, 'w2t_ack')
    a.e('s_barrier')
    pre.tag(a)
    on_wave0(a, lambda a: w2t.publish(a, 10))
    pre.stats(a, True)
    pre.compute(a)
    if Opt.defer: pre.store_kv(a)
    cv.payload(a, 188)
    a.e('s_waitcnt vmcnt(0)')
    pre.publish(a, 42)
    a.e('s_barrier')
    cv.prep_hc(a, 8)
    def idlepoll(a):
        cv.flag_addr(a, VFK); g2.wflag_addr(a, VFW)
        a.e('s_sleep 32')
        poll_issue(a, VFW, 38, 1)
        poll_check(a, [(VFW, 38, 1, 38)], sleep=16)
        poll_issue(a, VFK, 36)
        poll_check(a, [(VFK, 36, 1, 36)], sleep=16)
        cv.load_kv(a, 37)
    on_wave0(a, idlepoll)
    a.e('s_barrier')
    a.e(f's_mov_b32 s{S_PUB}, 1')
    a.e(f's_mov_b32 s98, {WS_H}'); a.e('s_mov_b32 s97, 0'); a.e(f'v_mov_b32 v{g1.VHS}, 0x20000000')
    g2.w_setup(a); emit_items(a, g2.w_items(0, Opt.nw1))
    cv.prep(a)
    a.label(join)
    a.vm, a.lg = after_g1
    cv.setup_main(a)
    a.e('s_waitcnt lgkmcnt(0)')
    a.e('s_barrier')
    stamp(a, 'conv_prep'); stamp(a, 'cycC', True)
    def trypub(a, block=False):
        lab = a.newlabel('Ltp')
        a.e(f's_cmp_lg_u32 s{S_PUB}, 0'); a.e(f's_cbranch_scc1 {lab}')
        saved = (list(a.vm), list(a.lg))
        idx = [i for i, (t, c) in enumerate(a.vm) if t == 'hst']
        if idx:
            n = len([x for x in a.vm[idx[-1]+1:] if not x[1].endswith('?')])
            if block: a.e(f's_waitcnt vmcnt({n})')
            else:
                a.e('s_getreg_b32 s90, hwreg(HW_REG_IB_STS)'); a.e('s_and_b32 s91, s90, 15'); a.e('s_lshr_b32 s90, s90, 18'); a.e('s_and_b32 s90, s90, 0x30'); a.e('s_or_b32 s90, s90, s91')
                a.e(f's_cmp_gt_u32 s90, {n}'); a.e(f's_cbranch_scc1 {lab}')
        a.vm, a.lg = saved
        g1.publish(a, 4)
        a.e(f's_mov_b32 s{S_PUB}, 1')
        a.label(lab)
    ch = {(0, 8): trypub, (0, 17): trypub, (0, 26): trypub, (0, 35): trypub, (1, 8): trypub, (1, 17): trypub, (1, 26): trypub, (2, 8): trypub, (1, 35): trypub, (2, 17): trypub, (2, 35): trypub, (3, 35): lambda a: trypub(a, True)}
    cv.main(a, ch, {0: lambda: [g1.hst_item(n) for n in range(Opt.hearly, 8)] + g2.w_items(Opt.nw1, 14), 1: lambda: g2.w_items(14, 18), 2: lambda: g2.w_items(18, 22), 3: lambda: g2.w_items(22, 26)})
    stamp(a, 'conv_main'); stamp(a, 'cycD', True)
    def hf(a):
        g2.hflag_addr(a, 216); poll_issue(a, 216, 217)
    on_wave0(a, hf)
    cv.epilogue(a, item_units(g2.w_items(26, 28)))
    stamp(a, 'conv_epi')
    g2.init_acc(a)
    on_wave0(a, lambda a: poll_check(a, [(216, 217, 1, 217)], sleep=2))
    a.e('s_barrier')
    stamp(a, 'hflag_ok')
    g2.start(a)
    a.wait_vm('yst'); cv.publish(a, 3)
    def k0(a):
        stamp(a, 'g2_k0')
    def k8(a):
        g2.issue_epi_loads(a)
        def f(a):
            g2.yflag_addr(a, 212); poll_issue(a, 212, 213)
        on_wave0(a, f)
        lab = a.newlabel('Lfar')
        a.e('s_cmp_lg_u32 s2, 0'); a.e(f's_cbranch_scc1 {lab}')
        a.e(f'v_lshlrev_b32 v214, {FS}, v0'); a.e(f'v_add_u32 v214, {FAR}, v214')
        a.e(f'buffer_load_dword v215, v214, {sq(R_WS)}, 0 offen sc1', tag='far', optional=True)
        a.label(lab)
    def k20(a):
        stamp(a, 'g2_k20')
        def f(a):
            poll_check(a, [(212, 213, 1, 213)], sleep=2)
            g2.load_y2(a)
        on_wave0(a, f)
        stamp(a, 'yflag_ok')
    g2.main(a, {0: k0, 8: k8, 23: k20})
    stamp(a, 'g2_main')
    g2.epilogue(a)
    lab = a.newlabel('Lfin')
    a.e('s_cmp_lg_u32 s2, 0'); a.e(f's_cbranch_scc1 {lab}')
    poll_check(a, [(214, 215, 1, 215)], tag='far')
    a.e('s_barrier')
    a.e(f's_cmp_lg_u32 s{S_WAVE}, 0'); a.e(f's_cbranch_scc1 {lab}')
    a.e(f's_mov_b32 s90, {WS_E}')
    publish(a, ['s90'], vt=2)
    a.label(lab)
    stamp(a, 'end'); stamp(a, 'cyc1', True)
    write_stamps(a)
    a.label(end)
    a.e('s_endpgm')

def header():
    ref = open('cdna_kernels/' + NAME + '.s.ref').read().split('\n')
    hdr = []
    for ln in ref:
        if ln.startswith('; @launch') or ln.startswith('; Override') or ln.startswith('; grid=ceil'): break
        hdr.append(ln)
    return '\n'.join(hdr) + '\n'

def fused():
    name = NAME + '_kernel'
    a = Asm()
    fused_body(a)
    n = a.fix_hazards()
    out = header() + '; @launch grid=(256,1,1) block=(256,1,1) lds=163840\n'
    out += '.amdgcn_target "amdgcn-amd-amdhsa--gfx950"\n.text\n'
    out += f'.globl {name}\n.p2align 8\n.type {name},@function\n{name}:\n' + a.text()
    out += f'''.section .rodata,"a"
.p2align 6
.amdhsa_kernel {name}
  .amdhsa_next_free_vgpr 512
  .amdhsa_next_free_sgpr 102
  .amdhsa_accum_offset 256
  .amdhsa_group_segment_fixed_size 0
  .amdhsa_kernarg_size 112
  .amdhsa_user_sgpr_count 2
  .amdhsa_user_sgpr_kernarg_segment_ptr 1
  .amdhsa_system_sgpr_workgroup_id_x 1
.end_amdhsa_kernel
'''
    return out

if __name__ == '__main__':
    dst = sys.argv[1]
    for o in sys.argv[2:]:
        k, val = o.split('='); setattr(Opt, k, int(val))
    txt = fused()
    if Opt.stamps: open(dst + '.names', 'w').write(' '.join(STAMP_NAMES))
    open(dst, 'w').write(txt)
    print('wrote', dst, len(txt), 'bytes')
```

```python
import sys, os
sys.path.insert(0, os.path.dirname(os.path.abspath(__file__)))
from asmlib import Asm

NAME = 'recurrent_scan__ssm_conv_h3__dense_activation_squared_relu__prompt'
S, D, F = 2048, 512, 1792
WS_KVT, WS_Y2T, WS_W2F, WS_H, WS_ST, WS_FLAG = 0x000000, 0x200000, 0x400000, 0x600000, 0xE80000, 0xE10000
WS_E = 0xE08000
FK, FW, FAR, FH, FY = 0xE10000, 0xE30000, 0xE34000, 0xE40000, 0xE60000
FS = 7
S_TAG, S_SPIN = 16, 17
TAGC = 0x9E3779B9
SPIN_MAX = 100000
WS_STAMP = 0xF00000
WS_SIZE = 0x10000000
SCHEDS = {0: {'pre': 4, 'pay': 5, 'pub': 6, 'spoll': 5, 'touch': 7, 'first': [],
              'items': {0: ['s2'], 1: ['s3', 'cold', 'filt', 'b1'], 2: ['s4'], 3: ['s5'], 4: ['s6'], 5: ['s7', 'weval', 'touch']}},
          1: {'pre': 3, 'pay': 6, 'pub': 5, 'spoll': 5, 'touch': 7, 'first': [],
              'items': {0: ['s2', 'cold'], 1: ['s3'], 2: ['s4', 'filt'], 3: ['s5', 'b1'], 4: ['s6'], 5: ['s7']}}}
class Opt:
    stamps = 0
    codepf = 1
    dbgwg = -1
    stagestamps = 0
    sched = 0
    defer = 0
    hearly = 8
    hpre = 5
    kst = 0
    ky = 2
    kepi = 14
    b2touch = 1
    wb0 = 0
    hint = 0
    dbg_now = 0
    dbg_notry = 0
    early = 2
    outsc = 0
    g2map = 0
    nw1 = 6
    touch = 1
    rot1 = 1
    rot2 = 0
    prestage = 2
P_Q, P_K, P_V, P_SK, P_SSMK, P_SSMD, P_BX, P_W1 = 4, 6, 8, 10, 12, 14, 16, 18
P_B1, P_W2, P_B2, P_OUT, P_DBG, P_WS = 20, 22, 24, 26, 28, 30
S_WAVE = 3
R_WS, R_A, R_B, R_C = 32, 36, 40, 44
def sp(p): return f's[{p}:{p+1}]'
def sq(r): return f's[{r}:{r+3}]'
def v(i, n=1): return f'v{i}' if n == 1 else f'v[{i}:{i+n-1}]'
def ac(i, n=1): return f'a{i}' if n == 1 else f'a[{i}:{i+n-1}]'
def srd(a, dst, ptr, size):
    a.e(f's_mov_b32 s{dst}, s{ptr}'); a.e(f's_mov_b32 s{dst+1}, s{ptr+1}')
    a.e(f's_mov_b32 s{dst+2}, {hex(size)}'); a.e(f's_mov_b32 s{dst+3}, 0x20000')
V_LANE = 1
R_T = 92
def srd_items(ptr, size, R=R_T):
    return [(f's_mov_b32 s{R}, s{ptr}', None), (f's_mov_b32 s{R+1}, s{ptr+1}', None), (f's_mov_b32 s{R+2}, {hex(size)}', None), (f's_mov_b32 s{R+3}, 0x20000', None)]
def unpack_lo(a, d, s): a.e(f'v_lshlrev_b32 v{d}, 16, v{s}')
def unpack_hi(a, d, s): a.e(f'v_and_b32 v{d}, 0xffff0000, v{s}')

STAMP_NAMES = []
def stamp(a, name, cyc=False):
    if not Opt.stamps: return
    if Opt.stamps == 2 and name not in ('start', 'end', 'cyc0', 'cyc1', 'g1_main', 'conv_prep', 'hflag_ok', 'g2_main'): return
    if name not in STAMP_NAMES: STAMP_NAMES.append(name)
    i = STAMP_NAMES.index(name)
    a.e('s_memtime s[90:91]' if cyc else 's_memrealtime s[90:91]'); a.e('s_waitcnt lgkmcnt(0)'); a.e(f'v_writelane_b32 v255, s90, {i}')
def write_stamps(a):
    if not Opt.stamps: return
    a.e(f's_lshl_b32 s90, s2, 2'); a.e(f's_add_u32 s90, s90, s{S_WAVE}'); a.e('s_lshl_b32 s90, s90, 8'); a.e(f's_add_u32 s90, s90, {WS_STAMP}')
    a.e(f'v_lshlrev_b32 v2, 2, v{V_LANE}')
    a.e(f'buffer_store_dword v255, v2, {sq(R_WS)}, s90 offen')
    if Opt.dbgwg >= 0:
        lab = a.newlabel('Ldbg')
        a.e(f's_cmp_lg_u32 s2, {Opt.dbgwg}'); a.e(f's_cbranch_scc1 {lab}')
        a.e(f's_cmp_lg_u32 s{S_WAVE}, 0'); a.e(f's_cbranch_scc1 {lab}')
        sel = ['kernarg', 'issued', 'g1_s0', 'pre_arrived', 'pre_done', 'g1_s4', 'g1_s6', 'g1_main', 'g1_epi', 'conv_prep', 'conv_main', 'hflag_ok', 'g2_k0', 'g2_k20', 'g2_main', 'end']
        a.e('v_readlane_b32 s92, v255, 0'); a.e('v_mov_b32 v3, 0')
        for i, nm in enumerate(sel):
            if nm not in STAMP_NAMES: continue
            a.e(f'v_readlane_b32 s93, v255, {STAMP_NAMES.index(nm)}'); a.e('s_sub_u32 s93, s93, s92'); a.e(f'v_writelane_b32 v3, s93, {i}')
        a.e('s_mov_b64 exec, 0xffff'); a.e(f'global_store_dword v2, v3, {sp(P_DBG)}'); a.e('s_mov_b64 exec, -1')
        a.label(lab)
def publish(a, addrs, vt=2, optional=False):
    a.e(f'v_mov_b32 v{vt}, 0')
    for i, sr in enumerate(addrs): a.e(f'v_writelane_b32 v{vt}, {sr}, {i}')
    a.e(f'v_mov_b32 v{vt+1}, s{S_TAG}')
    a.e(f's_mov_b64 exec, {(1 << len(addrs)) - 1}')
    a.e(f'buffer_store_dword v{vt+1}, v{vt}, {sq(R_WS)}, 0 offen sc1', tag='flag', optional=optional)
    a.e('s_mov_b64 exec, -1')
def poll_issue(a, vaddr, vdst, width=1, tag='poll'):
    op = {1: 'dword', 2: 'dwordx2'}[width]
    a.e(f'buffer_load_{op} {v(vdst, width)}, v{vaddr}, {sq(R_WS)}, 0 offen sc1', tag=tag)
def poll_check(a, items, tag='poll', sleep=4):
    top = a.newlabel('Lpc'); done = a.newlabel('Lpd')
    a.wait_vm(tag)
    a.e(f's_mov_b32 s{S_SPIN}, 0')
    a.label(top)
    for n, (va, vd, w, vt) in enumerate(items):
        a.e(f'v_cmp_ne_u32 vcc, s{S_TAG}, v{vt}')
        a.e('s_mov_b64 s[90:91], vcc' if n == 0 else 's_or_b64 s[90:91], s[90:91], vcc')
    a.e('s_cmp_eq_u64 s[90:91], 0')
    a.e(f's_cbranch_scc1 {done}')
    a.e(f's_add_u32 s{S_SPIN}, s{S_SPIN}, 1')
    a.e(f's_cmp_gt_u32 s{S_SPIN}, {SPIN_MAX}')
    a.e(f's_cbranch_scc1 {done}')
    a.e(f's_sleep {sleep}')
    saved = (list(a.vm), list(a.lg))
    for (va, vd, w, vt) in items: poll_issue(a, va, vd, w, tag=None)
    a.e('s_waitcnt vmcnt(0)')
    a.e(f's_branch {top}')
    a.vm, a.lg = saved
    a.label(done)
def on_wave0(a, f):
    lab = a.newlabel('Lw0')
    a.e(f's_cmp_lg_u32 s{S_WAVE}, 0'); a.e(f's_cbranch_scc1 {lab}')
    before = list(a.vm); a._issued = []
    a.opt_depth = getattr(a, 'opt_depth', 0) + 1
    f(a)
    a.opt_depth -= 1
    a.vm = before + [(t, c if c.endswith('?') else c + '?') for (t, c) in getattr(a, '_issued', [])]
    a._issued = []
    a.label(lab)
def allreduce2(a, x, y, t0, t1):
    for ctl in ('quad_perm:[1,0,3,2]', 'quad_perm:[2,3,0,1]', 'row_half_mirror', 'row_mirror'):
        a.e(f'v_add_f32_dpp v{x}, v{x}, v{x} {ctl} row_mask:0xf bank_mask:0xf')
        a.e(f'v_add_f32_dpp v{y}, v{y}, v{y} {ctl} row_mask:0xf bank_mask:0xf')
    for sw in ('v_permlane16_swap_b32', 'v_permlane32_swap_b32'):
        a.e(f'v_mov_b32 v{t0}, v{x}'); a.e(f'v_mov_b32 v{t1}, v{y}')
        a.e(f'{sw} v{x}, v{t0}'); a.e(f'{sw} v{y}, v{t1}')
        a.e(f'v_add_f32 v{x}, v{x}, v{t0}'); a.e(f'v_add_f32 v{y}, v{y}, v{t1}')
class Rec:
    def __init__(self, a): self.a = a; self.ops = []
    def e(self, text, tag=None, optional=False):
        for ln in text.split('\n'):
            if ln.strip(): self.ops.append(('e', ln.strip(), tag, optional))
    def wait_vm(self, tags): self.ops.append(('vm', tags))
    def wait_lg(self, tags): self.ops.append(('lg', tags))
    def label(self, name=None): self.ops.append(('label', name)); return name
    def newlabel(self, base='L'): return self.a.newlabel(base)
    def comment(self, s): pass
    def call(self, f): self.ops.append(('call', f))
def units_of(ops):
    units = []; cur = []; mode = None; target = None
    for op in ops:
        cur.append(op)
        if op[0] == 'e':
            t = op[1]; mn = t.split()[0]
            if mode is None:
                if (mn == 's_mov_b64' and t.split()[1].startswith('exec') and not t.endswith('-1')) or 'saveexec' in mn: mode = 'exec'
                elif mn.startswith('s_cmp') : mode = 'scc'
                elif ' m0,' in t + ',' and mn.startswith('s_') and t.split()[1].startswith('m0'): mode = 'm0'
                elif mn.startswith('v_cmp') and 'vcc' in t: mode = 'vcc'
                elif mn.startswith('s_getreg'): mode = 'scc0'
            elif mode == 'exec':
                if mn == 's_mov_b64' and t.split()[1].startswith('exec') and (t.endswith('-1') or 's[' in t.split(',')[1]): mode = None
            elif mode == 'scc0':
                if mn.startswith('s_cmp'): mode = 'scc'
            elif mode == 'scc':
                if mn.startswith('s_cbranch'): mode = 'branch'; target = t.split()[1]
                elif mn.startswith(('s_cselect', 's_addc', 's_subb')): mode = None
            elif mode == 'm0':
                if mn.startswith('buffer_load') and t.endswith('lds'): mode = None
            elif mode == 'vcc':
                if mn.startswith('v_cndmask') or (mn.startswith('s_') and 'vcc' in t) : mode = 'vcc2'
            elif mode == 'vcc2':
                if not (mn.startswith('v_cndmask') or 'vcc' in t):
                    last = cur.pop(); units.append(cur); cur = [last]; mode = None
                    if (mn == 's_mov_b64' and t.split()[1].startswith('exec') and not t.endswith('-1')): mode = 'exec'
                    elif mn.startswith('s_cmp'): mode = 'scc'
        elif op[0] == 'label' and mode == 'branch' and op[1] == target: mode = None
        if mode is None:
            units.append(cur); cur = []
    if cur: units.append(cur)
    return units
def play(a, unit):
    for op in unit:
        if op[0] == 'e': a.e(op[1], tag=op[2], optional=op[3])
        elif op[0] == 'vm': a.wait_vm(op[1])
        elif op[0] == 'lg': a.wait_lg(op[1])
        elif op[0] == 'label': a.label(op[1])
        elif op[0] == 'call': op[1](a)
def ucost(unit):
    c = 0
    for op in unit:
        if op[0] == 'e':
            mn = op[1].split()[0]
            c += 3.0 if mn.startswith(('buffer_', 'global_')) else (1.5 if mn.startswith('ds_') else 1.0)
        elif op[0] == 'call': c += 6
    return c
def record(a, f):
    r = Rec(a); f(r); return units_of(r.ops)
def item_units(items):
    U = []
    for it in items:
        if callable(it): U.append([('call', it)]); continue
        u = []
        for t, tag in it:
            if t.endswith(':'): u.append(('label', t[:-1]))
            elif isinstance(tag, tuple) and len(tag) == 2 and tag[1] == 'opt': u.append(('e', t, tag[0], True))
            else: u.append(('e', t, tag, False))
        U.append(u)
    return U
class Spreader:
    def __init__(self, units, n):
        self.u = list(units); self.n = n; self.i = 0; self.total = sum(ucost(x) for x in self.u); self.done = 0.0
    def slot(self, a):
        self.i += 1
        want = self.total * self.i / self.n
        while self.u and self.done + 0.5*ucost(self.u[0]) <= want:
            x = self.u.pop(0); self.done += ucost(x); play(a, x)
    def flush(self, a):
        while self.u: play(a, self.u.pop(0))
def emit_items(a, items):
    for it in items:
        if callable(it):
            it(a); continue
        for t, tag in it:
            if t.endswith(':'): a.label(t[:-1])
            elif isinstance(tag, tuple) and len(tag) == 2 and tag[1] == 'opt': a.e(t, tag=tag[0], optional=True)
            else: a.e(t, tag=tag)

PRE_LDS = 131072
KIMG, VIMG, WIMG = PRE_LDS, PRE_LDS + 9216, PRE_LDS + 9216 + 8192
SC = 'sc1'
A_PAY = 192
A_HRAW, A_KV = 224, 236

class Pre:
    VE, XR, SKR, T, WR, SK, VD = 62, 32, 40, 42, 46, 54, 58
    KR, VR, U = 188, 200, 208
    def issue_stats(self, a):
        L = V_LANE; t = self.T
        a.e(f'v_mov_b32 v{t}, {WS_E}')
        a.e(f'buffer_load_dword v{self.VE}, v{t}, {sq(R_WS)}, 0 offen sc1', tag='pre0')
        a.e('s_and_b32 s58, s2, 7'); a.e('s_lshr_b32 s59, s58, 1'); a.e('s_lshl_b32 s59, s59, 9'); a.e('s_and_b32 s58, s58, 1'); a.e('s_lshl_b32 s58, s58, 5')
        a.e('s_lshr_b32 s60, s2, 3'); a.e('s_add_u32 s58, s58, s60'); a.e('s_lshl_b32 s58, s58, 3'); a.e('s_add_u32 s58, s58, s59')
        a.e(f's_lshl_b32 s59, s{S_WAVE}, 1'); a.e('s_add_u32 s58, s58, s59')
        a.e(f's_lshl_b32 s59, s58, 10')
        a.e(f'v_lshl_add_u32 v{t}, v{L}, 4, s59')
        srd(a, R_T, P_Q, S*D*2)
        a.e(f'buffer_load_dwordx4 {v(self.XR,4)}, v{t}, {sq(R_T)}, 0 offen', tag='pre0')
        a.e(f'buffer_load_dwordx4 {v(self.XR+4,4)}, v{t}, {sq(R_T)}, 0 offen offset:1024', tag='pre0')
    def setup(self, a):
        L = V_LANE; t = self.T
        a.e('s_lshr_b32 s48, s2, 3'); a.e('s_lshl_b32 s48, s48, 6')
        a.e('s_and_b32 s49, s2, 7'); a.e('s_lshl_b32 s49, s49, 7')
        a.e(f'v_lshrrev_b32 v{t}, 3, v{L}'); a.e(f'v_lshlrev_b32 v{t}, 10, v{t}')
        a.e(f'v_and_b32 v{t+1}, 7, v{L}'); a.e(f'v_lshl_add_u32 v{t}, v{t+1}, 4, v{t}')
        a.e('s_lshl_b32 s50, s48, 10'); a.e('s_add_u32 s50, s50, s49')
        a.e(f's_sub_u32 s51, s50, 8192'); a.e(f'v_add_u32 v{t+1}, s51, v{t}')
        a.e(f's_lshl_b32 s51, s{S_WAVE}, 14'); a.e('s_add_u32 s51, s51, s50')
        a.e(f's_lshl_b32 s52, s{S_WAVE}, 11')
        a.e(f'v_and_b32 v{t+2}, 15, v{L}'); a.e(f's_lshl_b32 s59, s{S_WAVE}, 4'); a.e('s_lshr_b32 s60, s49, 1'); a.e('s_add_u32 s59, s59, s60')
        a.e(f'v_add_u32 v{self.VD}, s59, v{t+2}')
        a.e(f'v_lshlrev_b32 v{t+2}, 3, v{self.VD}')
    def items(self):
        t = self.T; R = 96
        def mk(ptr, size): return [(f's_mov_b32 s{R}, s{ptr}', None), (f's_mov_b32 s{R+1}, s{ptr+1}', None), (f's_mov_b32 s{R+2}, {hex(size)}', None), (f's_mov_b32 s{R+3}, 0x20000', None)]
        it = []
        lab = f'Lpre_hist{id(self) % 1000}_{len(Pre.labs)}'; Pre.labs.append(lab)
        it.append(mk(P_K, S*D*2) + [(f's_cmp_lg_u32 s{S_WAVE}, 0', None), (f's_cbranch_scc1 {lab}', None), (f's_mov_b32 m0, {KIMG}', None),
                  (f'buffer_load_dwordx4 v{t+1}, {sq(R)}, 0 offen lds', ('pre', 'opt')), (f'{lab}:', None)])
        for jj in range(2):
            it.append([(f's_add_u32 s53, s51, {jj*8192}', None), (f's_add_u32 m0, s52, {KIMG + 1024 + jj*1024}', None), (f'buffer_load_dwordx4 v{t}, {sq(R)}, s53 offen lds', 'pre')])
        for jj in range(2):
            it.append((mk(P_V, S*D*2) if jj == 0 else []) + [(f's_add_u32 s53, s51, {jj*8192}', None), (f's_add_u32 m0, s52, {VIMG + jj*1024}', None), (f'buffer_load_dwordx4 v{t}, {sq(R)}, s53 offen lds', 'pre')])
        it.append(srd_items(P_SK, D*8) + [(f'buffer_load_dwordx2 {v(self.SKR,2)}, v{t+2}, {sq(R_T)}, 0 offen', 'pre')])
        return it
    labs = []
    def tag(self, a):
        a.wait_vm('pre0')
        a.e(f'v_readfirstlane_b32 s{S_TAG}, v{self.VE}')
        a.e('s_nop 3')
        a.e(f's_add_u32 s{S_TAG}, s{S_TAG}, {TAGC}')
    def stats(self, a, tag_done=False, store=True):
        L = V_LANE; X = self.U
        a.wait_vm('pre0')
        if not tag_done: a.e(f'v_readfirstlane_b32 s{S_TAG}, v{self.VE}')
        for rr in range(2):
            for j in range(4):
                unpack_lo(a, X+8*rr+2*j, self.XR+4*rr+j); unpack_hi(a, X+8*rr+2*j+1, self.XR+4*rr+j)
        if not tag_done: a.e(f's_add_u32 s{S_TAG}, s{S_TAG}, {TAGC}')
        SA, SB, t0, t1, QA, QB = X+16, X+17, X+18, X+19, X+20, X+21
        for rr, Sx in ((0, SA), (1, SB)): a.e(f'v_add_f32 v{Sx}, v{X+8*rr}, v{X+8*rr+1}')
        for j in range(2, 8):
            for rr, Sx in ((0, SA), (1, SB)): a.e(f'v_add_f32 v{Sx}, v{Sx}, v{X+8*rr+j}')
        allreduce2(a, SA, SB, t0, t1)
        a.e(f'v_mul_f32 v{SA}, 0x3b000000, v{SA}'); a.e(f'v_mul_f32 v{SB}, 0x3b000000, v{SB}')
        for j in range(8):
            for rr, Sx in ((0, SA), (1, SB)): a.e(f'v_sub_f32 v{X+8*rr+j}, v{X+8*rr+j}, v{Sx}')
        for rr, Q in ((0, QA), (1, QB)): a.e(f'v_mul_f32 v{Q}, v{X+8*rr}, v{X+8*rr}')
        for j in range(1, 8):
            for rr, Q in ((0, QA), (1, QB)): a.e(f'v_fmac_f32 v{Q}, v{X+8*rr+j}, v{X+8*rr+j}')
        allreduce2(a, QA, QB, t0, t1)
        a.e(f'v_mul_f32 v{QA}, 0x3b000000, v{QA}'); a.e(f'v_mul_f32 v{QB}, 0x3b000000, v{QB}')
        a.e(f'v_and_b32 v{t0}, 1, v{L}'); a.e(f'v_cmp_eq_u32 vcc, 1, v{t0}')
        a.e(f'v_cndmask_b32 v{SA}, v{SA}, v{SB}, vcc'); a.e(f'v_cndmask_b32 v{QA}, v{QA}, v{QB}, vcc')
        G = X + 24
        a.e(f'v_cvt_pk_bf16_f32 v{G}, v{SA}, v{QA}')
        unpack_hi(a, t1, G)
        a.e(f'v_add_f32 v{t1}, 0x3727c5ac, v{t1}')
        a.e(f'v_cvt_pk_bf16_f32 v{t1}, v{t1}, v{t1}'); unpack_lo(a, t1, t1)
        a.e(f'v_sqrt_f32 v{t1}, v{t1}')
        a.e(f'v_cvt_pk_bf16_f32 v{t1}, v{t1}, v{t1}')
        a.e(f'v_and_b32 v{G}, 0xffff, v{G}'); a.e(f'v_and_b32 v{t1}, 0xffff0000, v{t1}'); a.e(f'v_or_b32 v{G}, v{G}, v{t1}')
        a.e(f'v_mov_b32 v{G+1}, s{S_TAG}')
        a.e(f'v_mov_b32 v60, v{G}'); a.e(f'v_mov_b32 v61, v{G+1}')
        if store: self.store_stats(a)
    def store_stats(self, a):
        L = V_LANE
        a.e(f's_lshl_b32 s59, s58, 6'); a.e(f's_add_u32 s59, s59, {WS_ST}')
        a.e(f'v_lshlrev_b32 v59, 3, v{L}')
        a.e('s_mov_b64 exec, 3')
        a.e(f'buffer_store_dwordx2 v[60:61], v59, {sq(R_WS)}, s59 offen {SC}', tag='prest')
        a.e('s_mov_b64 exec, -1')
    def compute(self, a):
        L = V_LANE; T = self.T
        KR, VR, WR, SK, U = self.KR, self.VR, self.WR, self.SK, self.U
        a.wait_vm('pre')
        if not isinstance(a, Rec): stamp(a, 'pre_arrived')
        a.e('s_barrier')
        a.e(f'v_lshrrev_b32 v{T}, 4, v{L}'); a.e(f'v_lshlrev_b32 v{T}, 3, v{T}')
        a.e(f'v_bfe_u32 v{T+1}, v{L}, 2, 2'); a.e(f'v_add_u32 v{T}, v{T}, v{T+1}'); a.e(f'v_lshlrev_b32 v{T}, 7, v{T}')
        a.e(f'v_and_b32 v{T+1}, 3, v{L}'); a.e(f'v_lshl_add_u32 v{T}, v{T+1}, 3, v{T}')
        a.e(f's_lshl_b32 s59, s{S_WAVE}, 5'); a.e(f'v_add_u32 v{T}, s59, v{T}')
        a.e(f'v_add_u32 v{T+1}, {KIMG}, v{T}'); a.e(f'v_add_u32 v{T+2}, {VIMG}, v{T}')
        for run in range(2):
            for j in range(3):
                a.e(f'ds_read_b64_tr_b16 {v(KR+run*6+2*j,2)}, v{T+1} offset:{512 + j*512 + run*4096}', tag=('kvr', run))
            for j in range(2):
                a.e(f'ds_read_b64_tr_b16 {v(VR+run*4+2*j,2)}, v{T+2} offset:{j*512 + run*4096}', tag=('kvr', run))
        unpack_lo(a, SK, self.SKR); unpack_hi(a, SK+1, self.SKR); unpack_lo(a, SK+2, self.SKR+1); unpack_hi(a, SK+3, self.SKR+1)
        a.e(f'v_lshlrev_b32 v{T}, 12, v{self.VD}')
        a.e(f'v_lshrrev_b32 v{T+1}, 4, v{L}'); a.e(f'v_lshl_add_u32 v{T}, v{T+1}, 4, v{T}')
        a.e('s_lshl_b32 s57, s48, 1'); a.e(f's_add_u32 s57, s57, {WS_KVT}')
        for run in range(2):
            a.wait_lg(('kvr', run))
            for j in range(6):
                if j > 0: unpack_lo(a, U+2*j, KR+run*6+j)
                unpack_hi(a, U+2*j+1, KR+run*6+j)
            for j in range(4):
                unpack_lo(a, U+12+2*j, VR+run*4+j); unpack_hi(a, U+12+2*j+1, VR+run*4+j)
            A0 = U + 20
            for t in range(8): a.e(f'v_mul_f32 v{A0+t}, v{U+1+t}, v{SK+3}')
            for t in range(8): a.e(f'v_fmac_f32 v{A0+t}, v{U+2+t}, v{SK+2}')
            for t in range(8): a.e(f'v_fmac_f32 v{A0+t}, v{U+3+t}, v{SK+1}')
            for t in range(8): a.e(f'v_fmac_f32 v{A0+t}, v{U+4+t}, v{SK}')
            for t in range(8): a.e(f'v_mul_f32 v{A0+t}, v{A0+t}, v{U+12+t}')
            O = U + 28 + run*4
            for j in range(4): a.e(f'v_cvt_pk_bf16_f32 v{O+j}, v{A0+2*j}, v{A0+2*j+1}')
        if not Opt.defer: self.store_kv(a)
    def store_kv(self, a):
        T = self.T
        for run in range(2):
            O = self.U + 28 + run*4
            a.e(f'buffer_store_dwordx4 {v(O,4)}, v{T}, {sq(R_WS)}, s57 offen offset:{run*64} {SC}', tag='prest')
    def publish(self, a, vt, optional=False):
        a.e('s_and_b32 s59, s2, 7'); a.e('s_lshl_b32 s59, s59, 2'); a.e(f's_add_u32 s59, s59, s{S_WAVE}'); a.e('s_lshl_b32 s59, s59, 5')
        a.e('s_lshr_b32 s60, s2, 3'); a.e('s_add_u32 s59, s59, s60'); a.e(f's_lshl_b32 s59, s59, {FS}'); a.e(f's_add_u32 s59, s59, {FK}')
        a.e(f's_lshl_b32 s53, s2, {FS}'); a.e(f's_lshl_b32 s60, s{S_WAVE}, 2'); a.e('s_add_u32 s53, s53, s60'); a.e(f's_add_u32 s53, s53, {FAR}')
        publish(a, ['s59', 's53'], vt=vt, optional=optional)

class W2T:
    def issue(self, a):
        L = V_LANE; t = 8
        srd(a, R_C, P_W2, F*D*2)
        a.e('s_sub_u32 s54, s62, 28')
        a.e('s_mul_i32 s55, s54, 448'); a.e(f's_mul_i32 s56, s{S_WAVE}, 112'); a.e('s_add_u32 s55, s55, s56'); a.e('s_lshl_b32 s55, s55, 10')
        a.e('s_lshl_b32 s56, s61, 7'); a.e('s_add_u32 s55, s55, s56')
        a.e(f'v_lshrrev_b32 v{t}, 3, v{L}'); a.e(f'v_lshlrev_b32 v{t}, 10, v{t}'); a.e(f'v_and_b32 v{t+1}, 7, v{L}'); a.e(f'v_lshl_add_u32 v{t}, v{t+1}, 4, v{t}')
        a.e(f's_mul_i32 s56, s{S_WAVE}, {112*128}')
        for j in range(14):
            a.e(f's_add_u32 m0, s56, {j*1024}'); a.e(f's_add_u32 s57, s55, {j*8192}')
            a.e(f'buffer_load_dwordx4 v{t}, {sq(R_C)}, s57 offen lds', tag='w2t')
    def compute(self, a):
        L = V_LANE; t = 8
        a.wait_vm('w2t')
        stamp(a, 'w2t_arr')
        a.e(f'v_lshrrev_b32 v{t}, 5, v{L}'); a.e(f'v_lshlrev_b32 v{t}, 2, v{t}'); a.e(f'v_bfe_u32 v{t+1}, v{L}, 2, 2'); a.e(f'v_add_u32 v{t}, v{t}, v{t+1}'); a.e(f'v_lshlrev_b32 v{t}, 7, v{t}')
        a.e(f'v_bfe_u32 v{t+1}, v{L}, 4, 1'); a.e(f'v_lshl_add_u32 v{t}, v{t+1}, 5, v{t}'); a.e(f'v_and_b32 v{t+1}, 3, v{L}'); a.e(f'v_lshl_add_u32 v{t}, v{t+1}, 3, v{t}')
        a.e(f'v_add_u32 v{t}, s56, v{t}')
        a.e(f'v_lshlrev_b32 v{t+1}, 4, v{L}')
        a.e('s_lshl_b32 s57, s61, 1'); a.e('s_mul_i32 s57, s57, 112'); a.e('s_mul_i32 s55, s54, 28'); a.e('s_add_u32 s57, s57, s55'); a.e(f's_mul_i32 s55, s{S_WAVE}, 7'); a.e('s_add_u32 s57, s57, s55')
        a.e('s_lshl_b32 s57, s57, 10'); a.e(f's_add_u32 s57, s57, {WS_W2F}')
        R0 = 64
        for j in range(7):
            for h in range(2):
                r = R0 + (j*2+h)*4
                a.e(f'ds_read_b64_tr_b16 {v(r,2)}, v{t} offset:{j*2048 + h*64}', tag=('w2r', j, h))
                a.e(f'ds_read_b64_tr_b16 {v(r+2,2)}, v{t} offset:{j*2048 + h*64 + 1024}', tag=('w2r', j, h))
        for j in range(7):
            for h in range(2):
                r = R0 + (j*2+h)*4
                a.wait_lg(('w2r', j, h))
                a.e(f's_add_u32 s55, s57, {(h*112 + j)*1024}')
                a.e(f'buffer_store_dwordx4 {v(r,4)}, v{t+1}, {sq(R_WS)}, s55 offen {SC}', tag='w2st')
    def publish(self, a, vt):
        a.e('s_lshl_b32 s55, s61, 2'); a.e('s_add_u32 s55, s55, s54')
        a.e(f's_lshl_b32 s55, s55, {FS}'); a.e(f's_add_u32 s55, s55, {FW}')
        publish(a, ['s55'], vt=vt)

class Gemm1:
    ACC, FR, VW, VX, VA, VB, CS, SEL, B1, ST = 64, 128, 8, 9, 12, 16, 160, 168, 172, 28
    def decode(self, a):
        a.e('s_and_b32 s61, s2, 7'); a.e('s_lshr_b32 s62, s2, 3')
        a.e('s_lshr_b32 s63, s61, 1'); a.e('s_lshl_b32 s63, s63, 9'); a.e('s_and_b32 s64, s62, 3'); a.e('s_lshl_b32 s64, s64, 7'); a.e('s_add_u32 s63, s63, s64')
        a.e('s_and_b32 s64, s61, 1'); a.e('s_mul_i32 s64, s64, 896'); a.e('s_lshr_b32 s65, s62, 2'); a.e('s_lshl_b32 s65, s65, 7'); a.e('s_add_u32 s64, s64, s65')
        a.e(f's_and_b32 s70, s{S_WAVE}, 1'); a.e(f's_lshr_b32 s71, s{S_WAVE}, 1')
        if Opt.rot1:
            a.e('s_and_b32 s69, s62, 3'); a.e('s_lshl_b32 s69, s69, 1'); a.e('s_lshr_b32 s65, s62, 2'); a.e('s_add_u32 s65, s65, s69'); a.e('s_and_b32 s65, s65, 7')
        else:
            a.e('s_mov_b32 s65, 0')
    def setup(self, a):
        L = V_LANE
        srd(a, R_A, P_W1, D*F*2); srd(a, R_B, P_Q, S*D*2)
        t = 24
        a.e(f'v_lshrrev_b32 v{t}, 4, v{L}')
        a.e(f'v_mul_u32_u24 v{self.VW}, 3584, v{t}')
        a.e(f'v_lshlrev_b32 v{t+1}, 2, v{t}'); a.e(f'v_and_b32 v{t+2}, 15, v{L}'); a.e(f'v_xor_b32 v{t+1}, v{t+1}, v{t+2}')
        a.e(f'v_lshl_add_u32 v{self.VW}, v{t+1}, 4, v{self.VW}')
        a.e(f'v_lshrrev_b32 v{t+1}, 3, v{L}'); a.e(f'v_lshlrev_b32 v{t+1}, 10, v{t+1}')
        a.e(f'v_and_b32 v{t+2}, 7, v{L}')
        a.e(f'v_xor_b32 v{t+3}, v{t+2}, v{t}'); a.e(f'v_lshl_add_u32 v{self.VX}, v{t+3}, 4, v{t+1}')
        a.e(f'v_xor_b32 v{t+3}, 4, v{t+3}'); a.e(f'v_lshl_add_u32 v{self.VX+1}, v{t+3}, 4, v{t+1}')
        a.e(f's_mul_i32 s66, s{S_WAVE}, {16*3584}'); a.e('s_lshl_b32 s69, s64, 1'); a.e('s_add_u32 s66, s66, s69')
        a.e(f's_lshl_b32 s67, s{S_WAVE}, 5'); a.e('s_add_u32 s67, s67, s63'); a.e('s_lshl_b32 s67, s67, 10')
        a.e(f's_lshl_b32 s68, s{S_WAVE}, 12')
    VB1 = 252
    B1L = 156672
    def b1_setup(self, a):
        a.e('s_lshl_b32 s69, s64, 1'); a.e(f'v_lshl_add_u32 v{self.VB1}, v{V_LANE}, 4, s69')
    def b1_items(self):
        return [srd_items(P_B1, F*2) + [(f's_mov_b32 m0, {self.B1L}', None), ('s_nop 0', None), (f'buffer_load_dwordx4 v{self.VB1}, {sq(R_T)}, 0 offen lds', 'b1')]]
    def dma_items(self, s):
        slot = (s & 3) * 32768
        head = [(f's_add_u32 s46, s65, {s}', None), ('s_and_b32 s46, s46, 7', None), ('s_lshl_b32 s47, s46, 7', None), ('s_add_u32 s47, s47, s67', None),
                (f's_mul_i32 s46, s46, {64*3584}', None), ('s_add_u32 s46, s46, s66', None)]
        items = []
        for jj in range(4):
            w = [(f's_add_u32 m0, s68, {slot + jj*1024}', None), (f's_add_u32 s69, s46, {4*jj*3584}', None),
                 (f'buffer_load_dwordx4 v{self.VW}, {sq(R_A)}, s69 offen lds', ('g1', s))]
            x = [(f's_add_u32 m0, s68, {slot + 16384 + jj*1024}', None), (f's_add_u32 s69, s47, {8*jj*1024}', None),
                 (f'buffer_load_dwordx4 v{self.VX + (jj&1)}, {sq(R_B)}, s69 offen lds', ('g1', s))]
            items += [w, x]
        items[0] = head + items[0]
        return items
    def setup2(self, a):
        L = V_LANE; t = 24
        a.e(f'v_lshrrev_b32 v{t}, 5, v{L}'); a.e(f'v_lshlrev_b32 v{t}, 3, v{t}'); a.e(f'v_bfe_u32 v{t+1}, v{L}, 2, 2'); a.e(f'v_add_u32 v{t}, v{t}, v{t+1}')
        a.e(f'v_lshlrev_b32 v{t}, 8, v{t}')
        a.e(f'v_and_b32 v{t+2}, 1, v{L}'); a.e(f'v_lshl_add_u32 v{t}, v{t+2}, 3, v{t}')
        a.e(f'v_bfe_u32 v{t+2}, v{L}, 4, 1'); a.e(f'v_lshlrev_b32 v{t+2}, 1, v{t+2}'); a.e(f'v_bfe_u32 v{t+3}, v{L}, 1, 1'); a.e(f'v_add_u32 v{t+2}, v{t+2}, v{t+3}')
        a.e(f's_lshl_b32 s69, s70, 3'); a.e(f'v_add_u32 v{t+2}, s69, v{t+2}')
        a.e(f'v_lshlrev_b32 v{t+1}, 2, v{t+1}')
        a.e('s_lshl_b32 s69, s71, 2')
        for aa in range(2):
            a.e(f's_xor_b32 s72, s69, {4*aa}')
            a.e(f'v_add_u32 v{t+3}, s72, v{t+2}'); a.e(f'v_xor_b32 v{t+3}, v{t+3}, v{t+1}')
            a.e(f'v_lshl_add_u32 v{self.VA+2*aa}, v{t+3}, 4, v{t}')
            a.e(f'v_add_u32 v{self.VA+2*aa+1}, 0x10000, v{self.VA+2*aa}')
        a.e(f'v_and_b32 v{t}, 31, v{L}'); a.e(f's_lshl_b32 s69, s71, 6'); a.e(f'v_add_u32 v{t}, s69, v{t}'); a.e(f'v_lshlrev_b32 v{t}, 7, v{t}')
        a.e(f'v_add_u32 v{t}, 16384, v{t}')
        a.e(f'v_bfe_u32 v{t+1}, v{L}, 1, 3'); a.e(f'v_lshrrev_b32 v{t+2}, 5, v{L}'); a.e(f'v_xor_b32 v{t+1}, v{t+1}, v{t+2}')
        for kk in range(4):
            a.e(f'v_xor_b32 v{t+2}, {2*kk}, v{t+1}'); a.e(f'v_lshl_add_u32 v{self.VB+2*kk}, v{t+2}, 4, v{t}')
            a.e(f'v_add_u32 v{self.VB+2*kk+1}, 0x10000, v{self.VB+2*kk}')
        a.e(f'v_bfe_u32 v{t}, v{L}, 4, 1'); a.e(f'v_and_b32 v{t+1}, 1, v{L}'); a.e(f'v_cmp_eq_u32 vcc, v{t}, v{t+1}')
        a.e(f'v_mov_b32 v{t+2}, 0x3f803f80')
        for j in range(4): a.e(f'v_cndmask_b32 v{self.SEL+j}, 0, v{t+2}, vcc')
        for i in range(32): a.e(f'v_mov_b64 {v(self.ACC+2*i,2)}, 0')
        for i in range(2): a.e(f'v_mov_b64 {v(self.CS+2*i,2)}, 0')
    def read_list(self, s, kk, p):
        slot = (s & 3); hi = slot >> 1; base = (slot & 1) * 32768
        F0 = self.FR + 16*p; tg = ('fr', s, kk)
        return [
          (f'ds_read_b64_tr_b16 {v(F0,2)}, v{self.VA+hi} offset:{base + kk*4096}', tg+('A0',)),
          (f'ds_read_b64_tr_b16 {v(F0+2,2)}, v{self.VA+hi} offset:{base + kk*4096 + 1024}', tg+('A0',)),
          (f'ds_read_b128 {v(F0+8,4)}, v{self.VB+2*kk+hi} offset:{base}', tg+('B0',)),
          (f'ds_read_b128 {v(F0+12,4)}, v{self.VB+2*kk+hi} offset:{base + 4096}', tg+('B1',)),
          (f'ds_read_b64_tr_b16 {v(F0+4,2)}, v{self.VA+2+hi} offset:{base + kk*4096}', tg+('A1',)),
          (f'ds_read_b64_tr_b16 {v(F0+6,2)}, v{self.VA+2+hi} offset:{base + kk*4096 + 1024}', tg+('A1',))]
    def mfmas(self, a, s, kk, p, reads, sp):
        F0 = self.FR + 16*p; tg = ('fr', s, kk)
        order = [(0, 0), (0, 1), (1, 0), (1, 1)]
        need = [[tg+('A0',), tg+('B0',)], [tg+('B1',)], [tg+('A1',)], []]
        reads = list(reads)
        for i, (aa, bb) in enumerate(order):
            if need[i]: a.wait_lg(need[i])
            acc = self.ACC + (aa*2+bb)*16
            a.e(f'v_mfma_f32_32x32x16_bf16 {v(acc,16)}, {v(F0+4*aa,4)}, {v(F0+8+4*bb,4)}, {v(acc,16)}')
            for _ in range(2):
                if reads:
                    t, tag = reads.pop(0); a.e(t, tag=tag)
            if sp: sp.slot(a)
            if i == 1: a.e(f'v_mfma_f32_16x16x32_bf16 {v(self.CS,4)}, {v(F0,4)}, {v(self.SEL,4)}, {v(self.CS,4)}')
    def main(self, a, hooks, fill):
        a.comment('gemm1: main loop')
        prev = None; p = 0
        for s in range(8):
            a.wait_vm(('g1', s))
            if s > 0: a.wait_lg([('fr', s-1, 3, x) for x in ('A0', 'A1', 'B0', 'B1')])
            a.e('s_barrier')
            if Opt.stagestamps == 2: stamp(a, f'cycS{s}', True)
            elif Opt.stagestamps or s in (0,): stamp(a, f'g1_s{s}')
            if s in hooks: hooks[s](a)
            sp = Spreader(fill[s]() if s in fill else [], 16 if s > 0 else 12)
            for kk in range(4):
                reads = self.read_list(s, kk, p)
                if prev is None:
                    for t, tag in reads: a.e(t, tag=tag)
                else:
                    self.mfmas(a, prev[0], prev[1], prev[2], reads, sp)
                prev = (s, kk, p); p ^= 1
            sp.flush(a)
        sp = Spreader(fill[8]() if 8 in fill else [], 4)
        self.mfmas(a, prev[0], prev[1], prev[2], [], sp); sp.flush(a)
    def stats_addr(self, a, vd):
        L = V_LANE
        a.e(f'v_and_b32 v{vd}, 31, v{L}'); a.e(f's_lshl_b32 s69, s71, 6'); a.e('s_add_u32 s69, s69, s63'); a.e(f'v_add_u32 v{vd}, s69, v{vd}')
        a.e(f'v_and_b32 v{vd+1}, 1, v{vd}'); a.e(f'v_lshrrev_b32 v{vd}, 1, v{vd}'); a.e(f'v_lshlrev_b32 v{vd}, 7, v{vd}'); a.e(f'v_lshl_add_u32 v{vd}, v{vd+1}, 3, v{vd}')
        a.e(f'v_add_u32 v{vd}, {WS_ST}, v{vd}')
        a.e(f'v_add_u32 v{vd+1}, 2048, v{vd}')
    OUTL = [40, 44, 48, 52, 56, 60, 224, 228]
    def b1_unpack(self, a):
        TMP = 192; t = self.VB1; L = V_LANE
        a.e(f'v_lshrrev_b32 v{t}, 5, v{L}'); a.e(f'v_lshlrev_b32 v{t}, 3, v{t}')
        a.e('s_lshl_b32 s51, s70, 7'); a.e('s_lshl_b32 s52, s71, 6'); a.e('s_add_u32 s51, s51, s52'); a.e(f's_add_u32 s51, s51, {self.B1L}')
        a.e(f'v_add_u32 v{t}, s51, v{t}'); a.e(f'v_xor_b32 v{t+1}, 64, v{t}')
        for aa in range(2):
            for q in range(4):
                a.e(f'ds_read_b64 {v(self.B1+(aa*4+q)*2,2)}, v{t+aa} offset:{q*16}', tag=('b1r', aa))
        for aa in range(2):
            a.wait_lg(('b1r', aa))
            for i in range(8*aa, 8*aa+8):
                unpack_lo(a, TMP+2*i, self.B1+i); unpack_hi(a, TMP+2*i+1, self.B1+i)
    def epilogue_a(self, a):
        L = V_LANE
        t = 24
        a.e('s_barrier')
        a.e(f'v_and_b32 v{t}, 1, v{L}'); a.e(f'v_lshlrev_b32 v{t}, 6, v{t}'); a.e(f'v_lshrrev_b32 v{t+1}, 4, v{L}'); a.e(f'v_lshl_add_u32 v{t}, v{t+1}, 4, v{t}')
        a.e(f's_lshl_b32 s69, s70, 8'); a.e('s_lshl_b32 s72, s71, 7'); a.e('s_add_u32 s69, s69, s72'); a.e(f'v_add_u32 v{t}, s69, v{t}')
        a.e(f'v_add_u32 v{t}, {PRE_LDS}, v{t}')
        a.e(f'ds_write_b128 v{t}, {v(self.CS,4)}', tag='csw')
    def epilogue(self, a, mid, pre_bar, post_bar, items=()):
        L = V_LANE; ST = self.ST; t = 24
        for bb in range(2):
            g = ST + 2*bb
            unpack_hi(a, g+1, g); unpack_lo(a, g, g)
            a.e(f'v_rcp_f32 v{g+1}, v{g+1}')
            a.e(f'v_xor_b32 v{g}, 0x80000000, v{g}')
        TMP = 192
        a.wait_lg('csw')
        pre_bar(a)
        a.e('s_barrier')
        post_bar(a)
        CSV = self.FR
        a.e(f'v_lshrrev_b32 v{t}, 5, v{L}'); a.e(f'v_lshlrev_b32 v{t}, 4, v{t}'); a.e('s_lshl_b32 s69, s70, 8'); a.e('s_lshl_b32 s72, s71, 7'); a.e('s_add_u32 s69, s69, s72')
        a.e(f's_add_u32 s69, s69, {PRE_LDS}')
        a.e(f'v_add_u32 v{t}, s69, v{t}'); a.e(f'v_xor_b32 v{t+1}, 128, v{t}')
        for aa in range(2):
            for q in range(4):
                a.e(f'ds_read_b128 {v(CSV+(aa*4+q)*4,4)}, v{t+aa} offset:{q*32}', tag=('csr', aa))
        self.hst_setup(a)
        n = 0
        stamp(a, 'cycE', True)
        for aa in range(2):
            a.wait_lg(('csr', aa))
            for bb in range(2):
                acc = self.ACC + (aa*2+bb)*16
                for half in range(2):
                    O = self.OUTL[n]; n += 1
                    R = [half*8 + 2*j for j in range(4)]
                    for r in R: a.e(f'v_pk_fma_f32 {v(acc+r,2)}, {v(CSV+aa*16+r,2)}, {v(ST+2*bb,2)}, {v(acc+r,2)} op_sel_hi:[1,0,1]')
                    for r in R: a.e(f'v_pk_fma_f32 {v(acc+r,2)}, {v(acc+r,2)}, {v(ST+2*bb,2)}, {v(TMP+aa*16+r,2)} op_sel:[0,1,0] op_sel_hi:[1,1,1]')
                    for r in R:
                        a.e(f'v_max_f32 v{acc+r}, 0, v{acc+r}'); a.e(f'v_max_f32 v{acc+r+1}, 0, v{acc+r+1}')
                    for r in R: a.e(f'v_pk_mul_f32 {v(acc+r,2)}, {v(acc+r,2)}, {v(acc+r,2)}')
                    for j, r in enumerate(R): a.e(f'v_cvt_pk_bf16_f32 v{O+j}, v{acc+r}, v{acc+r+1}')
                    if n <= Opt.hearly: emit_items(a, [self.hst_item(n-1)])
        stamp(a, 'cycF', True)
        mid(a)
    VHS = 232
    def hst_setup(self, a):
        a.e('s_lshl_b32 s98, s71, 6'); a.e('s_add_u32 s98, s98, s63'); a.e('s_lshr_b32 s98, s98, 5'); a.e('s_mul_i32 s98, s98, 112')
        a.e('s_lshl_b32 s97, s70, 6'); a.e('s_add_u32 s97, s97, s64'); a.e('s_lshr_b32 s97, s97, 4'); a.e('s_add_u32 s98, s98, s97')
        a.e('s_lshl_b32 s98, s98, 10'); a.e(f's_add_u32 s98, s98, {WS_H}')
        a.e('s_lshl_b32 s97, s71, 11')
        a.e(f'v_lshlrev_b32 v{self.VHS}, 4, v{V_LANE}')
    def hst_item(self, n):
        aa, bb, half = n >> 2, (n >> 1) & 1, n & 1
        off = bb*112*1024 + half*1024
        return [(f's_xor_b32 s46, s97, {2048*aa}', None), ('s_add_u32 s46, s46, s98', None), (f's_add_u32 s46, s46, {off}', None),
                (f'buffer_store_dwordx4 {v(self.OUTL[n],4)}, v{self.VHS}, {sq(R_WS)}, s46 offen {SC}', 'hst')]
    def publish(self, a, vt):
        a.e('s_lshr_b32 s69, s63, 7'); a.e('s_lshl_b32 s69, s69, 6'); a.e('s_lshr_b32 s72, s64, 7'); a.e('s_lshl_b32 s72, s72, 2'); a.e('s_add_u32 s69, s69, s72')
        a.e(f's_add_u32 s69, s69, s{S_WAVE}'); a.e(f's_lshl_b32 s69, s69, {FS}'); a.e(f's_add_u32 s69, s69, {FH}')
        publish(a, ['s69'], vt=vt, optional=True)

HC0 = 32768; HC_CH = 16640; KV0 = 0; KV_CH = 4608; RED0 = 2*KV_CH
class Conv:
    ACC, FA = 8, 64
    VF = 244
    def filter_setup(self, a):
        t = self.VF
        a.e('s_lshl_b32 s73, s2, 13')
        a.e(f'v_lshl_add_u32 v{t}, v0, 4, s73')
        a.e(f'v_subrev_u32 v{t+1}, 8, v{t}'); a.e(f'v_max_i32 v{t+1}, 0, v{t+1}')
        a.e(f'v_add_u32 v{t+2}, 4096, v{t}'); a.e(f'v_add_u32 v{t+3}, 4096, v{t+1}')
        a.e('s_lshl_b32 s74, s2, 2')
        a.e(f's_load_dword s75, {sp(P_SSMD)}, s74')
    def filter_items(self):
        t = self.VF
        R = sq(R_T)
        return [srd_items(P_SSMK, D*S*2) + [(f'buffer_load_dwordx4 {ac(A_HRAW,4)}, v{t}, {R}, 0 offen', 'hraw')], [(f'buffer_load_dwordx2 {ac(A_HRAW+4,2)}, v{t+1}, {R}, 0 offen', 'hraw')],
                [(f'buffer_load_dwordx4 {ac(A_HRAW+8,4)}, v{t+2}, {R}, 0 offen', 'hraw')], [(f'buffer_load_dwordx2 {ac(A_HRAW+6,2)}, v{t+3}, {R}, 0 offen', 'hraw')]] + \
               ([srd_items(P_B2, D*2) + [(f'v_lshlrev_b32 v{t}, 7, v{V_LANE}', None), (f'buffer_load_dword v248, v{t}, {R}, 0 offen', 'b2t')]] if Opt.b2touch else [])
    def payload(self, a, H):
        a.comment('conv: filter payloads')
        a.wait_vm('hraw')
        for i in range(12): a.e(f'v_accvgpr_read_b32 v{H+i}, a{A_HRAW+i}')
        a.e(f'v_cmp_eq_u32 vcc, 0, v0')
        W = H + 12
        for ch in range(2):
            d0 = H if ch == 0 else H + 8; dm = H + 4 if ch == 0 else H + 6
            a.e(f'v_cndmask_b32_e64 v{dm}, v{dm}, 0, vcc'); a.e(f'v_cndmask_b32_e64 v{dm+1}, v{dm+1}, 0, vcc')
            src = [dm+1, d0, d0+1, d0+2, d0+3]
            P = A_PAY + ch*16
            for j in range(4): a.e(f'v_accvgpr_write_b32 a{P+j}, v{d0+j}')
            for j in range(4): a.e(f'v_alignbit_b32 v{W+j}, v{src[j+1]}, v{src[j]}, 16')
            for j in range(4): a.e(f'v_accvgpr_write_b32 a{P+8+j}, v{src[j]}')
            for j in range(4): a.e(f'v_accvgpr_write_b32 a{P+4+j}, v{W+j}')
            for j in range(3): a.e(f'v_accvgpr_write_b32 a{P+13+j}, v{W+j}')
            a.e(f'v_alignbit_b32 v{W}, v{dm+1}, v{dm}, 16')
            a.e(f'v_accvgpr_write_b32 a{P+12}, v{W}')
    def flag_addr(self, a, vd):
        a.e('s_lshr_b32 s73, s2, 5'); a.e('s_lshl_b32 s73, s73, 2'); a.e('s_bfe_u32 s74, s2, 0x20003'); a.e('s_add_u32 s73, s73, s74')
        a.e(f's_lshl_b32 s73, s73, {5+FS}'); a.e(f's_add_u32 s73, s73, {FK}')
        a.e(f'v_and_b32 v{vd}, 31, v{V_LANE}'); a.e(f'v_lshl_add_u32 v{vd}, v{vd}, {FS}, s73')
    def load_kv(self, a, t, tag='kvl'):
        a.e('s_lshl_b32 s73, s2, 13'); a.e(f's_add_u32 s73, s73, {WS_KVT}')
        a.e(f'v_lshlrev_b32 v{t}, 4, v{V_LANE}')
        for j in range(8):
            if j % 4 == 0 and j: a.e('s_add_u32 s73, s73, 4096')
            a.e(f'buffer_load_dwordx4 {ac(224+4*j,4)}, v{t}, {sq(R_WS)}, s73 offen offset:{(j%4)*1024} {SC}', tag=tag)
    def prep_hc(self, a, t):
        a.comment('conv: filter copies to LDS')
        a.e(f'v_lshlrev_b32 v{t}, 4, v0')
        a.e(f'v_add_u32 v{t+1}, {HC0 + 32}, v{t}')
        for ch in range(2):
            for r in range(4):
                a.e(f'ds_write_b128 v{t+1}, {ac(A_PAY + (ch*4+r)*4, 4)} offset:{ch*HC_CH + r*4160}', tag='hw')
        Z = t + 4
        a.e(f'v_mov_b64 {v(Z,2)}, 0'); a.e(f'v_mov_b64 {v(Z+2,2)}, 0')
        a.e(f'v_lshrrev_b32 v{t+2}, 1, v0'); a.e(f'v_and_b32 v{t+3}, 3, v{t+2}'); a.e(f'v_mul_u32_u24 v{t+3}, 4160, v{t+3}')
        a.e(f'v_bfe_u32 v{t+2}, v0, 3, 1'); a.e(f'v_mul_u32_u24 v{t+2}, {HC_CH}, v{t+2}'); a.e(f'v_add_u32 v{t+3}, v{t+3}, v{t+2}')
        a.e(f'v_and_b32 v{t+2}, 1, v0'); a.e(f'v_lshl_add_u32 v{t+3}, v{t+2}, 4, v{t+3}'); a.e(f'v_add_u32 v{t+3}, {HC0}, v{t+3}')
        a.e(f'v_subrev_u32 v{t+2}, 16, v0'); a.e(f'v_and_b32 v{t+8}, 31, v{t+2}'); a.e(f'v_lshlrev_b32 v{t+8}, 4, v{t+8}')
        a.e(f'v_bfe_u32 v{t+2}, v{t+2}, 5, 1'); a.e(f'v_mul_u32_u24 v{t+2}, {KV_CH}, v{t+2}'); a.e(f'v_add_u32 v{t+8}, v{t+8}, v{t+2}')
        a.e(f'v_cmp_gt_u32 vcc, 16, v0')
        a.e(f'v_cndmask_b32 v{t+3}, v{t+8}, v{t+3}, vcc')
        a.e(f'v_cmp_gt_u32 vcc, 80, v0')
        a.e('s_and_saveexec_b64 s[76:77], vcc')
        lab = a.newlabel('Lcz')
        a.e(f's_cbranch_execz {lab}')
        a.e(f'ds_write_b128 v{t+3}, {v(Z,4)}', tag='hw')
        a.label(lab)
        a.e('s_mov_b64 exec, s[76:77]')
    def prep(self, a):
        def f(a):
            t = 8
            a.e(f'v_lshlrev_b32 v{t}, 4, v{V_LANE}')
            a.wait_vm('kvl')
            stamp(a, 'kv_arr')
            for j in range(8):
                a.e(f'ds_write_b128 v{t}, {ac(224+4*j,4)} offset:{KV0 + (j//4)*KV_CH + 512 + (j%4)*1024}', tag='hw')
        on_wave0(a, f)
    def setup_main(self, a):
        L = V_LANE; VA_, VB_ = 2, 3; t = 4
        a.e(f's_lshr_b32 s76, s{S_WAVE}, 1'); a.e(f's_and_b32 s77, s{S_WAVE}, 1')
        a.e(f'v_bfe_u32 v{t}, v{L}, 2, 2'); a.e(f'v_mul_u32_u24 v{VA_}, 4160, v{t}')
        a.e(f'v_and_b32 v{t}, 3, v{L}'); a.e(f'v_lshl_add_u32 v{VA_}, v{t}, 3, v{VA_}')
        a.e(f'v_lshrrev_b32 v{t}, 4, v{L}'); a.e(f'v_lshlrev_b32 v{t}, 4, v{t}'); a.e(f'v_sub_u32 v{VA_}, v{VA_}, v{t}')
        a.e(f's_mul_i32 s78, s76, {HC_CH}'); a.e(f's_lshl_b32 s79, s77, 8'); a.e('s_add_u32 s78, s78, s79'); a.e(f's_add_u32 s78, s78, {HC0 + 56}')
        a.e(f'v_add_u32 v{VA_}, s78, v{VA_}')
        a.e(f'v_and_b32 v{t}, 15, v{L}'); a.e(f'v_lshlrev_b32 v{VB_}, 5, v{t}')
        a.e(f'v_lshrrev_b32 v{t}, 4, v{L}'); a.e(f'v_lshl_add_u32 v{VB_}, v{t}, 4, v{VB_}')
        a.e(f's_mul_i32 s78, s76, {KV_CH}'); a.e(f's_lshl_b32 s79, s77, 8'); a.e('s_sub_u32 s78, s78, s79'); a.e(f's_add_u32 s78, s78, {KV0 + 32 + 256}')
        a.e(f'v_add_u32 v{VB_}, s78, v{VB_}')
        for i in range(16): a.e(f'v_mov_b64 {v(self.ACC+2*i,2)}, 0')
    def main(self, a, hooks, vm_items):
        VA_, VB_ = 2, 3
        def rd(it, p):
            FA = self.FA + 64*p; res = []
            for j in range(8):
                res.append((f'ds_read_b64_tr_b16 {v(FA+4*j,2)}, v{VA_} offset:{512*j + 64*it + 8}', ('cA', it, j)))
                res.append((f'ds_read_b64_tr_b16 {v(FA+4*j+2,2)}, v{VA_} offset:{512*j + 64*it}', ('cA', it, j)))
                res.append((f'ds_read_b128 {v(FA+32+4*j,4)}, v{VB_} offset:{512*j + (3-it)*64}', ('cB', it, j)))
            return res
        for tx, tg in rd(0, 0): a.e(tx, tag=tg)
        for it in range(4):
            p = it & 1; FA = self.FA + 64*p
            fill = rd(it+1, p ^ 1) if it < 3 else []
            vmi = list(vm_items.get(it, lambda: [])())
            pairs = [(j1, d) for j1 in range(8) for d in range(8) if j1 + d <= 7]
            pairs.sort(key=lambda x: (max(x), x))
            seen = set(); nf = len(fill); k = 0; nv = len(vmi); kv = 0
            for idx, (j1, d) in enumerate(pairs):
                need = []
                if ('cA', it, j1) not in seen: need.append(('cA', it, j1)); seen.add(('cA', it, j1))
                if ('cB', it, d) not in seen: need.append(('cB', it, d)); seen.add(('cB', it, d))
                if need: a.wait_lg(need)
                q = j1 + d
                a.e(f'v_mfma_f32_16x16x32_bf16 {v(self.ACC+4*q,4)}, {v(FA+4*j1,4)}, {v(FA+32+4*d,4)}, {v(self.ACC+4*q,4)}')
                want = ((idx + 1) * nf) // 30
                while k < min(want, nf):
                    tx, tg = fill[k]; a.e(tx, tag=tg); k += 1
                wantv = ((idx + 1) * nv) // 36
                while kv < wantv:
                    emit_items(a, [vmi[kv]]); kv += 1
                if (it, idx) in hooks: hooks[(it, idx)](a)
            while k < nf:
                tx, tg = fill[k]; a.e(tx, tag=tg); k += 1
    def epilogue(self, a, units=(), pre_bar=None, early_units=False):
        L = V_LANE; t = 4
        a.e(f'v_lshlrev_b32 v{t}, 4, v{L}')
        a.e(f's_lshl_b32 s78, s{S_WAVE}, 12'); a.e(f's_add_u32 s78, s78, {RED0}'); a.e(f'v_add_u32 v{t+1}, s78, v{t}')
        a.e(f's_xor_b32 s79, s{S_WAVE}, 1'); a.e('s_lshl_b32 s79, s79, 12'); a.e(f's_add_u32 s79, s79, {RED0}'); a.e(f'v_add_u32 v{t+2}, s79, v{t}')
        lab1 = a.newlabel('Lce'); lab2 = a.newlabel('Lce'); K = 40
        a.e('s_cmp_eq_u32 s77, 0'); a.e(f's_cbranch_scc0 {lab1}')
        for j in range(4): a.e(f'ds_write_b128 v{t+1}, {v(self.ACC+16+4*j,4)} offset:{j*1024}')
        for j in range(8): a.e(f'v_mov_b64 {v(K+2*j,2)}, {v(self.ACC+2*j,2)}')
        a.e(f's_branch {lab2}')
        a.label(lab1)
        a.e('s_nop 7')
        for j in range(4): a.e(f'ds_write_b128 v{t+1}, {v(self.ACC+4*j,4)} offset:{j*1024}')
        for j in range(8): a.e(f'v_mov_b64 {v(K+2*j,2)}, {v(self.ACC+16+2*j,2)}')
        a.label(lab2)
        if pre_bar: pre_bar(a)
        a.e('s_waitcnt lgkmcnt(0)')
        a.e('s_barrier')
        P, KVv, U, OO = 184, 200, 208, 220
        for j in range(4): a.e(f'ds_read_b128 {v(P+4*j,4)}, v{t+2} offset:{j*1024}', tag='red')
        a.e(f'v_and_b32 v{t}, 15, v{L}'); a.e(f'v_lshlrev_b32 v{t}, 5, v{t}'); a.e(f'v_lshrrev_b32 v{t+1}, 4, v{L}'); a.e(f'v_lshl_add_u32 v{t}, v{t+1}, 3, v{t}')
        a.e(f's_mul_i32 s78, s76, {KV_CH}'); a.e('s_lshl_b32 s79, s77, 11'); a.e('s_add_u32 s78, s78, s79'); a.e(f's_add_u32 s78, s78, {KV0+512}')
        a.e(f'v_add_u32 v{t+1}, s78, v{t}')
        for j in range(4): a.e(f'ds_read_b64 {v(KVv+2*j,2)}, v{t+1} offset:{j*512}', tag='kvv')
        a.e('s_lshl_b32 s78, s75, 16'); a.e('s_and_b32 s79, s75, 0xffff0000'); a.e('s_cmp_eq_u32 s76, 0'); a.e('s_cselect_b32 s78, s78, s79')
        a.e('s_lshl_b32 s79, s2, 1'); a.e('s_add_u32 s79, s79, s76'); a.e('s_lshl_b32 s79, s79, 12'); a.e('s_lshl_b32 s80, s77, 11'); a.e('s_add_u32 s79, s79, s80')
        a.e(f's_add_u32 s79, s79, {WS_Y2T}')
        sp = Spreader(units, 5 if early_units else 9)
        sp.slot(a); sp.slot(a); sp.slot(a)
        a.wait_lg('red')
        for j in range(8): a.e(f'v_pk_add_f32 {v(K+2*j,2)}, {v(K+2*j,2)}, {v(P+2*j,2)}')
        sp.slot(a); sp.slot(a)
        if early_units: sp.flush(a)
        a.wait_lg('kvv')
        for j in range(4):
            for e in range(2):
                unpack_lo(a, U+2*e, KVv+2*j+e); unpack_hi(a, U+2*e+1, KVv+2*j+e)
            for e in range(4): a.e(f'v_fmac_f32 v{K+4*j+e}, s78, v{U+e}')
            sp.slot(a)
            O = OO + 2*j
            a.e(f'v_cvt_pk_bf16_f32 v{O}, v{K+4*j}, v{K+4*j+1}'); a.e(f'v_cvt_pk_bf16_f32 v{O+1}, v{K+4*j+2}, v{K+4*j+3}')
            a.e(f'buffer_store_dwordx2 {v(O,2)}, v{t}, {sq(R_WS)}, s79 offen offset:{j*512} {SC}', tag='yst')
        sp.flush(a)
    def publish(self, a, vt):
        a.e('s_lshr_b32 s78, s2, 5'); a.e('s_lshl_b32 s78, s78, 1'); a.e('s_add_u32 s78, s78, s77'); a.e('s_lshl_b32 s78, s78, 6')
        a.e('s_and_b32 s45, s2, 31'); a.e('s_lshl_b32 s45, s45, 1'); a.e('s_add_u32 s78, s78, s45'); a.e('s_add_u32 s78, s78, s76')
        a.e(f's_lshl_b32 s78, s78, {FS}'); a.e(f's_add_u32 s78, s78, {FY}')
        publish(a, ['s78'], vt=vt)

Y2L = 0; RED2 = 8192
class Gemm2:
    ACC, RB, NR, E = 8, 72, 14, 184
    VW0, VW1 = 240, 241
    VH0, VH1 = 218, 219
    def decode(self, a):
        a.e('s_and_b32 s81, s2, 7'); a.e('s_lshl_b32 s81, s81, 8'); a.e('s_lshr_b32 s82, s2, 3'); a.e('s_and_b32 s83, s82, 3'); a.e('s_lshl_b32 s84, s83, 6'); a.e('s_add_u32 s81, s81, s84')
        a.e('s_lshr_b32 s82, s82, 2')
        a.e('s_lshl_b32 s83, s83, 1'); a.e('s_add_u32 s84, s82, s83')
        a.e('s_cmp_ge_u32 s84, 7'); a.e('s_cselect_b32 s83, 7, 0'); a.e('s_sub_u32 s84, s84, s83')
        a.e('s_cmp_ge_u32 s84, 7'); a.e('s_cselect_b32 s83, 7, 0'); a.e('s_sub_u32 s84, s84, s83')
        if not Opt.rot2: a.e('s_mov_b32 s84, 0')
        a.e('s_lshl_b32 s84, s84, 12'); a.e('s_mov_b32 s86, s84')
        a.e('s_lshl_b32 s82, s82, 6')
        a.e('s_lshr_b32 s83, s82, 5'); a.e('s_mul_i32 s83, s83, 112'); a.e(f's_mul_i32 s45, s{S_WAVE}, 28'); a.e('s_add_u32 s83, s83, s45')
        a.e('s_lshl_b32 s83, s83, 10'); a.e(f's_add_u32 s83, s83, {WS_W2F}')
        a.e('s_lshr_b32 s85, s81, 5'); a.e('s_mul_i32 s85, s85, 112'); a.e('s_add_u32 s85, s85, s45')
        a.e('s_lshl_b32 s85, s85, 10'); a.e(f's_add_u32 s85, s85, {WS_H}')
    def wflag_addr(self, a, vd):
        a.e(f'v_and_b32 v{vd}, 31, v{V_LANE}'); a.e(f'v_lshlrev_b32 v{vd}, {FS}, v{vd}'); a.e(f'v_add_u32 v{vd}, {FW}, v{vd}')
    def touch_items(self, vt, s_ok):
        return [[('s_lshl_b32 s45, s62, 2', None), (f's_add_u32 s45, s45, s{S_WAVE}', None), ('s_lshl_b32 s45, s45, 13', None), (f's_add_u32 s45, s45, {WS_W2F}', None),
                 ('s_and_b32 s44, s2, 1', None), (f's_mul_i32 s44, s44, {8*112*1024}', None), ('s_add_u32 s45, s45, s44', None),
                 (f's_cmp_eq_u32 s{s_ok}, 1', None), ('s_cselect_b32 s44, 0, 0x20000000', None), (f'v_lshlrev_b32 v{vt}, 7, v{V_LANE}', None), (f'v_add_u32 v{vt}, s44, v{vt}', None),
                 (f'buffer_load_dword v{vt-5}, v{vt}, {sq(R_WS)}, s45 offen {SC}', 'touch')]]
    def w_setup(self, a):
        a.e(f'v_lshlrev_b32 v{self.VW0}, 4, v{V_LANE}'); a.e(f'v_add_u32 v{self.VW1}, {112*1024}, v{self.VW0}')
    def adv(self, cur):
        return [(f's_add_u32 s{cur}, s{cur}, 4096', None), (f's_cmp_eq_u32 s{cur}, {28*1024}', None), (f's_cselect_b32 s{cur}, 0, s{cur}', None)]
    def w_items(self, lo, hi):
        items = []
        for i in range(lo, hi):
            head = [('s_add_u32 s87, s83, s84', None)] + self.adv(84) if i % 4 == 0 else []
            items.append(head + [(f'buffer_load_dwordx4 {ac((i*2)*4,4)}, v{self.VW0}, {sq(R_WS)}, s87 offen offset:{(i%4)*1024} {SC}', ('w2', i))])
            items.append([(f'buffer_load_dwordx4 {ac((i*2+1)*4,4)}, v{self.VW1}, {sq(R_WS)}, s87 offen offset:{(i%4)*1024} {SC}', ('w2', i))])
        return items
    def hflag_addr(self, a, vd):
        a.e('s_lshr_b32 s45, s81, 7'); a.e(f's_lshl_b32 s45, s45, {6+FS}'); a.e(f's_add_u32 s45, s45, {FH}')
        a.e('s_bfe_u32 s89, s81, 0x10006'); a.e(f's_lshl_b32 s89, s89, {1+FS}'); a.e('s_add_u32 s45, s45, s89')
        a.e(f'v_lshrrev_b32 v{vd}, 1, v{V_LANE}'); a.e(f'v_min_u32 v{vd}, 13, v{vd}'); a.e(f'v_lshlrev_b32 v{vd}, 2, v{vd}'); a.e(f'v_and_b32 v{vd+1}, 1, v{V_LANE}'); a.e(f'v_add_u32 v{vd}, v{vd}, v{vd+1}')
        a.e(f'v_lshl_add_u32 v{vd}, v{vd}, {FS}, s45')
    def yflag_addr(self, a, vd):
        a.e('s_lshr_b32 s45, s82, 6'); a.e('s_lshl_b32 s45, s45, 1'); a.e('s_lshr_b32 s89, s81, 10'); a.e('s_add_u32 s45, s45, s89'); a.e(f's_lshl_b32 s45, s45, {6+FS}'); a.e(f's_add_u32 s45, s45, {FY}')
        a.e(f'v_lshl_add_u32 v{vd}, v{V_LANE}, {FS}, s45')
    def h_items(self, i):
        r = self.rb(i)
        head = [('s_add_u32 s88, s85, s86', None)] + self.adv(86) if i % 4 == 0 else []
        return [head + [(f'buffer_load_dwordx4 {v(r,4)}, v{self.VH0}, {sq(R_WS)}, s88 offen offset:{(i%4)*1024} {SC}', ('h', i))],
                [(f'buffer_load_dwordx4 {v(r+4,4)}, v{self.VH1}, {sq(R_WS)}, s88 offen offset:{(i%4)*1024} {SC}', ('h', i))]]
    def rb(self, i): return self.RB + (i % self.NR)*8
    def h_setup(self, a):
        a.e(f'v_lshlrev_b32 v{self.VH0}, 4, v{V_LANE}'); a.e(f'v_add_u32 v{self.VH1}, {112*1024}, v{self.VH0}')
    def start(self, a):
        for i in range(self.NR): emit_items(a, self.h_items(i))
    def init_acc(self, a):
        for i in range(32): a.e(f'v_mov_b64 {v(self.ACC+2*i,2)}, 0')
    def main(self, a, hooks, next_item=None):
        a.comment('gemm2: main')
        j = 2*self.NR if next_item is None else next_item
        allitems = [it for i in range(28) for it in self.h_items(i)]
        for kl in range(28):
            a.wait_vm([('h', kl), ('w2', kl)])
            r = self.rb(kl)
            n = 0
            for aa in range(2):
                for bb in range(2):
                    acc = self.ACC + (aa*2+bb)*16
                    a.e(f'v_mfma_f32_32x32x16_bf16 {v(acc,16)}, {ac((kl*2+aa)*4,4)}, {v(r+4*bb,4)}, {v(acc,16)}')
                    n += 1
                    if j < 56:
                        prev = j//2 - self.NR
                        ok = prev < kl or (prev == kl and n >= (3 if (j & 1) == 0 else 4))
                        behind = j//2 < kl + self.NR - 1
                        if ok and (behind or n >= 3):
                            emit_items(a, [allitems[j]]); j += 1
            if Opt.kst and kl in (0, 3, 7, 13, 14, 20, 27): stamp(a, f'k{kl}')
            if kl in hooks: hooks[kl](a)
        assert j == 56, j
    def issue_epi_loads(self, a):
        L = V_LANE; E = self.E
        a.e(f's_and_b32 s79, s{S_WAVE}, 1'); a.e(f's_lshr_b32 s80, s{S_WAVE}, 1')
        a.e(f'v_and_b32 v3, 31, v{L}'); a.e('s_lshl_b32 s89, s80, 5'); a.e('s_add_u32 s89, s89, s81'); a.e('v_add_u32 v3, s89, v3')
        a.e(f'v_lshrrev_b32 v4, 5, v{L}'); a.e('v_lshlrev_b32 v4, 2, v4'); a.e('s_lshl_b32 s89, s79, 5'); a.e('s_add_u32 s89, s89, s82'); a.e('v_add_u32 v4, s89, v4')
        a.e('v_lshlrev_b32 v5, 10, v3'); a.e('v_lshl_add_u32 v5, v4, 1, v5')
        srd(a, R_T, P_Q, S*D*2)
        for q in range(4): a.e(f'buffer_load_dwordx2 {v(E+2*q,2)}, v5, {sq(R_T)}, 0 offen offset:{q*16}', tag='ex')
        a.e('v_lshlrev_b32 v6, 1, v4')
        srd(a, R_T, P_B2, D*2)
        for q in range(4): a.e(f'buffer_load_dwordx2 {v(E+8+2*q,2)}, v6, {sq(R_T)}, 0 offen offset:{q*16}', tag='eb')
        a.e('v_and_b32 v7, 1, v3'); a.e('v_lshrrev_b32 v6, 1, v3'); a.e('v_lshlrev_b32 v6, 7, v6'); a.e('v_lshl_add_u32 v6, v7, 3, v6'); a.e(f'v_add_u32 v6, {WS_ST}, v6')
        a.e(f'buffer_load_dwordx2 {v(E+16,2)}, v6, {sq(R_WS)}, 0 offen {SC}', tag='es')
    YR = 220
    def load_y2(self, a):
        L = V_LANE
        a.e(f'v_lshrrev_b32 v6, 3, v{L}'); a.e('v_add_u32 v6, s82, v6'); a.e('v_lshlrev_b32 v6, 12, v6')
        a.e(f'v_and_b32 v7, 7, v{L}'); a.e('v_lshl_add_u32 v6, v7, 4, v6')
        a.e('s_lshl_b32 s89, s81, 1'); a.e(f's_add_u32 s89, s89, {WS_Y2T}')
        for j in range(8):
            a.e(f'buffer_load_dwordx4 {v(self.YR+4*j,4)}, v6, {sq(R_WS)}, s89 offen {SC}', tag='ey')
            if j < 7: a.e(f's_add_u32 s89, s89, {8*4096}')
    def epilogue(self, a):
        L = V_LANE; E = self.E
        a.e('s_barrier')
        R = 72
        a.e(f'v_lshlrev_b32 v6, 4, v{L}'); a.e(f's_lshl_b32 s89, s{S_WAVE}, 12'); a.e(f'v_add_u32 v7, s89, v6')
        for j in range(4):
            aa, bb = j & 1, j >> 1
            acc = self.ACC + (aa*2+bb)*16
            own = a.newlabel('Lown'); nx = a.newlabel('Lnx')
            a.e(f's_cmp_eq_u32 s{S_WAVE}, {j}'); a.e(f's_cbranch_scc1 {own}')
            for qd in range(4):
                a.e(f'ds_write_b128 v7, {v(acc+4*qd,4)} offset:{RED2 + j*16384 + qd*1024}')
            a.e(f's_branch {nx}')
            a.label(own)
            if j == 0: a.e('s_nop 7')
            for i in range(8): a.e(f'v_mov_b64 {v(R+2*i,2)}, {v(acc+2*i,2)}')
            a.label(nx)
        def f(a):
            a.wait_vm('ey')
            for j in range(8): a.e(f'ds_write_b128 v6, {v(self.YR+4*j,4)} offset:{Y2L + j*1024}')
        on_wave0(a, f)
        a.e('s_waitcnt lgkmcnt(0)')
        a.e('s_barrier')
        for k in range(1, 4):
            a.e(f's_add_u32 s89, s{S_WAVE}, {k}'); a.e('s_and_b32 s89, s89, 3'); a.e('s_lshl_b32 s89, s89, 12')
            a.e(f's_lshl_b32 s45, s{S_WAVE}, 14'); a.e('s_add_u32 s89, s89, s45'); a.e(f'v_add_u32 v7, s89, v6')
            for qd in range(4):
                a.e(f'ds_read_b128 {v(R+k*16+4*qd,4)}, v7 offset:{RED2 + qd*1024}', tag=('rr', k))
        Y = 136
        a.e(f'v_lshrrev_b32 v6, 5, v{L}'); a.e('v_lshlrev_b32 v6, 2, v6'); a.e(f'v_bfe_u32 v7, v{L}, 2, 2'); a.e('v_add_u32 v6, v6, v7')
        a.e('s_lshl_b32 s89, s79, 5'); a.e('v_add_u32 v6, s89, v6'); a.e('v_lshlrev_b32 v6, 7, v6')
        a.e(f'v_bfe_u32 v7, v{L}, 4, 1'); a.e('v_lshl_add_u32 v6, v7, 5, v6'); a.e(f'v_and_b32 v7, 3, v{L}'); a.e('v_lshl_add_u32 v6, v7, 3, v6')
        a.e('s_lshl_b32 s89, s80, 6'); a.e('v_add_u32 v6, s89, v6')
        for q in range(4): a.e(f'ds_read_b64_tr_b16 {v(Y+2*q,2)}, v6 offset:{Y2L + q*1024}', tag='yt')
        a.wait_vm(['ex', 'eb', 'es'])
        unpack_hi(a, E+17, E+16); unpack_lo(a, E+16, E+16)
        a.e(f'v_rcp_f32 v{E+17}, v{E+17}')
        a.wait_lg(('rr', 1))
        for i in range(8): a.e(f'v_pk_add_f32 {v(R+2*i,2)}, {v(R+2*i,2)}, {v(R+16+2*i,2)}')
        a.e(f'v_mul_f32 v{E+18}, v{E+16}, v{E+17}'); a.e(f'v_xor_b32 v{E+18}, 0x80000000, v{E+18}')
        a.wait_lg(('rr', 3))
        for i in range(8): a.e(f'v_pk_add_f32 {v(R+32+2*i,2)}, {v(R+32+2*i,2)}, {v(R+48+2*i,2)}')
        for i in range(8): a.e(f'v_pk_add_f32 {v(R+2*i,2)}, {v(R+2*i,2)}, {v(R+32+2*i,2)}')
        a.wait_lg('yt')
        U = 144
        srd(a, R_T, P_OUT, S*D*2)
        for q in range(4):
            for e in range(2):
                unpack_lo(a, U+2*e, E+2*q+e); unpack_hi(a, U+2*e+1, E+2*q+e)
                unpack_lo(a, U+4+2*e, E+8+2*q+e); unpack_hi(a, U+4+2*e+1, E+8+2*q+e)
                unpack_lo(a, U+8+2*e, Y+2*q+e); unpack_hi(a, U+8+2*e+1, Y+2*q+e)
            for e in range(4): a.e(f'v_add_f32 v{R+4*q+e}, v{R+4*q+e}, v{U+4+e}')
            for e in range(4): a.e(f'v_mul_f32 v{U+12+e}, 0xbfb8aa3b, v{R+4*q+e}')
            for e in range(4): a.e(f'v_exp_f32 v{U+12+e}, v{U+12+e}')
            for e in range(4): a.e(f'v_fma_f32 v{U+4+e}, v{U+e}, v{E+17}, v{E+18}')
            for e in range(4): a.e(f'v_add_f32 v{U+12+e}, 1.0, v{U+12+e}')
            for e in range(4): a.e(f'v_rcp_f32 v{U+12+e}, v{U+12+e}')
            for e in range(4): a.e(f'v_mul_f32 v{U+4+e}, v{U+4+e}, v{U+8+e}')
            for e in range(4): a.e(f'v_mul_f32 v{U+12+e}, v{U+12+e}, v{R+4*q+e}')
            for e in range(4): a.e(f'v_fma_f32 v{U+e}, v{U+4+e}, v{U+12+e}, v{U+e}')
            O = 160 + 2*q
            a.e(f'v_cvt_pk_bf16_f32 v{O}, v{U}, v{U+1}'); a.e(f'v_cvt_pk_bf16_f32 v{O+1}, v{U+2}, v{U+3}')
            a.e(f'buffer_store_dwordx2 {v(O,2)}, v5, {sq(R_T)}, 0 offen offset:{q*16} ' + ['', 'sc1', 'nt', 'sc0 sc1'][Opt.outsc], tag='ost')

def fused_body(a):
    end = 'Lend'
    a.e('s_cmp_ge_u32 s2, 256'); a.e(f's_cbranch_scc1 {end}')
    a.e('s_load_dwordx16 s[4:19], s[0:1], 0'); a.e('s_load_dwordx8 s[20:27], s[0:1], 64'); a.e('s_load_dwordx4 s[28:31], s[0:1], 96')
    a.e(f'v_and_b32 v{V_LANE}, 63, v0'); a.e('v_lshrrev_b32 v2, 6, v0'); a.e('s_nop 0'); a.e(f'v_readfirstlane_b32 s{S_WAVE}, v2')
    if Opt.stamps: a.e('v_mov_b32 v255, 0')
    stamp(a, 'start'); stamp(a, 'cyc0', True)
    pre, g1, cv, g2 = Pre(), Gemm1(), Conv(), Gemm2()
    if Opt.codepf:
        lab = a.newlabel('Lcpf')
        a.e('s_and_b32 s90, s2, 0x38'); a.e('s_cmp_lg_u32 s90, 0'); a.e(f's_cbranch_scc1 {lab}')
        a.e('s_getpc_b64 s[90:91]')
        a.label('Lpcbase')
        a.e('v_lshlrev_b32 v63, 7, v0')
        a.e('v_min_u32 v63, Lend-Lpcbase, v63')
        a.e('global_load_dword v63, v63, s[90:91]', tag='cpf', optional=True)
        a.label(lab)
    g1.decode(a)
    a.e('s_waitcnt lgkmcnt(0)')
    stamp(a, 'kernarg')
    srd(a, R_WS, P_WS, WS_SIZE)
    pre.issue_stats(a)
    g2.decode(a)
    idle = 'Lidle'; join = 'Ljoin'
    a.e('s_cmp_ge_u32 s62, 28'); a.e(f's_cbranch_scc1 {idle}')
    saved0 = (list(a.vm), list(a.lg))
    g1.setup(a)
    if Opt.early == 2:
        pre.setup(a); emit_items(a, pre.items())
        emit_items(a, g1.dma_items(0)); emit_items(a, g1.dma_items(1))
        cv.filter_setup(a); g1.b1_setup(a)
        g1.setup2(a)
        emit_items(a, g1.dma_items(2))
        stamp(a, 'issued')
        pre.stats(a, store=False)
        stamp(a, 'stats_done')
        emit_items(a, g1.dma_items(3))
        pre.compute(a)
        pre.store_stats(a)
        a.e('s_mov_b32 s99, 0')
        stamp(a, 'pre_done')
    else:
        emit_items(a, g1.dma_items(0)); emit_items(a, g1.dma_items(1))
        pre.setup(a); cv.filter_setup(a); g1.b1_setup(a)
        g1.setup2(a)
        if Opt.early: emit_items(a, pre.items())
        emit_items(a, g1.dma_items(2))
        stamp(a, 'issued')
        pre.stats(a, store=False)
        stamp(a, 'stats_done')
    VS, VFK, VFW = 32, 34, 35
    S_PUB, S_WOK = 100, 101
    def hpre(a):
        pre.compute(a); stamp(a, 'pre_done')
    def hpay(a): cv.payload(a, 188)
    def hspoll(a):
        g1.stats_addr(a, VS)
        poll_issue(a, VS, g1.ST, 2, tag='spoll'); poll_issue(a, VS+1, g1.ST+2, 2, tag='spoll')
    def hpoll(a):
        def f(a):
            cv.flag_addr(a, VFK); poll_issue(a, VFK, 36)
        on_wave0(a, f)
    def hw0(a):
        wcheck(a); g2.w_setup(a)
    def hwpoll(a):
        g2.wflag_addr(a, VFW); poll_issue(a, VFW, 38, 1, tag='wpoll')
    def hweval(a):
        a.wait_vm('wpoll')
        a.e(f'v_cmp_ne_u32 vcc, s{S_TAG}, v38'); a.e('s_cmp_eq_u64 vcc, 0'); a.e(f's_cselect_b32 s{S_WOK}, 1, 0')
    def wcheck(a):
        lab = a.newlabel('Lwk')
        a.e(f's_cmp_eq_u32 s{S_WOK}, 1'); a.e(f's_cbranch_scc1 {lab}')
        saved = (list(a.vm), list(a.lg))
        a.opt_depth = getattr(a, 'opt_depth', 0) + 1
        poll_issue(a, VFW, 38, 1, tag='wpoll2')
        poll_check(a, [(VFW, 38, 1, 38)], tag='wpoll2')
        a.opt_depth -= 1; a._issued = []
        a.vm, a.lg = saved
        a.label(lab)
    S_KOK = 96
    def hkv_try(a):
        def f(a):
            lab = a.newlabel('Lkt')
            a.wait_vm('poll')
            a.e(f's_mov_b32 s{S_KOK}, 0')
            a.e(f'v_cmp_ne_u32 vcc, s{S_TAG}, v36'); a.e('s_cmp_eq_u64 vcc, 0'); a.e(f's_cbranch_scc0 {lab}')
            a.e(f's_mov_b32 s{S_KOK}, 1')
            stamp(a, 'kv_early')
            cv.load_kv(a, 37)
            a.label(lab)
        on_wave0(a, f)
    def hkv(a):
        def f(a):
            lab = a.newlabel('Lkv')
            a.e(f's_cmp_eq_u32 s{S_KOK}, 1'); a.e(f's_cbranch_scc1 {lab}')
            poll_issue(a, VFK, 36, tag='poll2')
            poll_check(a, [(VFK, 36, 1, 36)], tag='poll2')
            cv.load_kv(a, 37, tag='kvl2')
            a.e('s_waitcnt vmcnt(0)')
            a.label(lab)
        on_wave0(a, f)
        stamp(a, 'flags_ok')
    def hmid(a):
        stamp(a, 'epi_comp')
    S_PUB2 = 99
    def hstore(a):
        pre.store_stats(a); pre.store_kv(a)
        a.e(f's_mov_b32 s{S_PUB2}, 0')
    def trypre(a, block=False):
        lab = a.newlabel('Ltq')
        a.e(f's_cmp_lg_u32 s{S_PUB2}, 0'); a.e(f's_cbranch_scc1 {lab}')
        saved = (list(a.vm), list(a.lg))
        idx = [i for i, (t, c) in enumerate(a.vm) if t == 'prest']
        if idx:
            n = len([x for x in a.vm[idx[-1]+1:] if not x[1].endswith('?')])
            if block: a.e(f's_waitcnt vmcnt({n})')
            else:
                a.e('s_getreg_b32 s90, hwreg(HW_REG_IB_STS)'); a.e('s_and_b32 s91, s90, 15'); a.e('s_lshr_b32 s90, s90, 18'); a.e('s_and_b32 s90, s90, 0x30'); a.e('s_or_b32 s90, s90, s91')
                a.e(f's_cmp_gt_u32 s90, {n}'); a.e(f's_cbranch_scc1 {lab}')
        a.vm, a.lg = saved
        pre.publish(a, 56, optional=True)
        stamp(a, 'fk_pub')
        a.e(f's_mov_b32 s{S_PUB2}, 1')
        a.label(lab)
    def hpub(a):
        a.wait_vm('prest'); pre.publish(a, 42)
    def merge(*lists):
        lists = [list(l) for l in lists if l]
        tot = [sum(ucost(u) for u in l) or 1 for l in lists]; done = [0.0]*len(lists); out = []
        while any(lists):
            k = min((i for i in range(len(lists)) if lists[i]), key=lambda i: (done[i] + 0.5*ucost(lists[i][0])) / tot[i])
            u = lists[k].pop(0); done[k] += ucost(u); out.append(u)
        return out
    def split(units, n):
        tot = sum(ucost(u) for u in units); parts = [[] for _ in range(n)]; acc = 0.0
        for u in units:
            parts[min(n-1, int(acc * n / tot))].append(u); acc += ucost(u)
        return parts
    D = lambda st: item_units(g1.dma_items(st))
    C = lambda f: [[('call', f)]]
    prec = record(a, lambda r: pre.compute(r)) + C(lambda a: a.e(f's_mov_b32 s{S_PUB2}, 0'))
    pp = split(prec, 2)
    NW1 = Opt.nw1
    if Opt.early == 2:
        n3 = NW1 // 3
        fill = {
        0: lambda: item_units(cv.filter_items()) + item_units(g1.b1_items()),
        1: lambda: D(4),
        2: lambda: D(5),
        3: lambda: D(6) + C(hwpoll) + C(trypre),
        4: lambda: D(7) + C(trypre),
        5: lambda: C(hweval) + C(hw0) + merge(item_units(g2.w_items(0, n3)), record(a, lambda r: cv.payload(r, 188))) + C(trypre),
        6: lambda: C(hspoll) + item_units(g2.w_items(n3, 2*n3)) + C(trypre),
        7: lambda: C(hpoll) + merge(item_units(g2.w_items(2*n3, NW1)), record(a, lambda r: g1.b1_unpack(r))) + C(trypre),
        }
    elif Opt.early:
        fill = {
        0: lambda: D(3) + item_units(cv.filter_items()) + item_units(g1.b1_items()),
        1: lambda: D(4),
        2: lambda: merge(D(5), pp[0]),
        3: lambda: merge(D(6), pp[1]),
        4: lambda: D(7) + C(pre.store_stats) + C(hwpoll),
        5: lambda: record(a, lambda r: cv.payload(r, 188)) + C(trypre),
        6: lambda: C(trypre) + C(hspoll) + C(hweval) + C(hw0) + item_units(g2.w_items(0, NW1//2)) + C(trypre),
        7: lambda: C(hpoll) + merge(item_units(g2.w_items(NW1//2, NW1)), record(a, lambda r: g1.b1_unpack(r))) + C(trypre),
        }
    else:
        fill = {
        0: lambda: D(3) + item_units(pre.items()) + item_units(cv.filter_items()) + item_units(g1.b1_items()),
        1: lambda: D(4),
        2: lambda: D(5),
        3: lambda: D(6),
        4: lambda: merge(D(7), pp[0]) + C(hwpoll),
        5: lambda: C(pre.store_stats) + pp[1],
        6: lambda: C(hspoll) + C(hweval) + C(hw0) + merge(item_units(g2.w_items(0, NW1//2)), record(a, lambda r: cv.payload(r, 188))) + C(trypre),
        7: lambda: C(trypre) + C(hpoll) + merge(item_units(g2.w_items(NW1//2, NW1)), record(a, lambda r: g1.b1_unpack(r))) + C(trypre),
        }
    g1.main(a, {}, fill)
    stamp(a, 'g1_main'); stamp(a, 'cycB', True)
    g1.epilogue_a(a)
    trypre(a)
    poll_check(a, [(VS, g1.ST, 2, g1.ST+1), (VS+1, g1.ST+2, 2, g1.ST+3)], tag='spoll')
    stamp(a, 'stats_ok')
    hkv_try(a)
    g1.epilogue(a, hmid, lambda a: None, lambda a: None, [])
    trypre(a, True)
    cv.prep_hc(a, 8)
    hkv(a)
    stamp(a, 'g1_epi')
    a.e(f's_mov_b32 s{S_PUB}, 0')
    cv.prep(a)
    after_g1 = (list(a.vm), list(a.lg))
    a.e(f's_branch {join}')
    a.label(idle)
    a.vm, a.lg = list(saved0[0]), list(saved0[1])
    w2t = W2T()
    w2t.issue(a)
    pre.setup(a); cv.filter_setup(a)
    emit_items(a, pre.items()); emit_items(a, cv.filter_items())
    w2t.compute(a)
    stamp(a, 'w2t_st')
    a.wait_vm('w2st')
    stamp(a, 'w2t_ack')
    a.e('s_barrier')
    pre.tag(a)
    on_wave0(a, lambda a: w2t.publish(a, 10))
    pre.stats(a, True)
    pre.compute(a)
    if Opt.defer: pre.store_kv(a)
    cv.payload(a, 188)
    a.e('s_waitcnt vmcnt(0)')
    pre.publish(a, 42)
    a.e('s_barrier')
    cv.prep_hc(a, 8)
    def idlepoll(a):
        cv.flag_addr(a, VFK); g2.wflag_addr(a, VFW)
        a.e('s_sleep 32')
        poll_issue(a, VFW, 38, 1)
        poll_check(a, [(VFW, 38, 1, 38)], sleep=16)
        poll_issue(a, VFK, 36)
        poll_check(a, [(VFK, 36, 1, 36)], sleep=16)
        cv.load_kv(a, 37)
    on_wave0(a, idlepoll)
    a.e('s_barrier')
    a.e(f's_mov_b32 s{S_PUB}, 1')
    a.e(f's_mov_b32 s98, {WS_H}'); a.e('s_mov_b32 s97, 0'); a.e(f'v_mov_b32 v{g1.VHS}, 0x20000000')
    g2.w_setup(a); emit_items(a, g2.w_items(0, Opt.nw1))
    cv.prep(a)
    a.label(join)
    a.vm, a.lg = after_g1
    cv.setup_main(a)
    a.e('s_waitcnt lgkmcnt(0)')
    a.e('s_barrier')
    PRETRY = True
    stamp(a, 'conv_prep'); stamp(a, 'cycC', True)
    rem = 28 - Opt.nw1
    WB = [Opt.nw1 + (rem*i*2)//9 for i in range(5)]
    if Opt.wb0: WB = [Opt.nw1, Opt.nw1] + [Opt.nw1 + (rem*i*2)//7 for i in (1, 2, 3)]
    def trypub(a, block=False):
        lab = a.newlabel('Ltp')
        a.e(f's_cmp_lg_u32 s{S_PUB}, 0'); a.e(f's_cbranch_scc1 {lab}')
        saved = (list(a.vm), list(a.lg))
        idx = [i for i, (t, c) in enumerate(a.vm) if t == 'hst']
        if idx:
            n = len([x for x in a.vm[idx[-1]+1:] if not x[1].endswith('?')])
            if block: a.e(f's_waitcnt vmcnt({n})')
            else:
                a.e('s_getreg_b32 s90, hwreg(HW_REG_IB_STS)'); a.e('s_and_b32 s91, s90, 15'); a.e('s_lshr_b32 s90, s90, 18'); a.e('s_and_b32 s90, s90, 0x30'); a.e('s_or_b32 s90, s90, s91')
                a.e(f's_cmp_gt_u32 s90, {n}'); a.e(f's_cbranch_scc1 {lab}')
        a.vm, a.lg = saved
        g1.publish(a, 4)
        stamp(a, 'h_pub')
        a.e(f's_mov_b32 s{S_PUB}, 1')
        a.label(lab)
    trypub(a)
    ch = {(0, 12): trypub, (0, 28): trypub, (1, 4): trypub, (1, 24): trypub, (2, 20): trypub, (3, 35): lambda a: trypub(a, True)}
    def hf(a):
        def f(a):
            g2.hflag_addr(a, 216); poll_issue(a, 216, 217)
        on_wave0(a, f)
    ch[(3, 14)] = hf
    if Opt.dbg_now: WB = [28]*5
    if Opt.dbg_notry: ch = {(3, 35): lambda a: trypub(a, True)}
    cv.main(a, ch, {0: lambda: [g1.hst_item(n) for n in range(Opt.hearly, 8)] + g2.w_items(WB[0], WB[1]), 1: lambda: g2.w_items(WB[1], WB[2]), 2: lambda: g2.w_items(WB[2], WB[3]), 3: lambda: g2.w_items(WB[3], WB[4])})
    stamp(a, 'conv_main'); stamp(a, 'cycD', True)
    def hchk(a):
        on_wave0(a, lambda a: poll_check(a, [(216, 217, 1, 217)], sleep=2))
        stamp(a, 'hflag_ok')
    g2.h_setup(a)
    hunits = item_units(g2.w_items(WB[4], 28))
    if Opt.hint:
        nh = Opt.hint
        for i in range(nh): hunits += item_units(g2.h_items(i))
        cv.epilogue(a, hunits, hchk, early_units=True)
        stamp(a, 'conv_epi')
        for i in range(nh, max(nh, Opt.hpre)): emit_items(a, g2.h_items(i))
        g2.init_acc(a)
    else:
        cv.epilogue(a, hunits, None)
        stamp(a, 'conv_epi')
        g2.init_acc(a)
        hchk(a)
        a.e('s_barrier')
        for i in range(Opt.hpre): emit_items(a, g2.h_items(i))
        a.wait_vm('yst'); cv.publish(a, 6)
    def k0(a):
        stamp(a, 'g2_k0')
    def k8(a):
        g2.issue_epi_loads(a)
        def f(a):
            g2.yflag_addr(a, 212); poll_issue(a, 212, 213)
        on_wave0(a, f)
        lab = a.newlabel('Lfar')
        a.e('s_cmp_lg_u32 s2, 0'); a.e(f's_cbranch_scc1 {lab}')
        a.e(f'v_lshlrev_b32 v214, {FS}, v0'); a.e(f'v_add_u32 v214, {FAR}, v214')
        a.e(f'buffer_load_dword v215, v214, {sq(R_WS)}, 0 offen sc1', tag='far', optional=True)
        a.label(lab)
    def k20(a):
        stamp(a, 'g2_k20')
        def f(a):
            poll_check(a, [(212, 213, 1, 213)], sleep=2)
            g2.load_y2(a)
        on_wave0(a, f)
        stamp(a, 'yflag_ok')
    g2.main(a, {0: k0, Opt.kepi: k8, **({Opt.ky: (lambda a: (a.wait_vm('yst'), cv.publish(a, 6)))} if Opt.hint else {}), 23: k20}, 2*max(Opt.hpre, Opt.hint))
    stamp(a, 'g2_main')
    g2.epilogue(a)
    lab = a.newlabel('Lfin')
    a.e('s_cmp_lg_u32 s2, 0'); a.e(f's_cbranch_scc1 {lab}')
    poll_check(a, [(214, 215, 1, 215)], tag='far')
    a.e('s_barrier')
    a.e(f's_cmp_lg_u32 s{S_WAVE}, 0'); a.e(f's_cbranch_scc1 {lab}')
    a.e(f's_mov_b32 s90, {WS_E}')
    publish(a, ['s90'], vt=2)
    a.label(lab)
    stamp(a, 'end'); stamp(a, 'cyc1', True)
    write_stamps(a)
    a.label(end)
    a.e('s_endpgm')

def header():
    ref = open('cdna_kernels/' + NAME + '.s.ref').read().split('\n')
    hdr = []
    for ln in ref:
        if ln.startswith('; @launch') or ln.startswith('; Override') or ln.startswith('; grid=ceil'): break
        hdr.append(ln)
    return '\n'.join(hdr) + '\n'

def fused():
    name = NAME + '_kernel'
    a = Asm()
    fused_body(a)
    n = a.fix_hazards()
    out = header() + '; @launch grid=(256,1,1) block=(256,1,1) lds=163840\n'
    out += '.amdgcn_target "amdgcn-amd-amdhsa--gfx950"\n.text\n'
    out += f'.globl {name}\n.p2align 8\n.type {name},@function\n{name}:\n' + a.text()
    out += f'''.section .rodata,"a"
.p2align 6
.amdhsa_kernel {name}
  .amdhsa_next_free_vgpr 512
  .amdhsa_next_free_sgpr 102
  .amdhsa_accum_offset 256
  .amdhsa_group_segment_fixed_size 0
  .amdhsa_kernarg_size 112
  .amdhsa_user_sgpr_count 2
  .amdhsa_user_sgpr_kernarg_segment_ptr 1
  .amdhsa_system_sgpr_workgroup_id_x 1
.end_amdhsa_kernel
'''
    return out

if __name__ == '__main__':
    dst = sys.argv[1]
    for o in sys.argv[2:]:
        k, val = o.split('='); setattr(Opt, k, int(val))
    txt = fused()
    if Opt.stamps: open(dst + '.names', 'w').write(' '.join(STAMP_NAMES))
    open(dst, 'w').write(txt)
    print('wrote', dst, len(txt), 'bytes')
```

```python
import sys, os
sys.path.insert(0, os.path.dirname(os.path.abspath(__file__)))
from asmlib import Asm

NAME = 'recurrent_scan__ssm_conv_h3__dense_activation_squared_relu__prompt'
S, D, F = 2048, 512, 1792
WS_KVT, WS_Y2T, WS_W2F, WS_H, WS_ST, WS_FLAG = 0x000000, 0x200000, 0x400000, 0x600000, 0xE80000, 0xE10000
WS_E = 0xE08000
FK, FW, FAR, FH, FY = 0xE10000, 0xE30000, 0xE34000, 0xE40000, 0xE60000
FS = 7
S_TAG, S_SPIN = 16, 17
TAGC = 0x9E3779B9
SPIN_MAX = 100000
WS_STAMP = 0xF00000
WS_SIZE = 0x10000000
SCHEDS = {0: {'pre': 4, 'pay': 5, 'pub': 6, 'spoll': 5, 'touch': 7, 'first': [],
              'items': {0: ['s2'], 1: ['s3', 'cold', 'filt', 'b1'], 2: ['s4'], 3: ['s5'], 4: ['s6'], 5: ['s7', 'weval', 'touch']}},
          1: {'pre': 3, 'pay': 6, 'pub': 5, 'spoll': 5, 'touch': 7, 'first': [],
              'items': {0: ['s2', 'cold'], 1: ['s3'], 2: ['s4', 'filt'], 3: ['s5', 'b1'], 4: ['s6'], 5: ['s7']}}}
class Opt:
    stamps = 0
    codepf = 1
    dbgwg = -1
    stagestamps = 0
    sched = 0
    defer = 0
    hearly = 8
    lateset = 1
    hfpos = 14
    order = 0
    hpre = 14
    kst = 0
    ky = 2
    kepi = 14
    b2touch = 1
    wb0 = 0
    hint = 0
    dbg_now = 0
    dbg_notry = 0
    early = 2
    outsc = 0
    g2map = 0
    nw1 = 6
    touch = 1
    rot1 = 1
    rot2 = 0
    prestage = 2
P_Q, P_K, P_V, P_SK, P_SSMK, P_SSMD, P_BX, P_W1 = 4, 6, 8, 10, 12, 14, 16, 18
P_B1, P_W2, P_B2, P_OUT, P_DBG, P_WS = 20, 22, 24, 26, 28, 30
S_WAVE = 3
R_WS, R_A, R_B, R_C = 32, 36, 40, 44
def sp(p): return f's[{p}:{p+1}]'
def sq(r): return f's[{r}:{r+3}]'
def v(i, n=1): return f'v{i}' if n == 1 else f'v[{i}:{i+n-1}]'
def ac(i, n=1): return f'a{i}' if n == 1 else f'a[{i}:{i+n-1}]'
def srd(a, dst, ptr, size):
    a.e(f's_mov_b32 s{dst}, s{ptr}'); a.e(f's_mov_b32 s{dst+1}, s{ptr+1}')
    a.e(f's_mov_b32 s{dst+2}, {hex(size)}'); a.e(f's_mov_b32 s{dst+3}, 0x20000')
V_LANE = 1
R_T = 92
def srd_items(ptr, size, R=R_T):
    return [(f's_mov_b32 s{R}, s{ptr}', None), (f's_mov_b32 s{R+1}, s{ptr+1}', None), (f's_mov_b32 s{R+2}, {hex(size)}', None), (f's_mov_b32 s{R+3}, 0x20000', None)]
def unpack_lo(a, d, s): a.e(f'v_lshlrev_b32 v{d}, 16, v{s}')
def unpack_hi(a, d, s): a.e(f'v_and_b32 v{d}, 0xffff0000, v{s}')

STAMP_NAMES = []
def stamp(a, name, cyc=False):
    if not Opt.stamps: return
    if Opt.stamps == 2 and name not in ('start', 'end', 'cyc0', 'cyc1', 'g1_main', 'conv_prep', 'hflag_ok', 'g2_main'): return
    if name not in STAMP_NAMES: STAMP_NAMES.append(name)
    i = STAMP_NAMES.index(name)
    a.e('s_memtime s[90:91]' if cyc else 's_memrealtime s[90:91]'); a.e('s_waitcnt lgkmcnt(0)'); a.e(f'v_writelane_b32 v255, s90, {i}')
def write_stamps(a):
    if not Opt.stamps: return
    a.e(f's_lshl_b32 s90, s2, 2'); a.e(f's_add_u32 s90, s90, s{S_WAVE}'); a.e('s_lshl_b32 s90, s90, 8'); a.e(f's_add_u32 s90, s90, {WS_STAMP}')
    a.e(f'v_lshlrev_b32 v2, 2, v{V_LANE}')
    a.e(f'buffer_store_dword v255, v2, {sq(R_WS)}, s90 offen')
    if Opt.dbgwg >= 0:
        lab = a.newlabel('Ldbg')
        a.e(f's_cmp_lg_u32 s2, {Opt.dbgwg}'); a.e(f's_cbranch_scc1 {lab}')
        a.e(f's_cmp_lg_u32 s{S_WAVE}, 0'); a.e(f's_cbranch_scc1 {lab}')
        sel = ['kernarg', 'issued', 'g1_s0', 'pre_arrived', 'pre_done', 'g1_s4', 'g1_s6', 'g1_main', 'g1_epi', 'conv_prep', 'conv_main', 'hflag_ok', 'g2_k0', 'g2_k20', 'g2_main', 'end']
        a.e('v_readlane_b32 s92, v255, 0'); a.e('v_mov_b32 v3, 0')
        for i, nm in enumerate(sel):
            if nm not in STAMP_NAMES: continue
            a.e(f'v_readlane_b32 s93, v255, {STAMP_NAMES.index(nm)}'); a.e('s_sub_u32 s93, s93, s92'); a.e(f'v_writelane_b32 v3, s93, {i}')
        a.e('s_mov_b64 exec, 0xffff'); a.e(f'global_store_dword v2, v3, {sp(P_DBG)}'); a.e('s_mov_b64 exec, -1')
        a.label(lab)
def publish(a, addrs, vt=2, optional=False):
    a.e(f'v_mov_b32 v{vt}, 0')
    for i, sr in enumerate(addrs): a.e(f'v_writelane_b32 v{vt}, {sr}, {i}')
    a.e(f'v_mov_b32 v{vt+1}, s{S_TAG}')
    a.e(f's_mov_b64 exec, {(1 << len(addrs)) - 1}')
    a.e(f'buffer_store_dword v{vt+1}, v{vt}, {sq(R_WS)}, 0 offen sc1', tag='flag', optional=optional)
    a.e('s_mov_b64 exec, -1')
def poll_issue(a, vaddr, vdst, width=1, tag='poll'):
    op = {1: 'dword', 2: 'dwordx2'}[width]
    a.e(f'buffer_load_{op} {v(vdst, width)}, v{vaddr}, {sq(R_WS)}, 0 offen sc1', tag=tag)
def poll_check(a, items, tag='poll', sleep=4):
    top = a.newlabel('Lpc'); done = a.newlabel('Lpd')
    a.wait_vm(tag)
    a.e(f's_mov_b32 s{S_SPIN}, 0')
    a.label(top)
    for n, (va, vd, w, vt) in enumerate(items):
        a.e(f'v_cmp_ne_u32 vcc, s{S_TAG}, v{vt}')
        a.e('s_mov_b64 s[90:91], vcc' if n == 0 else 's_or_b64 s[90:91], s[90:91], vcc')
    a.e('s_cmp_eq_u64 s[90:91], 0')
    a.e(f's_cbranch_scc1 {done}')
    a.e(f's_add_u32 s{S_SPIN}, s{S_SPIN}, 1')
    a.e(f's_cmp_gt_u32 s{S_SPIN}, {SPIN_MAX}')
    a.e(f's_cbranch_scc1 {done}')
    a.e(f's_sleep {sleep}')
    saved = (list(a.vm), list(a.lg))
    for (va, vd, w, vt) in items: poll_issue(a, va, vd, w, tag=None)
    a.e('s_waitcnt vmcnt(0)')
    a.e(f's_branch {top}')
    a.vm, a.lg = saved
    a.label(done)
def on_wave0(a, f):
    lab = a.newlabel('Lw0')
    a.e(f's_cmp_lg_u32 s{S_WAVE}, 0'); a.e(f's_cbranch_scc1 {lab}')
    before = list(a.vm); a._issued = []
    a.opt_depth = getattr(a, 'opt_depth', 0) + 1
    f(a)
    a.opt_depth -= 1
    a.vm = before + [(t, c if c.endswith('?') else c + '?') for (t, c) in getattr(a, '_issued', [])]
    a._issued = []
    a.label(lab)
def allreduce2(a, x, y, t0, t1):
    for ctl in ('quad_perm:[1,0,3,2]', 'quad_perm:[2,3,0,1]', 'row_half_mirror', 'row_mirror'):
        a.e(f'v_add_f32_dpp v{x}, v{x}, v{x} {ctl} row_mask:0xf bank_mask:0xf')
        a.e(f'v_add_f32_dpp v{y}, v{y}, v{y} {ctl} row_mask:0xf bank_mask:0xf')
    for sw in ('v_permlane16_swap_b32', 'v_permlane32_swap_b32'):
        a.e(f'v_mov_b32 v{t0}, v{x}'); a.e(f'v_mov_b32 v{t1}, v{y}')
        a.e(f'{sw} v{x}, v{t0}'); a.e(f'{sw} v{y}, v{t1}')
        a.e(f'v_add_f32 v{x}, v{x}, v{t0}'); a.e(f'v_add_f32 v{y}, v{y}, v{t1}')
class Rec:
    def __init__(self, a): self.a = a; self.ops = []
    def e(self, text, tag=None, optional=False):
        for ln in text.split('\n'):
            if ln.strip(): self.ops.append(('e', ln.strip(), tag, optional))
    def wait_vm(self, tags): self.ops.append(('vm', tags))
    def wait_lg(self, tags): self.ops.append(('lg', tags))
    def label(self, name=None): self.ops.append(('label', name)); return name
    def newlabel(self, base='L'): return self.a.newlabel(base)
    def comment(self, s): pass
    def call(self, f): self.ops.append(('call', f))
def units_of(ops):
    units = []; cur = []; mode = None; target = None
    for op in ops:
        cur.append(op)
        if op[0] == 'e':
            t = op[1]; mn = t.split()[0]
            if mode is None:
                if (mn == 's_mov_b64' and t.split()[1].startswith('exec') and not t.endswith('-1')) or 'saveexec' in mn: mode = 'exec'
                elif mn.startswith('s_cmp') : mode = 'scc'
                elif ' m0,' in t + ',' and mn.startswith('s_') and t.split()[1].startswith('m0'): mode = 'm0'
                elif mn.startswith('v_cmp') and 'vcc' in t: mode = 'vcc'
                elif mn.startswith('s_getreg'): mode = 'scc0'
            elif mode == 'exec':
                if mn == 's_mov_b64' and t.split()[1].startswith('exec') and (t.endswith('-1') or 's[' in t.split(',')[1]): mode = None
            elif mode == 'scc0':
                if mn.startswith('s_cmp'): mode = 'scc'
            elif mode == 'scc':
                if mn.startswith('s_cbranch'): mode = 'branch'; target = t.split()[1]
                elif mn.startswith(('s_cselect', 's_addc', 's_subb')): mode = None
            elif mode == 'm0':
                if mn.startswith('buffer_load') and t.endswith('lds'): mode = None
            elif mode == 'vcc':
                if mn.startswith('v_cndmask') or (mn.startswith('s_') and 'vcc' in t) : mode = 'vcc2'
            elif mode == 'vcc2':
                if not (mn.startswith('v_cndmask') or 'vcc' in t):
                    last = cur.pop(); units.append(cur); cur = [last]; mode = None
                    if (mn == 's_mov_b64' and t.split()[1].startswith('exec') and not t.endswith('-1')): mode = 'exec'
                    elif mn.startswith('s_cmp'): mode = 'scc'
        elif op[0] == 'label' and mode == 'branch' and op[1] == target: mode = None
        if mode is None:
            units.append(cur); cur = []
    if cur: units.append(cur)
    return units
def play(a, unit):
    for op in unit:
        if op[0] == 'e': a.e(op[1], tag=op[2], optional=op[3])
        elif op[0] == 'vm': a.wait_vm(op[1])
        elif op[0] == 'lg': a.wait_lg(op[1])
        elif op[0] == 'label': a.label(op[1])
        elif op[0] == 'call': op[1](a)
def ucost(unit):
    c = 0
    for op in unit:
        if op[0] == 'e':
            mn = op[1].split()[0]
            c += 3.0 if mn.startswith(('buffer_', 'global_')) else (1.5 if mn.startswith('ds_') else 1.0)
        elif op[0] == 'call': c += 6
    return c
def record(a, f):
    r = Rec(a); f(r); return units_of(r.ops)
def item_units(items):
    U = []
    for it in items:
        if callable(it): U.append([('call', it)]); continue
        u = []
        for t, tag in it:
            if t.endswith(':'): u.append(('label', t[:-1]))
            elif isinstance(tag, tuple) and len(tag) == 2 and tag[1] == 'opt': u.append(('e', t, tag[0], True))
            else: u.append(('e', t, tag, False))
        U.append(u)
    return U
class Spreader:
    def __init__(self, units, n):
        self.u = list(units); self.n = n; self.i = 0; self.total = sum(ucost(x) for x in self.u); self.done = 0.0
    def slot(self, a):
        self.i += 1
        want = self.total * self.i / self.n
        while self.u and self.done + 0.5*ucost(self.u[0]) <= want:
            x = self.u.pop(0); self.done += ucost(x); play(a, x)
    def flush(self, a):
        while self.u: play(a, self.u.pop(0))
def emit_items(a, items):
    for it in items:
        if callable(it):
            it(a); continue
        for t, tag in it:
            if t.endswith(':'): a.label(t[:-1])
            elif isinstance(tag, tuple) and len(tag) == 2 and tag[1] == 'opt': a.e(t, tag=tag[0], optional=True)
            else: a.e(t, tag=tag)

PRE_LDS = 131072
KIMG, VIMG, WIMG = PRE_LDS, PRE_LDS + 9216, PRE_LDS + 9216 + 8192
SC = 'sc1'
A_PAY = 192
A_HRAW, A_KV = 224, 236

class Pre:
    VE, XR, SKR, T, WR, SK, VD = 62, 32, 40, 42, 46, 54, 58
    KR, VR, U = 188, 200, 208
    def stats_addr(self, a):
        L = V_LANE
        a.e('s_and_b32 s58, s2, 7'); a.e('s_lshr_b32 s59, s58, 1'); a.e('s_lshl_b32 s59, s59, 9'); a.e('s_and_b32 s58, s58, 1'); a.e('s_lshl_b32 s58, s58, 5')
        a.e('s_lshr_b32 s60, s2, 3'); a.e('s_add_u32 s58, s58, s60'); a.e('s_lshl_b32 s58, s58, 3'); a.e('s_add_u32 s58, s58, s59')
        a.e(f's_lshl_b32 s59, s{S_WAVE}, 1'); a.e('s_add_u32 s58, s58, s59')
        a.e(f's_lshl_b32 s59, s58, 10')
        a.e(f'v_lshl_add_u32 v59, v{L}, 4, s59')
        a.e(f'v_mov_b32 v61, {WS_E}')
    def issue_stats(self, a):
        a.comment('pre: stats loads')
        a.e(f'buffer_load_dword v{self.VE}, v61, {sq(R_WS)}, 0 offen sc1', tag='pre0')
        srd(a, R_T, P_Q, S*D*2)
        a.e(f'buffer_load_dwordx4 {v(self.XR,4)}, v59, {sq(R_T)}, 0 offen', tag='pre0')
        a.e(f'buffer_load_dwordx4 {v(self.XR+4,4)}, v59, {sq(R_T)}, 0 offen offset:1024', tag='pre0')
    def setup(self, a):
        L = V_LANE; t = self.T
        a.e('s_lshr_b32 s48, s2, 3'); a.e('s_lshl_b32 s48, s48, 6')
        a.e('s_and_b32 s49, s2, 7'); a.e('s_lshl_b32 s49, s49, 7')
        a.e(f'v_lshrrev_b32 v{t}, 3, v{L}'); a.e(f'v_lshlrev_b32 v{t}, 10, v{t}')
        a.e(f'v_and_b32 v{t+1}, 7, v{L}'); a.e(f'v_lshl_add_u32 v{t}, v{t+1}, 4, v{t}')
        a.e('s_lshl_b32 s50, s48, 10'); a.e('s_add_u32 s50, s50, s49')
        a.e(f's_sub_u32 s51, s50, 8192'); a.e(f'v_add_u32 v{t+1}, s51, v{t}')
        a.e(f's_lshl_b32 s51, s{S_WAVE}, 14'); a.e('s_add_u32 s51, s51, s50')
        a.e(f's_lshl_b32 s52, s{S_WAVE}, 11')
        a.e(f'v_and_b32 v{t+2}, 15, v{L}'); a.e(f's_lshl_b32 s59, s{S_WAVE}, 4'); a.e('s_lshr_b32 s60, s49, 1'); a.e('s_add_u32 s59, s59, s60')
        a.e(f'v_add_u32 v{self.VD}, s59, v{t+2}')
        a.e(f'v_lshlrev_b32 v{t+2}, 3, v{self.VD}')
    def items(self):
        t = self.T; R = 96
        def mk(ptr, size): return [(f's_mov_b32 s{R}, s{ptr}', None), (f's_mov_b32 s{R+1}, s{ptr+1}', None), (f's_mov_b32 s{R+2}, {hex(size)}', None), (f's_mov_b32 s{R+3}, 0x20000', None)]
        it = []
        lab = f'Lpre_hist{id(self) % 1000}_{len(Pre.labs)}'; Pre.labs.append(lab)
        it.append(mk(P_K, S*D*2) + [(f's_cmp_lg_u32 s{S_WAVE}, 0', None), (f's_cbranch_scc1 {lab}', None), (f's_mov_b32 m0, {KIMG}', None),
                  (f'buffer_load_dwordx4 v{t+1}, {sq(R)}, 0 offen lds', ('pre', 'opt')), (f'{lab}:', None)])
        for jj in range(2):
            it.append([(f's_add_u32 s53, s51, {jj*8192}', None), (f's_add_u32 m0, s52, {KIMG + 1024 + jj*1024}', None), (f'buffer_load_dwordx4 v{t}, {sq(R)}, s53 offen lds', 'pre')])
        for jj in range(2):
            it.append((mk(P_V, S*D*2) if jj == 0 else []) + [(f's_add_u32 s53, s51, {jj*8192}', None), (f's_add_u32 m0, s52, {VIMG + jj*1024}', None), (f'buffer_load_dwordx4 v{t}, {sq(R)}, s53 offen lds', 'pre')])
        it.append(srd_items(P_SK, D*8) + [(f'buffer_load_dwordx2 {v(self.SKR,2)}, v{t+2}, {sq(R_T)}, 0 offen', 'pre')])
        return it
    labs = []
    def tag(self, a):
        a.wait_vm('pre0')
        a.e(f'v_readfirstlane_b32 s{S_TAG}, v{self.VE}')
        a.e('s_nop 3')
        a.e(f's_add_u32 s{S_TAG}, s{S_TAG}, {TAGC}')
    def stats(self, a, tag_done=False, store=True):
        L = V_LANE; X = self.U
        a.wait_vm('pre0')
        if not tag_done: a.e(f'v_readfirstlane_b32 s{S_TAG}, v{self.VE}')
        for rr in range(2):
            for j in range(4):
                unpack_lo(a, X+8*rr+2*j, self.XR+4*rr+j); unpack_hi(a, X+8*rr+2*j+1, self.XR+4*rr+j)
        if not tag_done: a.e(f's_add_u32 s{S_TAG}, s{S_TAG}, {TAGC}')
        SA, SB, t0, t1, QA, QB = X+16, X+17, X+18, X+19, X+20, X+21
        for rr, Sx in ((0, SA), (1, SB)): a.e(f'v_add_f32 v{Sx}, v{X+8*rr}, v{X+8*rr+1}')
        for j in range(2, 8):
            for rr, Sx in ((0, SA), (1, SB)): a.e(f'v_add_f32 v{Sx}, v{Sx}, v{X+8*rr+j}')
        allreduce2(a, SA, SB, t0, t1)
        a.e(f'v_mul_f32 v{SA}, 0x3b000000, v{SA}'); a.e(f'v_mul_f32 v{SB}, 0x3b000000, v{SB}')
        for j in range(8):
            for rr, Sx in ((0, SA), (1, SB)): a.e(f'v_sub_f32 v{X+8*rr+j}, v{X+8*rr+j}, v{Sx}')
        for rr, Q in ((0, QA), (1, QB)): a.e(f'v_mul_f32 v{Q}, v{X+8*rr}, v{X+8*rr}')
        for j in range(1, 8):
            for rr, Q in ((0, QA), (1, QB)): a.e(f'v_fmac_f32 v{Q}, v{X+8*rr+j}, v{X+8*rr+j}')
        allreduce2(a, QA, QB, t0, t1)
        a.e(f'v_mul_f32 v{QA}, 0x3b000000, v{QA}'); a.e(f'v_mul_f32 v{QB}, 0x3b000000, v{QB}')
        a.e(f'v_and_b32 v{t0}, 1, v{L}'); a.e(f'v_cmp_eq_u32 vcc, 1, v{t0}')
        a.e(f'v_cndmask_b32 v{SA}, v{SA}, v{SB}, vcc'); a.e(f'v_cndmask_b32 v{QA}, v{QA}, v{QB}, vcc')
        G = X + 24
        a.e(f'v_cvt_pk_bf16_f32 v{G}, v{SA}, v{QA}')
        unpack_hi(a, t1, G)
        a.e(f'v_add_f32 v{t1}, 0x3727c5ac, v{t1}')
        a.e(f'v_cvt_pk_bf16_f32 v{t1}, v{t1}, v{t1}'); unpack_lo(a, t1, t1)
        a.e(f'v_sqrt_f32 v{t1}, v{t1}')
        a.e(f'v_cvt_pk_bf16_f32 v{t1}, v{t1}, v{t1}')
        a.e(f'v_and_b32 v{G}, 0xffff, v{G}'); a.e(f'v_and_b32 v{t1}, 0xffff0000, v{t1}'); a.e(f'v_or_b32 v{G}, v{G}, v{t1}')
        a.e(f'v_mov_b32 v{G+1}, s{S_TAG}')
        a.e(f'v_mov_b32 v60, v{G}'); a.e(f'v_mov_b32 v61, v{G+1}')
        if store: self.store_stats(a)
    def store_stats(self, a):
        L = V_LANE
        a.e(f's_lshl_b32 s59, s58, 6'); a.e(f's_add_u32 s59, s59, {WS_ST}')
        a.e(f'v_lshlrev_b32 v59, 3, v{L}')
        a.e('s_mov_b64 exec, 3')
        a.e(f'buffer_store_dwordx2 v[60:61], v59, {sq(R_WS)}, s59 offen {SC}', tag='prest')
        a.e('s_mov_b64 exec, -1')
    def compute(self, a):
        L = V_LANE; T = self.T
        KR, VR, WR, SK, U = self.KR, self.VR, self.WR, self.SK, self.U
        a.wait_vm('pre')
        if not isinstance(a, Rec): stamp(a, 'pre_arrived')
        a.e('s_barrier')
        a.e(f'v_lshrrev_b32 v{T}, 4, v{L}'); a.e(f'v_lshlrev_b32 v{T}, 3, v{T}')
        a.e(f'v_bfe_u32 v{T+1}, v{L}, 2, 2'); a.e(f'v_add_u32 v{T}, v{T}, v{T+1}'); a.e(f'v_lshlrev_b32 v{T}, 7, v{T}')
        a.e(f'v_and_b32 v{T+1}, 3, v{L}'); a.e(f'v_lshl_add_u32 v{T}, v{T+1}, 3, v{T}')
        a.e(f's_lshl_b32 s59, s{S_WAVE}, 5'); a.e(f'v_add_u32 v{T}, s59, v{T}')
        a.e(f'v_add_u32 v{T+1}, {KIMG}, v{T}'); a.e(f'v_add_u32 v{T+2}, {VIMG}, v{T}')
        for run in range(2):
            for j in range(3):
                a.e(f'ds_read_b64_tr_b16 {v(KR+run*6+2*j,2)}, v{T+1} offset:{512 + j*512 + run*4096}', tag=('kvr', run))
            for j in range(2):
                a.e(f'ds_read_b64_tr_b16 {v(VR+run*4+2*j,2)}, v{T+2} offset:{j*512 + run*4096}', tag=('kvr', run))
        unpack_lo(a, SK, self.SKR); unpack_hi(a, SK+1, self.SKR); unpack_lo(a, SK+2, self.SKR+1); unpack_hi(a, SK+3, self.SKR+1)
        a.e(f'v_lshlrev_b32 v{T}, 12, v{self.VD}')
        a.e(f'v_lshrrev_b32 v{T+1}, 4, v{L}'); a.e(f'v_lshl_add_u32 v{T}, v{T+1}, 4, v{T}')
        a.e('s_lshl_b32 s57, s48, 1'); a.e(f's_add_u32 s57, s57, {WS_KVT}')
        for run in range(2):
            a.wait_lg(('kvr', run))
            for j in range(6):
                if j > 0: unpack_lo(a, U+2*j, KR+run*6+j)
                unpack_hi(a, U+2*j+1, KR+run*6+j)
            for j in range(4):
                unpack_lo(a, U+12+2*j, VR+run*4+j); unpack_hi(a, U+12+2*j+1, VR+run*4+j)
            A0 = U + 20
            for t in range(8): a.e(f'v_mul_f32 v{A0+t}, v{U+1+t}, v{SK+3}')
            for t in range(8): a.e(f'v_fmac_f32 v{A0+t}, v{U+2+t}, v{SK+2}')
            for t in range(8): a.e(f'v_fmac_f32 v{A0+t}, v{U+3+t}, v{SK+1}')
            for t in range(8): a.e(f'v_fmac_f32 v{A0+t}, v{U+4+t}, v{SK}')
            for t in range(8): a.e(f'v_mul_f32 v{A0+t}, v{A0+t}, v{U+12+t}')
            O = U + 28 + run*4
            for j in range(4): a.e(f'v_cvt_pk_bf16_f32 v{O+j}, v{A0+2*j}, v{A0+2*j+1}')
        if not Opt.defer: self.store_kv(a)
    def store_kv(self, a):
        T = self.T
        for run in range(2):
            O = self.U + 28 + run*4
            a.e(f'buffer_store_dwordx4 {v(O,4)}, v{T}, {sq(R_WS)}, s57 offen offset:{run*64} {SC}', tag='prest')
    def publish(self, a, vt, optional=False):
        a.e('s_and_b32 s59, s2, 7'); a.e('s_lshl_b32 s59, s59, 2'); a.e(f's_add_u32 s59, s59, s{S_WAVE}'); a.e('s_lshl_b32 s59, s59, 5')
        a.e('s_lshr_b32 s60, s2, 3'); a.e('s_add_u32 s59, s59, s60'); a.e(f's_lshl_b32 s59, s59, {FS}'); a.e(f's_add_u32 s59, s59, {FK}')
        a.e(f's_lshl_b32 s53, s2, {FS}'); a.e(f's_lshl_b32 s60, s{S_WAVE}, 2'); a.e('s_add_u32 s53, s53, s60'); a.e(f's_add_u32 s53, s53, {FAR}')
        publish(a, ['s59', 's53'], vt=vt, optional=optional)

class W2T:
    def issue(self, a):
        L = V_LANE; t = 8
        srd(a, R_C, P_W2, F*D*2)
        a.e('s_sub_u32 s54, s62, 28')
        a.e('s_mul_i32 s55, s54, 448'); a.e(f's_mul_i32 s56, s{S_WAVE}, 112'); a.e('s_add_u32 s55, s55, s56'); a.e('s_lshl_b32 s55, s55, 10')
        a.e('s_lshl_b32 s56, s61, 7'); a.e('s_add_u32 s55, s55, s56')
        a.e(f'v_lshrrev_b32 v{t}, 3, v{L}'); a.e(f'v_lshlrev_b32 v{t}, 10, v{t}'); a.e(f'v_and_b32 v{t+1}, 7, v{L}'); a.e(f'v_lshl_add_u32 v{t}, v{t+1}, 4, v{t}')
        a.e(f's_mul_i32 s56, s{S_WAVE}, {112*128}')
        for j in range(14):
            a.e(f's_add_u32 m0, s56, {j*1024}'); a.e(f's_add_u32 s57, s55, {j*8192}')
            a.e(f'buffer_load_dwordx4 v{t}, {sq(R_C)}, s57 offen lds', tag='w2t')
    def compute(self, a):
        L = V_LANE; t = 8
        a.wait_vm('w2t')
        stamp(a, 'w2t_arr')
        a.e(f'v_lshrrev_b32 v{t}, 5, v{L}'); a.e(f'v_lshlrev_b32 v{t}, 2, v{t}'); a.e(f'v_bfe_u32 v{t+1}, v{L}, 2, 2'); a.e(f'v_add_u32 v{t}, v{t}, v{t+1}'); a.e(f'v_lshlrev_b32 v{t}, 7, v{t}')
        a.e(f'v_bfe_u32 v{t+1}, v{L}, 4, 1'); a.e(f'v_lshl_add_u32 v{t}, v{t+1}, 5, v{t}'); a.e(f'v_and_b32 v{t+1}, 3, v{L}'); a.e(f'v_lshl_add_u32 v{t}, v{t+1}, 3, v{t}')
        a.e(f'v_add_u32 v{t}, s56, v{t}')
        a.e(f'v_lshlrev_b32 v{t+1}, 4, v{L}')
        a.e('s_lshl_b32 s57, s61, 1'); a.e('s_mul_i32 s57, s57, 112'); a.e('s_mul_i32 s55, s54, 28'); a.e('s_add_u32 s57, s57, s55'); a.e(f's_mul_i32 s55, s{S_WAVE}, 7'); a.e('s_add_u32 s57, s57, s55')
        a.e('s_lshl_b32 s57, s57, 10'); a.e(f's_add_u32 s57, s57, {WS_W2F}')
        R0 = 64
        for j in range(7):
            for h in range(2):
                r = R0 + (j*2+h)*4
                a.e(f'ds_read_b64_tr_b16 {v(r,2)}, v{t} offset:{j*2048 + h*64}', tag=('w2r', j, h))
                a.e(f'ds_read_b64_tr_b16 {v(r+2,2)}, v{t} offset:{j*2048 + h*64 + 1024}', tag=('w2r', j, h))
        for j in range(7):
            for h in range(2):
                r = R0 + (j*2+h)*4
                a.wait_lg(('w2r', j, h))
                a.e(f's_add_u32 s55, s57, {(h*112 + j)*1024}')
                a.e(f'buffer_store_dwordx4 {v(r,4)}, v{t+1}, {sq(R_WS)}, s55 offen {SC}', tag='w2st')
    def publish(self, a, vt):
        a.e('s_lshl_b32 s55, s61, 2'); a.e('s_add_u32 s55, s55, s54')
        a.e(f's_lshl_b32 s55, s55, {FS}'); a.e(f's_add_u32 s55, s55, {FW}')
        publish(a, ['s55'], vt=vt)

class Gemm1:
    ACC, FR, VW, VX, VA, VB, CS, SEL, B1, ST = 64, 128, 8, 9, 12, 16, 160, 168, 172, 28
    def decode(self, a):
        a.e('s_and_b32 s61, s2, 7'); a.e('s_lshr_b32 s62, s2, 3')
        a.e('s_lshr_b32 s63, s61, 1'); a.e('s_lshl_b32 s63, s63, 9'); a.e('s_and_b32 s64, s62, 3'); a.e('s_lshl_b32 s64, s64, 7'); a.e('s_add_u32 s63, s63, s64')
        a.e('s_and_b32 s64, s61, 1'); a.e('s_mul_i32 s64, s64, 896'); a.e('s_lshr_b32 s65, s62, 2'); a.e('s_lshl_b32 s65, s65, 7'); a.e('s_add_u32 s64, s64, s65')
        a.e(f's_and_b32 s70, s{S_WAVE}, 1'); a.e(f's_lshr_b32 s71, s{S_WAVE}, 1')
        if Opt.rot1:
            a.e('s_and_b32 s69, s62, 3'); a.e('s_lshl_b32 s69, s69, 1'); a.e('s_lshr_b32 s65, s62, 2'); a.e('s_add_u32 s65, s65, s69'); a.e('s_and_b32 s65, s65, 7')
        else:
            a.e('s_mov_b32 s65, 0')
    def setup(self, a):
        L = V_LANE
        t = 24
        a.e(f'v_lshrrev_b32 v{t}, 4, v{L}')
        a.e(f'v_mul_u32_u24 v{self.VW}, 3584, v{t}')
        a.e(f'v_lshlrev_b32 v{t+1}, 2, v{t}'); a.e(f'v_and_b32 v{t+2}, 15, v{L}'); a.e(f'v_xor_b32 v{t+1}, v{t+1}, v{t+2}')
        a.e(f'v_lshl_add_u32 v{self.VW}, v{t+1}, 4, v{self.VW}')
        a.e(f'v_lshrrev_b32 v{t+1}, 3, v{L}'); a.e(f'v_lshlrev_b32 v{t+1}, 10, v{t+1}')
        a.e(f'v_and_b32 v{t+2}, 7, v{L}')
        a.e(f'v_xor_b32 v{t+3}, v{t+2}, v{t}'); a.e(f'v_lshl_add_u32 v{self.VX}, v{t+3}, 4, v{t+1}')
        a.e(f'v_xor_b32 v{t+3}, 4, v{t+3}'); a.e(f'v_lshl_add_u32 v{self.VX+1}, v{t+3}, 4, v{t+1}')
        a.e(f's_mul_i32 s66, s{S_WAVE}, {16*3584}'); a.e('s_lshl_b32 s69, s64, 1'); a.e('s_add_u32 s66, s66, s69')
        a.e(f's_lshl_b32 s67, s{S_WAVE}, 5'); a.e('s_add_u32 s67, s67, s63'); a.e('s_lshl_b32 s67, s67, 10')
        a.e(f's_lshl_b32 s68, s{S_WAVE}, 12')
    def srds(self, a):
        srd(a, R_A, P_W1, D*F*2); srd(a, R_B, P_Q, S*D*2)
    VB1 = 252
    B1L = 156672
    def b1_setup(self, a):
        a.e('s_lshl_b32 s69, s64, 1'); a.e(f'v_lshl_add_u32 v{self.VB1}, v{V_LANE}, 4, s69')
    def b1_items(self):
        return [srd_items(P_B1, F*2) + [(f's_mov_b32 m0, {self.B1L}', None), ('s_nop 0', None), (f'buffer_load_dwordx4 v{self.VB1}, {sq(R_T)}, 0 offen lds', 'b1')]]
    def dma_items(self, s):
        slot = (s & 3) * 32768
        head = [(f's_add_u32 s46, s65, {s}', None), ('s_and_b32 s46, s46, 7', None), ('s_lshl_b32 s47, s46, 7', None), ('s_add_u32 s47, s47, s67', None),
                (f's_mul_i32 s46, s46, {64*3584}', None), ('s_add_u32 s46, s46, s66', None)]
        items = []
        for jj in range(4):
            w = [(f's_add_u32 m0, s68, {slot + jj*1024}', None), (f's_add_u32 s69, s46, {4*jj*3584}', None),
                 (f'buffer_load_dwordx4 v{self.VW}, {sq(R_A)}, s69 offen lds', ('g1', s))]
            x = [(f's_add_u32 m0, s68, {slot + 16384 + jj*1024}', None), (f's_add_u32 s69, s47, {8*jj*1024}', None),
                 (f'buffer_load_dwordx4 v{self.VX + (jj&1)}, {sq(R_B)}, s69 offen lds', ('g1', s))]
            items += [w, x]
        items[0] = head + items[0]
        return items
    def setup2(self, a):
        L = V_LANE; t = 24
        a.e(f'v_lshrrev_b32 v{t}, 5, v{L}'); a.e(f'v_lshlrev_b32 v{t}, 3, v{t}'); a.e(f'v_bfe_u32 v{t+1}, v{L}, 2, 2'); a.e(f'v_add_u32 v{t}, v{t}, v{t+1}')
        a.e(f'v_lshlrev_b32 v{t}, 8, v{t}')
        a.e(f'v_and_b32 v{t+2}, 1, v{L}'); a.e(f'v_lshl_add_u32 v{t}, v{t+2}, 3, v{t}')
        a.e(f'v_bfe_u32 v{t+2}, v{L}, 4, 1'); a.e(f'v_lshlrev_b32 v{t+2}, 1, v{t+2}'); a.e(f'v_bfe_u32 v{t+3}, v{L}, 1, 1'); a.e(f'v_add_u32 v{t+2}, v{t+2}, v{t+3}')
        a.e(f's_lshl_b32 s69, s70, 3'); a.e(f'v_add_u32 v{t+2}, s69, v{t+2}')
        a.e(f'v_lshlrev_b32 v{t+1}, 2, v{t+1}')
        a.e('s_lshl_b32 s69, s71, 2')
        for aa in range(2):
            a.e(f's_xor_b32 s72, s69, {4*aa}')
            a.e(f'v_add_u32 v{t+3}, s72, v{t+2}'); a.e(f'v_xor_b32 v{t+3}, v{t+3}, v{t+1}')
            a.e(f'v_lshl_add_u32 v{self.VA+2*aa}, v{t+3}, 4, v{t}')
            a.e(f'v_add_u32 v{self.VA+2*aa+1}, 0x10000, v{self.VA+2*aa}')
        a.e(f'v_and_b32 v{t}, 31, v{L}'); a.e(f's_lshl_b32 s69, s71, 6'); a.e(f'v_add_u32 v{t}, s69, v{t}'); a.e(f'v_lshlrev_b32 v{t}, 7, v{t}')
        a.e(f'v_add_u32 v{t}, 16384, v{t}')
        a.e(f'v_bfe_u32 v{t+1}, v{L}, 1, 3'); a.e(f'v_lshrrev_b32 v{t+2}, 5, v{L}'); a.e(f'v_xor_b32 v{t+1}, v{t+1}, v{t+2}')
        for kk in range(4):
            a.e(f'v_xor_b32 v{t+2}, {2*kk}, v{t+1}'); a.e(f'v_lshl_add_u32 v{self.VB+2*kk}, v{t+2}, 4, v{t}')
            a.e(f'v_add_u32 v{self.VB+2*kk+1}, 0x10000, v{self.VB+2*kk}')
        a.e(f'v_bfe_u32 v{t}, v{L}, 4, 1'); a.e(f'v_and_b32 v{t+1}, 1, v{L}'); a.e(f'v_cmp_eq_u32 vcc, v{t}, v{t+1}')
        a.e(f'v_mov_b32 v{t+2}, 0x3f803f80')
        for j in range(4): a.e(f'v_cndmask_b32 v{self.SEL+j}, 0, v{t+2}, vcc')
        for i in range(32): a.e(f'v_mov_b64 {v(self.ACC+2*i,2)}, 0')
        for i in range(2): a.e(f'v_mov_b64 {v(self.CS+2*i,2)}, 0')
    def read_list(self, s, kk, p):
        slot = (s & 3); hi = slot >> 1; base = (slot & 1) * 32768
        F0 = self.FR + 16*p; tg = ('fr', s, kk)
        return [
          (f'ds_read_b64_tr_b16 {v(F0,2)}, v{self.VA+hi} offset:{base + kk*4096}', tg+('A0',)),
          (f'ds_read_b64_tr_b16 {v(F0+2,2)}, v{self.VA+hi} offset:{base + kk*4096 + 1024}', tg+('A0',)),
          (f'ds_read_b128 {v(F0+8,4)}, v{self.VB+2*kk+hi} offset:{base}', tg+('B0',)),
          (f'ds_read_b128 {v(F0+12,4)}, v{self.VB+2*kk+hi} offset:{base + 4096}', tg+('B1',)),
          (f'ds_read_b64_tr_b16 {v(F0+4,2)}, v{self.VA+2+hi} offset:{base + kk*4096}', tg+('A1',)),
          (f'ds_read_b64_tr_b16 {v(F0+6,2)}, v{self.VA+2+hi} offset:{base + kk*4096 + 1024}', tg+('A1',))]
    def mfmas(self, a, s, kk, p, reads, sp):
        F0 = self.FR + 16*p; tg = ('fr', s, kk)
        order = [(0, 0), (0, 1), (1, 0), (1, 1)]
        need = [[tg+('A0',), tg+('B0',)], [tg+('B1',)], [tg+('A1',)], []]
        reads = list(reads)
        for i, (aa, bb) in enumerate(order):
            if need[i]: a.wait_lg(need[i])
            acc = self.ACC + (aa*2+bb)*16
            a.e(f'v_mfma_f32_32x32x16_bf16 {v(acc,16)}, {v(F0+4*aa,4)}, {v(F0+8+4*bb,4)}, {v(acc,16)}')
            for _ in range(2):
                if reads:
                    t, tag = reads.pop(0); a.e(t, tag=tag)
            if sp: sp.slot(a)
            if i == 1: a.e(f'v_mfma_f32_16x16x32_bf16 {v(self.CS,4)}, {v(F0,4)}, {v(self.SEL,4)}, {v(self.CS,4)}')
    def main(self, a, hooks, fill):
        a.comment('gemm1: main loop')
        prev = None; p = 0
        for s in range(8):
            a.wait_vm(('g1', s))
            if s > 0: a.wait_lg([('fr', s-1, 3, x) for x in ('A0', 'A1', 'B0', 'B1')])
            a.e('s_barrier')
            if Opt.stagestamps == 2: stamp(a, f'cycS{s}', True)
            elif Opt.stagestamps or s in (0,): stamp(a, f'g1_s{s}')
            if s in hooks: hooks[s](a)
            sp = Spreader(fill[s]() if s in fill else [], 16 if s > 0 else 12)
            for kk in range(4):
                reads = self.read_list(s, kk, p)
                if prev is None:
                    for t, tag in reads: a.e(t, tag=tag)
                else:
                    self.mfmas(a, prev[0], prev[1], prev[2], reads, sp)
                prev = (s, kk, p); p ^= 1
            sp.flush(a)
        sp = Spreader(fill[8]() if 8 in fill else [], 4)
        self.mfmas(a, prev[0], prev[1], prev[2], [], sp); sp.flush(a)
    def stats_addr(self, a, vd):
        L = V_LANE
        a.e(f'v_and_b32 v{vd}, 31, v{L}'); a.e(f's_lshl_b32 s69, s71, 6'); a.e('s_add_u32 s69, s69, s63'); a.e(f'v_add_u32 v{vd}, s69, v{vd}')
        a.e(f'v_and_b32 v{vd+1}, 1, v{vd}'); a.e(f'v_lshrrev_b32 v{vd}, 1, v{vd}'); a.e(f'v_lshlrev_b32 v{vd}, 7, v{vd}'); a.e(f'v_lshl_add_u32 v{vd}, v{vd+1}, 3, v{vd}')
        a.e(f'v_add_u32 v{vd}, {WS_ST}, v{vd}')
        a.e(f'v_add_u32 v{vd+1}, 2048, v{vd}')
    OUTL = [40, 44, 48, 52, 56, 60, 224, 228]
    def b1_unpack(self, a):
        TMP = 192; t = 238; L = V_LANE
        a.e(f'v_lshrrev_b32 v{t}, 5, v{L}'); a.e(f'v_lshlrev_b32 v{t}, 3, v{t}')
        a.e('s_lshl_b32 s51, s70, 7'); a.e('s_lshl_b32 s52, s71, 6'); a.e('s_add_u32 s51, s51, s52'); a.e(f's_add_u32 s51, s51, {self.B1L}')
        a.e(f'v_add_u32 v{t}, s51, v{t}'); a.e(f'v_xor_b32 v{t+1}, 64, v{t}')
        for aa in range(2):
            for q in range(4):
                a.e(f'ds_read_b64 {v(self.B1+(aa*4+q)*2,2)}, v{t+aa} offset:{q*16}', tag=('b1r', aa))
        for aa in range(2):
            a.wait_lg(('b1r', aa))
            for i in range(8*aa, 8*aa+8):
                unpack_lo(a, TMP+2*i, self.B1+i); unpack_hi(a, TMP+2*i+1, self.B1+i)
    def epilogue_a(self, a):
        L = V_LANE
        t = 24
        a.e('s_barrier')
        a.e(f'v_and_b32 v{t}, 1, v{L}'); a.e(f'v_lshlrev_b32 v{t}, 6, v{t}'); a.e(f'v_lshrrev_b32 v{t+1}, 4, v{L}'); a.e(f'v_lshl_add_u32 v{t}, v{t+1}, 4, v{t}')
        a.e(f's_lshl_b32 s69, s70, 8'); a.e('s_lshl_b32 s72, s71, 7'); a.e('s_add_u32 s69, s69, s72'); a.e(f'v_add_u32 v{t}, s69, v{t}')
        a.e(f'v_add_u32 v{t}, {PRE_LDS}, v{t}')
        a.e(f'ds_write_b128 v{t}, {v(self.CS,4)}', tag='csw')
    def epilogue(self, a, mid, pre_bar, post_bar, items=()):
        L = V_LANE; ST = self.ST; t = 24
        for bb in range(2):
            g = ST + 2*bb
            unpack_hi(a, g+1, g); unpack_lo(a, g, g)
            a.e(f'v_rcp_f32 v{g+1}, v{g+1}')
            a.e(f'v_xor_b32 v{g}, 0x80000000, v{g}')
        TMP = 192
        a.wait_lg('csw')
        pre_bar(a)
        a.e('s_barrier')
        post_bar(a)
        CSV = self.FR
        a.e(f'v_lshrrev_b32 v{t}, 5, v{L}'); a.e(f'v_lshlrev_b32 v{t}, 4, v{t}'); a.e('s_lshl_b32 s69, s70, 8'); a.e('s_lshl_b32 s72, s71, 7'); a.e('s_add_u32 s69, s69, s72')
        a.e(f's_add_u32 s69, s69, {PRE_LDS}')
        a.e(f'v_add_u32 v{t}, s69, v{t}'); a.e(f'v_xor_b32 v{t+1}, 128, v{t}')
        for aa in range(2):
            for q in range(4):
                a.e(f'ds_read_b128 {v(CSV+(aa*4+q)*4,4)}, v{t+aa} offset:{q*32}', tag=('csr', aa))
        self.hst_setup(a)
        n = 0
        stamp(a, 'cycE', True)
        for aa in range(2):
            a.wait_lg(('csr', aa))
            for bb in range(2):
                acc = self.ACC + (aa*2+bb)*16
                for half in range(2):
                    O = self.OUTL[n]; n += 1
                    R = [half*8 + 2*j for j in range(4)]
                    for r in R: a.e(f'v_pk_fma_f32 {v(acc+r,2)}, {v(CSV+aa*16+r,2)}, {v(ST+2*bb,2)}, {v(acc+r,2)} op_sel_hi:[1,0,1]')
                    for r in R: a.e(f'v_pk_fma_f32 {v(acc+r,2)}, {v(acc+r,2)}, {v(ST+2*bb,2)}, {v(TMP+aa*16+r,2)} op_sel:[0,1,0] op_sel_hi:[1,1,1]')
                    for r in R:
                        a.e(f'v_max_f32 v{acc+r}, 0, v{acc+r}'); a.e(f'v_max_f32 v{acc+r+1}, 0, v{acc+r+1}')
                    for r in R: a.e(f'v_pk_mul_f32 {v(acc+r,2)}, {v(acc+r,2)}, {v(acc+r,2)}')
                    for j, r in enumerate(R): a.e(f'v_cvt_pk_bf16_f32 v{O+j}, v{acc+r}, v{acc+r+1}')
                    if n <= Opt.hearly: emit_items(a, [self.hst_item(n-1)])
        stamp(a, 'cycF', True)
        mid(a)
    VHS = 232
    def hst_setup(self, a):
        a.e('s_lshl_b32 s98, s71, 6'); a.e('s_add_u32 s98, s98, s63'); a.e('s_lshr_b32 s98, s98, 5'); a.e('s_mul_i32 s98, s98, 112')
        a.e('s_lshl_b32 s97, s70, 6'); a.e('s_add_u32 s97, s97, s64'); a.e('s_lshr_b32 s97, s97, 4'); a.e('s_add_u32 s98, s98, s97')
        a.e('s_lshl_b32 s98, s98, 10'); a.e(f's_add_u32 s98, s98, {WS_H}')
        a.e('s_lshl_b32 s97, s71, 11')
        a.e(f'v_lshlrev_b32 v{self.VHS}, 4, v{V_LANE}')
    def hst_item(self, n):
        aa, bb, half = n >> 2, (n >> 1) & 1, n & 1
        off = bb*112*1024 + half*1024
        return [(f's_xor_b32 s46, s97, {2048*aa}', None), ('s_add_u32 s46, s46, s98', None), (f's_add_u32 s46, s46, {off}', None),
                (f'buffer_store_dwordx4 {v(self.OUTL[n],4)}, v{self.VHS}, {sq(R_WS)}, s46 offen {SC}', 'hst')]
    def publish(self, a, vt):
        a.e('s_lshr_b32 s69, s63, 7'); a.e('s_lshl_b32 s69, s69, 6'); a.e('s_lshr_b32 s72, s64, 7'); a.e('s_lshl_b32 s72, s72, 2'); a.e('s_add_u32 s69, s69, s72')
        a.e(f's_add_u32 s69, s69, s{S_WAVE}'); a.e(f's_lshl_b32 s69, s69, {FS}'); a.e(f's_add_u32 s69, s69, {FH}')
        publish(a, ['s69'], vt=vt, optional=True)

HC0 = 32768; HC_CH = 16640; KV0 = 0; KV_CH = 4608; RED0 = 2*KV_CH
class Conv:
    ACC, FA = 8, 64
    VF = 244
    def filter_setup(self, a):
        t = self.VF
        a.e('s_lshl_b32 s73, s2, 13')
        a.e(f'v_lshl_add_u32 v{t}, v0, 4, s73')
        a.e(f'v_subrev_u32 v{t+1}, 8, v{t}'); a.e(f'v_max_i32 v{t+1}, 0, v{t+1}')
        a.e(f'v_add_u32 v{t+2}, 4096, v{t}'); a.e(f'v_add_u32 v{t+3}, 4096, v{t+1}')
    def d_load(self, a):
        a.e('s_lshl_b32 s74, s2, 2')
        a.e(f's_load_dword s75, {sp(P_SSMD)}, s74')
    def filter_items(self):
        t = self.VF
        R = sq(R_T)
        return [srd_items(P_SSMK, D*S*2) + [(f'buffer_load_dwordx4 {ac(A_HRAW,4)}, v{t}, {R}, 0 offen', 'hraw')], [(f'buffer_load_dwordx2 {ac(A_HRAW+4,2)}, v{t+1}, {R}, 0 offen', 'hraw')],
                [(f'buffer_load_dwordx4 {ac(A_HRAW+8,4)}, v{t+2}, {R}, 0 offen', 'hraw')], [(f'buffer_load_dwordx2 {ac(A_HRAW+6,2)}, v{t+3}, {R}, 0 offen', 'hraw')]] + \
               Gemm2().b2_items(t)
    def payload(self, a, H):
        a.comment('conv: filter payloads')
        a.wait_vm('hraw')
        for i in range(12): a.e(f'v_accvgpr_read_b32 v{H+i}, a{A_HRAW+i}')
        a.e(f'v_cmp_eq_u32 vcc, 0, v0')
        W = H + 12
        for ch in range(2):
            d0 = H if ch == 0 else H + 8; dm = H + 4 if ch == 0 else H + 6
            a.e(f'v_cndmask_b32_e64 v{dm}, v{dm}, 0, vcc'); a.e(f'v_cndmask_b32_e64 v{dm+1}, v{dm+1}, 0, vcc')
            src = [dm+1, d0, d0+1, d0+2, d0+3]
            P = A_PAY + ch*16
            for j in range(4): a.e(f'v_accvgpr_write_b32 a{P+j}, v{d0+j}')
            for j in range(4): a.e(f'v_alignbit_b32 v{W+j}, v{src[j+1]}, v{src[j]}, 16')
            for j in range(4): a.e(f'v_accvgpr_write_b32 a{P+8+j}, v{src[j]}')
            for j in range(4): a.e(f'v_accvgpr_write_b32 a{P+4+j}, v{W+j}')
            for j in range(3): a.e(f'v_accvgpr_write_b32 a{P+13+j}, v{W+j}')
            a.e(f'v_alignbit_b32 v{W}, v{dm+1}, v{dm}, 16')
            a.e(f'v_accvgpr_write_b32 a{P+12}, v{W}')
    def flag_addr(self, a, vd):
        a.e('s_lshr_b32 s73, s2, 5'); a.e('s_lshl_b32 s73, s73, 2'); a.e('s_bfe_u32 s74, s2, 0x20003'); a.e('s_add_u32 s73, s73, s74')
        a.e(f's_lshl_b32 s73, s73, {5+FS}'); a.e(f's_add_u32 s73, s73, {FK}')
        a.e(f'v_and_b32 v{vd}, 31, v{V_LANE}'); a.e(f'v_lshl_add_u32 v{vd}, v{vd}, {FS}, s73')
    def load_kv(self, a, t, tag='kvl'):
        a.e('s_lshl_b32 s73, s2, 13'); a.e(f's_add_u32 s73, s73, {WS_KVT}')
        a.e(f'v_lshlrev_b32 v{t}, 4, v{V_LANE}')
        for j in range(8):
            if j % 4 == 0 and j: a.e('s_add_u32 s73, s73, 4096')
            a.e(f'buffer_load_dwordx4 {ac(224+4*j,4)}, v{t}, {sq(R_WS)}, s73 offen offset:{(j%4)*1024} {SC}', tag=tag)
    def prep_hc(self, a, t):
        a.comment('conv: filter copies to LDS')
        a.e(f'v_lshlrev_b32 v{t}, 4, v0')
        a.e(f'v_add_u32 v{t+1}, {HC0 + 32}, v{t}')
        for ch in range(2):
            for r in range(4):
                a.e(f'ds_write_b128 v{t+1}, {ac(A_PAY + (ch*4+r)*4, 4)} offset:{ch*HC_CH + r*4160}', tag='hw')
        Z = t + 4
        a.e(f'v_mov_b64 {v(Z,2)}, 0'); a.e(f'v_mov_b64 {v(Z+2,2)}, 0')
        a.e(f'v_lshrrev_b32 v{t+2}, 1, v0'); a.e(f'v_and_b32 v{t+3}, 3, v{t+2}'); a.e(f'v_mul_u32_u24 v{t+3}, 4160, v{t+3}')
        a.e(f'v_bfe_u32 v{t+2}, v0, 3, 1'); a.e(f'v_mul_u32_u24 v{t+2}, {HC_CH}, v{t+2}'); a.e(f'v_add_u32 v{t+3}, v{t+3}, v{t+2}')
        a.e(f'v_and_b32 v{t+2}, 1, v0'); a.e(f'v_lshl_add_u32 v{t+3}, v{t+2}, 4, v{t+3}'); a.e(f'v_add_u32 v{t+3}, {HC0}, v{t+3}')
        a.e(f'v_subrev_u32 v{t+2}, 16, v0'); a.e(f'v_and_b32 v{t+8}, 31, v{t+2}'); a.e(f'v_lshlrev_b32 v{t+8}, 4, v{t+8}')
        a.e(f'v_bfe_u32 v{t+2}, v{t+2}, 5, 1'); a.e(f'v_mul_u32_u24 v{t+2}, {KV_CH}, v{t+2}'); a.e(f'v_add_u32 v{t+8}, v{t+8}, v{t+2}')
        a.e(f'v_cmp_gt_u32 vcc, 16, v0')
        a.e(f'v_cndmask_b32 v{t+3}, v{t+8}, v{t+3}, vcc')
        a.e(f'v_cmp_gt_u32 vcc, 80, v0')
        a.e('s_and_saveexec_b64 s[76:77], vcc')
        lab = a.newlabel('Lcz')
        a.e(f's_cbranch_execz {lab}')
        a.e(f'ds_write_b128 v{t+3}, {v(Z,4)}', tag='hw')
        a.label(lab)
        a.e('s_mov_b64 exec, s[76:77]')
    def prep(self, a):
        def f(a):
            t = 8
            a.e(f'v_lshlrev_b32 v{t}, 4, v{V_LANE}')
            a.wait_vm('kvl')
            stamp(a, 'kv_arr')
            for j in range(8):
                a.e(f'ds_write_b128 v{t}, {ac(224+4*j,4)} offset:{KV0 + (j//4)*KV_CH + 512 + (j%4)*1024}', tag='hw')
        on_wave0(a, f)
    def setup_main(self, a):
        L = V_LANE; VA_, VB_ = 2, 3; t = 4
        a.e(f's_lshr_b32 s76, s{S_WAVE}, 1'); a.e(f's_and_b32 s77, s{S_WAVE}, 1')
        a.e(f'v_bfe_u32 v{t}, v{L}, 2, 2'); a.e(f'v_mul_u32_u24 v{VA_}, 4160, v{t}')
        a.e(f'v_and_b32 v{t}, 3, v{L}'); a.e(f'v_lshl_add_u32 v{VA_}, v{t}, 3, v{VA_}')
        a.e(f'v_lshrrev_b32 v{t}, 4, v{L}'); a.e(f'v_lshlrev_b32 v{t}, 4, v{t}'); a.e(f'v_sub_u32 v{VA_}, v{VA_}, v{t}')
        a.e(f's_mul_i32 s78, s76, {HC_CH}'); a.e(f's_lshl_b32 s79, s77, 8'); a.e('s_add_u32 s78, s78, s79'); a.e(f's_add_u32 s78, s78, {HC0 + 56}')
        a.e(f'v_add_u32 v{VA_}, s78, v{VA_}')
        a.e(f'v_and_b32 v{t}, 15, v{L}'); a.e(f'v_lshlrev_b32 v{VB_}, 5, v{t}')
        a.e(f'v_lshrrev_b32 v{t}, 4, v{L}'); a.e(f'v_lshl_add_u32 v{VB_}, v{t}, 4, v{VB_}')
        a.e(f's_mul_i32 s78, s76, {KV_CH}'); a.e(f's_lshl_b32 s79, s77, 8'); a.e('s_sub_u32 s78, s78, s79'); a.e(f's_add_u32 s78, s78, {KV0 + 32 + 256}')
        a.e(f'v_add_u32 v{VB_}, s78, v{VB_}')
        for i in range(16): a.e(f'v_mov_b64 {v(self.ACC+2*i,2)}, 0')
    def main(self, a, hooks, vm_items):
        VA_, VB_ = 2, 3
        def rd(it, p):
            FA = self.FA + 64*p; res = []
            for j in range(8):
                res.append((f'ds_read_b64_tr_b16 {v(FA+4*j,2)}, v{VA_} offset:{512*j + 64*it + 8}', ('cA', it, j)))
                res.append((f'ds_read_b64_tr_b16 {v(FA+4*j+2,2)}, v{VA_} offset:{512*j + 64*it}', ('cA', it, j)))
                res.append((f'ds_read_b128 {v(FA+32+4*j,4)}, v{VB_} offset:{512*j + (3-it)*64}', ('cB', it, j)))
            return res
        for tx, tg in rd(0, 0): a.e(tx, tag=tg)
        for it in range(4):
            p = it & 1; FA = self.FA + 64*p
            fill = rd(it+1, p ^ 1) if it < 3 else []
            vmi = list(vm_items.get(it, lambda: [])())
            pairs = [(j1, d) for j1 in range(8) for d in range(8) if j1 + d <= 7]
            pairs.sort(key=lambda x: (max(x), x))
            seen = set(); nf = len(fill); k = 0; nv = len(vmi); kv = 0
            for idx, (j1, d) in enumerate(pairs):
                need = []
                if ('cA', it, j1) not in seen: need.append(('cA', it, j1)); seen.add(('cA', it, j1))
                if ('cB', it, d) not in seen: need.append(('cB', it, d)); seen.add(('cB', it, d))
                if need: a.wait_lg(need)
                q = j1 + d
                a.e(f'v_mfma_f32_16x16x32_bf16 {v(self.ACC+4*q,4)}, {v(FA+4*j1,4)}, {v(FA+32+4*d,4)}, {v(self.ACC+4*q,4)}')
                want = ((idx + 1) * nf) // 30
                while k < min(want, nf):
                    tx, tg = fill[k]; a.e(tx, tag=tg); k += 1
                wantv = ((idx + 1) * nv) // 36
                while kv < wantv:
                    emit_items(a, [vmi[kv]]); kv += 1
                if (it, idx) in hooks: hooks[(it, idx)](a)
            while k < nf:
                tx, tg = fill[k]; a.e(tx, tag=tg); k += 1
    def epilogue(self, a, units=(), pre_bar=None, early_units=False):
        L = V_LANE; t = 4
        a.e(f'v_lshlrev_b32 v{t}, 4, v{L}')
        a.e(f's_lshl_b32 s78, s{S_WAVE}, 12'); a.e(f's_add_u32 s78, s78, {RED0}'); a.e(f'v_add_u32 v{t+1}, s78, v{t}')
        a.e(f's_xor_b32 s79, s{S_WAVE}, 1'); a.e('s_lshl_b32 s79, s79, 12'); a.e(f's_add_u32 s79, s79, {RED0}'); a.e(f'v_add_u32 v{t+2}, s79, v{t}')
        lab1 = a.newlabel('Lce'); lab2 = a.newlabel('Lce'); K = 40
        a.e('s_cmp_eq_u32 s77, 0'); a.e(f's_cbranch_scc0 {lab1}')
        for j in range(4): a.e(f'ds_write_b128 v{t+1}, {v(self.ACC+16+4*j,4)} offset:{j*1024}')
        for j in range(8): a.e(f'v_mov_b64 {v(K+2*j,2)}, {v(self.ACC+2*j,2)}')
        a.e(f's_branch {lab2}')
        a.label(lab1)
        a.e('s_nop 7')
        for j in range(4): a.e(f'ds_write_b128 v{t+1}, {v(self.ACC+4*j,4)} offset:{j*1024}')
        for j in range(8): a.e(f'v_mov_b64 {v(K+2*j,2)}, {v(self.ACC+16+2*j,2)}')
        a.label(lab2)
        if pre_bar: pre_bar(a)
        a.e('s_waitcnt lgkmcnt(0)')
        a.e('s_barrier')
        P, KVv, U, OO = 184, 200, 208, 220
        for j in range(4): a.e(f'ds_read_b128 {v(P+4*j,4)}, v{t+2} offset:{j*1024}', tag='red')
        a.e(f'v_and_b32 v{t}, 15, v{L}'); a.e(f'v_lshlrev_b32 v{t}, 5, v{t}'); a.e(f'v_lshrrev_b32 v{t+1}, 4, v{L}'); a.e(f'v_lshl_add_u32 v{t}, v{t+1}, 3, v{t}')
        a.e(f's_mul_i32 s78, s76, {KV_CH}'); a.e('s_lshl_b32 s79, s77, 11'); a.e('s_add_u32 s78, s78, s79'); a.e(f's_add_u32 s78, s78, {KV0+512}')
        a.e(f'v_add_u32 v{t+1}, s78, v{t}')
        for j in range(4): a.e(f'ds_read_b64 {v(KVv+2*j,2)}, v{t+1} offset:{j*512}', tag='kvv')
        a.e('s_lshl_b32 s78, s75, 16'); a.e('s_and_b32 s79, s75, 0xffff0000'); a.e('s_cmp_eq_u32 s76, 0'); a.e('s_cselect_b32 s78, s78, s79')
        a.e('s_lshl_b32 s79, s2, 1'); a.e('s_add_u32 s79, s79, s76'); a.e('s_lshl_b32 s79, s79, 12'); a.e('s_lshl_b32 s80, s77, 11'); a.e('s_add_u32 s79, s79, s80')
        a.e(f's_add_u32 s79, s79, {WS_Y2T}')
        sp = Spreader(units, 5 if early_units else 9)
        sp.slot(a); sp.slot(a); sp.slot(a)
        a.wait_lg('red')
        for j in range(8): a.e(f'v_pk_add_f32 {v(K+2*j,2)}, {v(K+2*j,2)}, {v(P+2*j,2)}')
        sp.slot(a); sp.slot(a)
        if early_units: sp.flush(a)
        a.wait_lg('kvv')
        for j in range(4):
            for e in range(2):
                unpack_lo(a, U+2*e, KVv+2*j+e); unpack_hi(a, U+2*e+1, KVv+2*j+e)
            for e in range(4): a.e(f'v_fmac_f32 v{K+4*j+e}, s78, v{U+e}')
            sp.slot(a)
            O = OO + 2*j
            a.e(f'v_cvt_pk_bf16_f32 v{O}, v{K+4*j}, v{K+4*j+1}'); a.e(f'v_cvt_pk_bf16_f32 v{O+1}, v{K+4*j+2}, v{K+4*j+3}')
            a.e(f'buffer_store_dwordx2 {v(O,2)}, v{t}, {sq(R_WS)}, s79 offen offset:{j*512} {SC}', tag='yst')
        sp.flush(a)
    def publish(self, a, vt):
        a.e('s_lshr_b32 s78, s2, 5'); a.e('s_lshl_b32 s78, s78, 1'); a.e('s_add_u32 s78, s78, s77'); a.e('s_lshl_b32 s78, s78, 6')
        a.e('s_and_b32 s45, s2, 31'); a.e('s_lshl_b32 s45, s45, 1'); a.e('s_add_u32 s78, s78, s45'); a.e('s_add_u32 s78, s78, s76')
        a.e(f's_lshl_b32 s78, s78, {FS}'); a.e(f's_add_u32 s78, s78, {FY}')
        publish(a, ['s78'], vt=vt)

Y2L = 0; RED2 = 8192
class Gemm2:
    ACC, RB, NR, E = 8, 72, 14, 184
    VW0, VW1 = 240, 241
    VH0, VH1 = 218, 219
    def decode(self, a):
        a.e('s_and_b32 s81, s2, 7'); a.e('s_lshl_b32 s81, s81, 8'); a.e('s_lshr_b32 s82, s2, 3'); a.e('s_and_b32 s83, s82, 3'); a.e('s_lshl_b32 s84, s83, 6'); a.e('s_add_u32 s81, s81, s84')
        a.e('s_lshr_b32 s82, s82, 2')
        a.e('s_lshl_b32 s83, s83, 1'); a.e('s_add_u32 s84, s82, s83')
        a.e('s_cmp_ge_u32 s84, 7'); a.e('s_cselect_b32 s83, 7, 0'); a.e('s_sub_u32 s84, s84, s83')
        a.e('s_cmp_ge_u32 s84, 7'); a.e('s_cselect_b32 s83, 7, 0'); a.e('s_sub_u32 s84, s84, s83')
        if not Opt.rot2: a.e('s_mov_b32 s84, 0')
        a.e('s_lshl_b32 s84, s84, 12'); a.e('s_mov_b32 s86, s84')
        a.e('s_lshl_b32 s82, s82, 6')
        a.e('s_lshr_b32 s83, s82, 5'); a.e('s_mul_i32 s83, s83, 112'); a.e(f's_mul_i32 s45, s{S_WAVE}, 28'); a.e('s_add_u32 s83, s83, s45')
        a.e('s_lshl_b32 s83, s83, 10'); a.e(f's_add_u32 s83, s83, {WS_W2F}')
        a.e('s_lshr_b32 s85, s81, 5'); a.e('s_mul_i32 s85, s85, 112'); a.e('s_add_u32 s85, s85, s45')
        a.e('s_lshl_b32 s85, s85, 10'); a.e(f's_add_u32 s85, s85, {WS_H}')
    def wflag_addr(self, a, vd):
        a.e(f'v_and_b32 v{vd}, 31, v{V_LANE}'); a.e(f'v_lshlrev_b32 v{vd}, {FS}, v{vd}'); a.e(f'v_add_u32 v{vd}, {FW}, v{vd}')
    def touch_items(self, vt, s_ok):
        return [[('s_lshl_b32 s45, s62, 2', None), (f's_add_u32 s45, s45, s{S_WAVE}', None), ('s_lshl_b32 s45, s45, 13', None), (f's_add_u32 s45, s45, {WS_W2F}', None),
                 ('s_and_b32 s44, s2, 1', None), (f's_mul_i32 s44, s44, {8*112*1024}', None), ('s_add_u32 s45, s45, s44', None),
                 (f's_cmp_eq_u32 s{s_ok}, 1', None), ('s_cselect_b32 s44, 0, 0x20000000', None), (f'v_lshlrev_b32 v{vt}, 7, v{V_LANE}', None), (f'v_add_u32 v{vt}, s44, v{vt}', None),
                 (f'buffer_load_dword v{vt-5}, v{vt}, {sq(R_WS)}, s45 offen {SC}', 'touch')]]
    def w_setup(self, a):
        a.e(f'v_lshlrev_b32 v{self.VW0}, 4, v{V_LANE}'); a.e(f'v_add_u32 v{self.VW1}, {112*1024}, v{self.VW0}')
    def adv(self, cur):
        return [(f's_add_u32 s{cur}, s{cur}, 4096', None), (f's_cmp_eq_u32 s{cur}, {28*1024}', None), (f's_cselect_b32 s{cur}, 0, s{cur}', None)]
    def w_items(self, lo, hi):
        items = []
        for i in range(lo, hi):
            head = [('s_add_u32 s87, s83, s84', None)] + self.adv(84) if i % 4 == 0 else []
            items.append(head + [(f'buffer_load_dwordx4 {ac((i*2)*4,4)}, v{self.VW0}, {sq(R_WS)}, s87 offen offset:{(i%4)*1024} {SC}', ('w2', i))])
            items.append([(f'buffer_load_dwordx4 {ac((i*2+1)*4,4)}, v{self.VW1}, {sq(R_WS)}, s87 offen offset:{(i%4)*1024} {SC}', ('w2', i))])
        return items
    def hflag_addr(self, a, vd):
        a.e('s_lshr_b32 s45, s81, 7'); a.e(f's_lshl_b32 s45, s45, {6+FS}'); a.e(f's_add_u32 s45, s45, {FH}')
        a.e('s_bfe_u32 s89, s81, 0x10006'); a.e(f's_lshl_b32 s89, s89, {1+FS}'); a.e('s_add_u32 s45, s45, s89')
        a.e(f'v_lshrrev_b32 v{vd}, 1, v{V_LANE}'); a.e(f'v_min_u32 v{vd}, 13, v{vd}'); a.e(f'v_lshlrev_b32 v{vd}, 2, v{vd}'); a.e(f'v_and_b32 v{vd+1}, 1, v{V_LANE}'); a.e(f'v_add_u32 v{vd}, v{vd}, v{vd+1}')
        a.e(f'v_lshl_add_u32 v{vd}, v{vd}, {FS}, s45')
    def yflag_addr(self, a, vd):
        a.e('s_lshr_b32 s45, s82, 6'); a.e('s_lshl_b32 s45, s45, 1'); a.e('s_lshr_b32 s89, s81, 10'); a.e('s_add_u32 s45, s45, s89'); a.e(f's_lshl_b32 s45, s45, {6+FS}'); a.e(f's_add_u32 s45, s45, {FY}')
        a.e(f'v_lshl_add_u32 v{vd}, v{V_LANE}, {FS}, s45')
    def h_items(self, i):
        r = self.rb(i)
        head = [('s_add_u32 s88, s85, s86', None)] + self.adv(86) if i % 4 == 0 else []
        return [head + [(f'buffer_load_dwordx4 {v(r,4)}, v{self.VH0}, {sq(R_WS)}, s88 offen offset:{(i%4)*1024} {SC}', ('h', i))],
                [(f'buffer_load_dwordx4 {v(r+4,4)}, v{self.VH1}, {sq(R_WS)}, s88 offen offset:{(i%4)*1024} {SC}', ('h', i))]]
    def rb(self, i): return self.RB + (i % self.NR)*8
    def h_setup(self, a):
        a.e(f'v_lshlrev_b32 v{self.VH0}, 4, v{V_LANE}'); a.e(f'v_add_u32 v{self.VH1}, {112*1024}, v{self.VH0}')
    def start(self, a):
        for i in range(self.NR): emit_items(a, self.h_items(i))
    def init_acc(self, a):
        for i in range(32): a.e(f'v_mov_b64 {v(self.ACC+2*i,2)}, 0')
    def main(self, a, hooks, next_item=None):
        a.comment('gemm2: main')
        j = 2*self.NR if next_item is None else next_item
        allitems = [it for i in range(28) for it in self.h_items(i)]
        for kl in range(28):
            a.wait_vm([('h', kl), ('w2', kl)])
            r = self.rb(kl)
            n = 0
            for aa in range(2):
                for bb in range(2):
                    acc = self.ACC + (aa*2+bb)*16
                    a.e(f'v_mfma_f32_32x32x16_bf16 {v(acc,16)}, {ac((kl*2+aa)*4,4)}, {v(r+4*bb,4)}, {v(acc,16)}')
                    n += 1
                    if j < 56:
                        prev = j//2 - self.NR
                        ok = prev < kl or (prev == kl and n >= (3 if (j & 1) == 0 else 4))
                        behind = j//2 < kl + self.NR - 1
                        if ok and (behind or n >= 3):
                            emit_items(a, [allitems[j]]); j += 1
            if Opt.kst and kl in (0, 3, 7, 13, 14, 20, 27): stamp(a, f'k{kl}')
            if kl in hooks: hooks[kl](a)
        assert j == 56, j
    VXO, VSO = 253, 252
    EX, ES = 242, 250
    B2L = 157696
    X32, XN = 184, 200
    def b2_items(self, vt):
        return [srd_items(P_B2, D*2) + [(f'v_lshlrev_b32 v{vt}, 4, v{V_LANE}', None), (f's_mov_b32 m0, {self.B2L}', None), ('s_nop 0', None), (f'buffer_load_dwordx4 v{vt}, {sq(R_T)}, 0 offen lds', 'b2')]]
    def epi_addr(self, a):
        L = V_LANE
        a.e(f's_lshr_b32 s51, s{S_WAVE}, 1'); a.e('s_lshl_b32 s51, s51, 5'); a.e('s_add_u32 s51, s51, s81')
        a.e(f'v_and_b32 v{self.VSO}, 31, v{L}'); a.e(f'v_add_u32 v{self.VSO}, s51, v{self.VSO}')
        a.e(f's_and_b32 s51, s{S_WAVE}, 1'); a.e('s_lshl_b32 s51, s51, 5'); a.e('s_add_u32 s51, s51, s82')
        a.e(f'v_lshrrev_b32 v254, 5, v{L}'); a.e('v_lshlrev_b32 v254, 2, v254'); a.e('v_add_u32 v254, s51, v254')
        a.e('v_lshlrev_b32 v254, 1, v254')
        a.e(f'v_lshlrev_b32 v{self.VXO}, 10, v{self.VSO}'); a.e(f'v_add_u32 v{self.VXO}, v{self.VXO}, v254')
        a.e(f'v_and_b32 v254, 1, v{self.VSO}'); a.e(f'v_lshrrev_b32 v{self.VSO}, 1, v{self.VSO}'); a.e(f'v_lshlrev_b32 v{self.VSO}, 7, v{self.VSO}')
        a.e(f'v_lshl_add_u32 v{self.VSO}, v254, 3, v{self.VSO}'); a.e(f'v_add_u32 v{self.VSO}, {WS_ST}, v{self.VSO}')
    def epi_items(self):
        R = sq(R_T)
        it = [[(f'buffer_load_dwordx2 {v(self.EX+2*q,2)}, v{self.VXO}, {R}, 0 offen offset:{q*16}', 'ex')] for q in range(4)]
        it[0] = srd_items(P_Q, S*D*2) + it[0]
        return it + [[(f'buffer_load_dwordx2 {v(self.ES,2)}, v{self.VSO}, {sq(R_WS)}, 0 offen {SC}', 'es')]]
    def pre_epi(self, a):
        T = 220; L = V_LANE
        a.e(f's_and_b32 s89, s{S_WAVE}, 1'); a.e('s_lshl_b32 s89, s89, 5'); a.e('s_add_u32 s89, s89, s82'); a.e('s_lshl_b32 s89, s89, 1'); a.e(f's_add_u32 s89, s89, {self.B2L}')
        a.e(f'v_lshrrev_b32 v{T+19}, 5, v{L}'); a.e(f'v_lshlrev_b32 v{T+19}, 3, v{T+19}'); a.e(f'v_add_u32 v{T+19}, s89, v{T+19}')
        for q in range(4): a.e(f'ds_read_b64 {v(T+8+2*q,2)}, v{T+19} offset:{q*16}', tag='b2r')
        a.wait_vm(['ex', 'es'])
        poll_check(a, [(self.VSO, self.ES, 2, self.ES+1)], tag='es')
        unpack_hi(a, T+17, self.ES); unpack_lo(a, T+16, self.ES)
        a.e(f'v_rcp_f32 v{T+17}, v{T+17}')
        for i in range(8):
            unpack_lo(a, self.X32+2*i, self.EX+i); unpack_hi(a, self.X32+2*i+1, self.EX+i)
        a.e(f'v_mul_f32 v{T+18}, v{T+16}, v{T+17}'); a.e(f'v_xor_b32 v{T+18}, 0x80000000, v{T+18}')
        for i in range(16): a.e(f'v_fma_f32 v{self.XN+i}, v{self.X32+i}, v{T+17}, v{T+18}')
        a.wait_lg('b2r')
        for j in range(4):
            aa, bb = j & 1, j >> 1
            acc = self.ACC + (aa*2+bb)*16
            nx = a.newlabel('Lb2')
            a.e(f's_cmp_lg_u32 s{S_WAVE}, {j}'); a.e(f's_cbranch_scc1 {nx}')
            for i in range(8):
                unpack_lo(a, acc+2*i, T+8+i); unpack_hi(a, acc+2*i+1, T+8+i)
            a.label(nx)
    YR = 220
    def load_y2(self, a):
        L = V_LANE
        a.e(f'v_lshrrev_b32 v6, 3, v{L}'); a.e('v_add_u32 v6, s82, v6'); a.e('v_lshlrev_b32 v6, 12, v6')
        a.e(f'v_and_b32 v7, 7, v{L}'); a.e('v_lshl_add_u32 v6, v7, 4, v6')
        a.e('s_lshl_b32 s89, s81, 1'); a.e(f's_add_u32 s89, s89, {WS_Y2T}')
        for j in range(8):
            a.e(f'buffer_load_dwordx4 {v(self.YR+4*j,4)}, v6, {sq(R_WS)}, s89 offen {SC}', tag='ey')
            if j < 7: a.e(f's_add_u32 s89, s89, {8*4096}')
    def epilogue(self, a):
        L = V_LANE; E = self.E
        a.e('s_barrier')
        R = 72
        a.e(f'v_lshlrev_b32 v6, 4, v{L}'); a.e(f's_lshl_b32 s89, s{S_WAVE}, 12'); a.e(f'v_add_u32 v7, s89, v6')
        for j in range(4):
            aa, bb = j & 1, j >> 1
            acc = self.ACC + (aa*2+bb)*16
            own = a.newlabel('Lown'); nx = a.newlabel('Lnx')
            a.e(f's_cmp_eq_u32 s{S_WAVE}, {j}'); a.e(f's_cbranch_scc1 {own}')
            for qd in range(4):
                a.e(f'ds_write_b128 v7, {v(acc+4*qd,4)} offset:{RED2 + j*16384 + qd*1024}')
            a.e(f's_branch {nx}')
            a.label(own)
            if j == 0: a.e('s_nop 7')
            for i in range(8): a.e(f'v_mov_b64 {v(R+2*i,2)}, {v(acc+2*i,2)}')
            a.label(nx)
        def f(a):
            a.wait_vm('ey')
            for j in range(8): a.e(f'ds_write_b128 v6, {v(self.YR+4*j,4)} offset:{Y2L + j*1024}')
        on_wave0(a, f)
        a.e('s_waitcnt lgkmcnt(0)')
        a.e('s_barrier')
        for k in range(1, 4):
            a.e(f's_add_u32 s89, s{S_WAVE}, {k}'); a.e('s_and_b32 s89, s89, 3'); a.e('s_lshl_b32 s89, s89, 12')
            a.e(f's_lshl_b32 s45, s{S_WAVE}, 14'); a.e('s_add_u32 s89, s89, s45'); a.e(f'v_add_u32 v7, s89, v6')
            for qd in range(4):
                a.e(f'ds_read_b128 {v(R+k*16+4*qd,4)}, v7 offset:{RED2 + qd*1024}', tag=('rr', k))
        Y = 136
        a.e(f's_and_b32 s79, s{S_WAVE}, 1'); a.e(f's_lshr_b32 s80, s{S_WAVE}, 1')
        a.e(f'v_lshrrev_b32 v6, 5, v{L}'); a.e('v_lshlrev_b32 v6, 2, v6'); a.e(f'v_bfe_u32 v7, v{L}, 2, 2'); a.e('v_add_u32 v6, v6, v7')
        a.e('s_lshl_b32 s89, s79, 5'); a.e('v_add_u32 v6, s89, v6'); a.e('v_lshlrev_b32 v6, 7, v6')
        a.e(f'v_bfe_u32 v7, v{L}, 4, 1'); a.e('v_lshl_add_u32 v6, v7, 5, v6'); a.e(f'v_and_b32 v7, 3, v{L}'); a.e('v_lshl_add_u32 v6, v7, 3, v6')
        a.e('s_lshl_b32 s89, s80, 6'); a.e('v_add_u32 v6, s89, v6')
        for q in range(4): a.e(f'ds_read_b64_tr_b16 {v(Y+2*q,2)}, v6 offset:{Y2L + q*1024}', tag='yt')
        srd(a, R_T, P_OUT, S*D*2)
        a.wait_lg(('rr', 1))
        for i in range(8): a.e(f'v_pk_add_f32 {v(R+2*i,2)}, {v(R+2*i,2)}, {v(R+16+2*i,2)}')
        a.wait_lg(('rr', 3))
        for i in range(8): a.e(f'v_pk_add_f32 {v(R+32+2*i,2)}, {v(R+32+2*i,2)}, {v(R+48+2*i,2)}')
        for i in range(8): a.e(f'v_pk_add_f32 {v(R+2*i,2)}, {v(R+2*i,2)}, {v(R+32+2*i,2)}')
        a.wait_lg('yt')
        G_, S_ = 144, 160
        for i in range(16): a.e(f'v_mul_f32 v{G_+i}, 0xbfb8aa3b, v{R+i}')
        for i in range(8):
            unpack_lo(a, S_+2*i, Y+i); unpack_hi(a, S_+2*i+1, Y+i)
        for i in range(16): a.e(f'v_exp_f32 v{G_+i}, v{G_+i}')
        for i in range(8): a.e(f'v_pk_mul_f32 {v(S_+2*i,2)}, {v(S_+2*i,2)}, {v(self.XN+2*i,2)}')
        for i in range(16): a.e(f'v_add_f32 v{G_+i}, 1.0, v{G_+i}')
        for i in range(16): a.e(f'v_rcp_f32 v{G_+i}, v{G_+i}')
        for i in range(8): a.e(f'v_pk_mul_f32 {v(S_+2*i,2)}, {v(S_+2*i,2)}, {v(R+2*i,2)}')
        for q in range(4):
            for i in (2*q, 2*q+1): a.e(f'v_pk_fma_f32 {v(S_+2*i,2)}, {v(S_+2*i,2)}, {v(G_+2*i,2)}, {v(self.X32+2*i,2)}')
            O = 176 + 2*q
            a.e(f'v_cvt_pk_bf16_f32 v{O}, v{S_+4*q}, v{S_+4*q+1}'); a.e(f'v_cvt_pk_bf16_f32 v{O+1}, v{S_+4*q+2}, v{S_+4*q+3}')
            a.e(f'buffer_store_dwordx2 {v(O,2)}, v{self.VXO}, {sq(R_T)}, 0 offen offset:{q*16}', tag='ost')

def fused_body(a):
    end = 'Lend'
    a.e('s_cmp_ge_u32 s2, 256'); a.e(f's_cbranch_scc1 {end}')
    a.e('s_load_dwordx16 s[4:19], s[0:1], 0'); a.e('s_load_dwordx8 s[20:27], s[0:1], 64'); a.e('s_load_dwordx4 s[28:31], s[0:1], 96')
    a.e(f'v_and_b32 v{V_LANE}, 63, v0'); a.e('v_lshrrev_b32 v2, 6, v0'); a.e('s_nop 0'); a.e(f'v_readfirstlane_b32 s{S_WAVE}, v2')
    if Opt.stamps: a.e('v_mov_b32 v255, 0')
    stamp(a, 'start'); stamp(a, 'cyc0', True)
    pre, g1, cv, g2 = Pre(), Gemm1(), Conv(), Gemm2()
    if Opt.codepf:
        lab = a.newlabel('Lcpf')
        a.e('s_and_b32 s90, s2, 0x38'); a.e('s_cmp_lg_u32 s90, 0'); a.e(f's_cbranch_scc1 {lab}')
        a.e('s_getpc_b64 s[90:91]')
        a.label('Lpcbase')
        a.e('v_lshlrev_b32 v63, 7, v0')
        a.e('v_min_u32 v63, Lend-Lpcbase, v63')
        a.e('global_load_dword v63, v63, s[90:91]', tag='cpf', optional=True)
        a.label(lab)
    idle = 'Lidle'; join = 'Ljoin'
    if Opt.lateset:
        g1.decode(a)
        a.e('s_waitcnt lgkmcnt(0)')
        stamp(a, 'kernarg')
        srd(a, R_WS, P_WS, WS_SIZE)
        pre.stats_addr(a); pre.issue_stats(a)
        a.e('s_cmp_ge_u32 s62, 28'); a.e(f's_cbranch_scc1 {idle}')
        saved_pre = (list(a.vm), list(a.lg))
        g1.setup(a); g1.srds(a)
        pre.setup(a); emit_items(a, pre.items())
        emit_items(a, g1.dma_items(0)); emit_items(a, g1.dma_items(1))
        g2.decode(a); cv.filter_setup(a); g1.b1_setup(a)
    else:
        g1.decode(a); pre.stats_addr(a); g1.setup(a); pre.setup(a); g2.decode(a); cv.filter_setup(a); g1.b1_setup(a)
        a.e('s_waitcnt lgkmcnt(0)')
        stamp(a, 'kernarg')
        srd(a, R_WS, P_WS, WS_SIZE)
        a.e('s_cmp_ge_u32 s62, 28'); a.e(f's_cbranch_scc1 {idle}')
        saved_pre = (list(a.vm), list(a.lg))
        g1.srds(a)
        pre.issue_stats(a)
        emit_items(a, pre.items())
        emit_items(a, g1.dma_items(0)); emit_items(a, g1.dma_items(1))
    cv.d_load(a)
    g1.setup2(a)
    emit_items(a, g1.dma_items(2))
    stamp(a, 'issued')
    pre.stats(a, store=False)
    stamp(a, 'stats_done')
    emit_items(a, g1.dma_items(3))
    if Opt.early == 2:
        pre.compute(a)
        pre.store_stats(a)
        a.e('s_mov_b32 s99, 0')
        stamp(a, 'pre_done')
    VS, VFK, VFW = 32, 34, 35
    S_PUB, S_WOK = 100, 101
    def hpre(a):
        pre.compute(a); stamp(a, 'pre_done')
    def hpay(a): cv.payload(a, 188)
    def hspoll(a):
        g1.stats_addr(a, VS)
        poll_issue(a, VS, g1.ST, 2, tag='spoll'); poll_issue(a, VS+1, g1.ST+2, 2, tag='spoll')
    def hpoll(a):
        def f(a):
            cv.flag_addr(a, VFK); poll_issue(a, VFK, 36)
        on_wave0(a, f)
    def hw0(a):
        wcheck(a); g2.w_setup(a)
    def hwpoll(a):
        g2.wflag_addr(a, VFW); poll_issue(a, VFW, 38, 1, tag='wpoll')
    def hweval(a):
        a.wait_vm('wpoll')
        a.e(f'v_cmp_ne_u32 vcc, s{S_TAG}, v38'); a.e('s_cmp_eq_u64 vcc, 0'); a.e(f's_cselect_b32 s{S_WOK}, 1, 0')
    def wcheck(a):
        lab = a.newlabel('Lwk')
        a.e(f's_cmp_eq_u32 s{S_WOK}, 1'); a.e(f's_cbranch_scc1 {lab}')
        saved = (list(a.vm), list(a.lg))
        a.opt_depth = getattr(a, 'opt_depth', 0) + 1
        poll_issue(a, VFW, 38, 1, tag='wpoll2')
        poll_check(a, [(VFW, 38, 1, 38)], tag='wpoll2')
        a.opt_depth -= 1; a._issued = []
        a.vm, a.lg = saved
        a.label(lab)
    S_KOK = 96
    def hkv_try(a):
        def f(a):
            lab = a.newlabel('Lkt')
            a.wait_vm('poll')
            a.e(f's_mov_b32 s{S_KOK}, 0')
            a.e(f'v_cmp_ne_u32 vcc, s{S_TAG}, v36'); a.e('s_cmp_eq_u64 vcc, 0'); a.e(f's_cbranch_scc0 {lab}')
            a.e(f's_mov_b32 s{S_KOK}, 1')
            stamp(a, 'kv_early')
            cv.load_kv(a, 37)
            a.label(lab)
        on_wave0(a, f)
    def hkv(a):
        def f(a):
            lab = a.newlabel('Lkv')
            a.e(f's_cmp_eq_u32 s{S_KOK}, 1'); a.e(f's_cbranch_scc1 {lab}')
            poll_issue(a, VFK, 36, tag='poll2')
            poll_check(a, [(VFK, 36, 1, 36)], tag='poll2')
            cv.load_kv(a, 37, tag='kvl2')
            a.e('s_waitcnt vmcnt(0)')
            a.label(lab)
        on_wave0(a, f)
        stamp(a, 'flags_ok')
    def hmid(a):
        stamp(a, 'epi_comp')
    S_PUB2 = 99
    def hstore(a):
        pre.store_stats(a); pre.store_kv(a)
        a.e(f's_mov_b32 s{S_PUB2}, 0')
    def trypre(a, block=False):
        lab = a.newlabel('Ltq')
        a.e(f's_cmp_lg_u32 s{S_PUB2}, 0'); a.e(f's_cbranch_scc1 {lab}')
        saved = (list(a.vm), list(a.lg))
        idx = [i for i, (t, c) in enumerate(a.vm) if t == 'prest']
        if idx:
            n = len([x for x in a.vm[idx[-1]+1:] if not x[1].endswith('?')])
            if block: a.e(f's_waitcnt vmcnt({n})')
            else:
                a.e('s_getreg_b32 s90, hwreg(HW_REG_IB_STS)'); a.e('s_and_b32 s91, s90, 15'); a.e('s_lshr_b32 s90, s90, 18'); a.e('s_and_b32 s90, s90, 0x30'); a.e('s_or_b32 s90, s90, s91')
                a.e(f's_cmp_gt_u32 s90, {n}'); a.e(f's_cbranch_scc1 {lab}')
        a.vm, a.lg = saved
        pre.publish(a, 56, optional=True)
        stamp(a, 'fk_pub')
        a.e(f's_mov_b32 s{S_PUB2}, 1')
        a.label(lab)
    def hpub(a):
        a.wait_vm('prest'); pre.publish(a, 42)
    def merge(*lists):
        lists = [list(l) for l in lists if l]
        tot = [sum(ucost(u) for u in l) or 1 for l in lists]; done = [0.0]*len(lists); out = []
        while any(lists):
            k = min((i for i in range(len(lists)) if lists[i]), key=lambda i: (done[i] + 0.5*ucost(lists[i][0])) / tot[i])
            u = lists[k].pop(0); done[k] += ucost(u); out.append(u)
        return out
    def split(units, n):
        tot = sum(ucost(u) for u in units); parts = [[] for _ in range(n)]; acc = 0.0
        for u in units:
            parts[min(n-1, int(acc * n / tot))].append(u); acc += ucost(u)
        return parts
    D = lambda st: item_units(g1.dma_items(st))
    C = lambda f: [[('call', f)]]
    prec = record(a, lambda r: pre.compute(r)) + C(lambda a: a.e(f's_mov_b32 s{S_PUB2}, 0'))
    pp = split(prec, 2)
    NW1 = Opt.nw1
    if Opt.early == 4:
        n3 = NW1 // 3
        fill = {
        0: lambda: D(2) + D(3),
        1: lambda: merge(D(4) + item_units(cv.filter_items()) + item_units(g1.b1_items()), pp[0]),
        2: lambda: merge(D(5), pp[1]) + C(pre.store_stats),
        3: lambda: D(6) + C(hwpoll),
        4: lambda: D(7) + C(trypre),
        5: lambda: C(hweval) + C(hw0) + merge(item_units(g2.w_items(0, n3)), record(a, lambda r: cv.payload(r, 188))) + C(trypre),
        6: lambda: C(hspoll) + item_units(g2.w_items(n3, 2*n3)) + C(trypre),
        7: lambda: C(hpoll) + merge(item_units(g2.w_items(2*n3, NW1)), record(a, lambda r: g1.b1_unpack(r))) + C(trypre),
        }
    elif Opt.early >= 2:
        n3 = NW1 // 3
        e3 = Opt.early == 3
        fill = {
        0: lambda: (merge(pp[0], item_units(cv.filter_items()) + item_units(g1.b1_items())) if e3 else item_units(cv.filter_items()) + item_units(g1.b1_items())),
        1: lambda: (merge(D(4), pp[1]) + C(pre.store_stats) if e3 else D(4)),
        2: lambda: D(5),
        3: lambda: D(6) + C(hwpoll) + C(trypre),
        4: lambda: D(7) + C(trypre),
        5: lambda: C(hweval) + C(hw0) + merge(item_units(g2.w_items(0, n3)), record(a, lambda r: cv.payload(r, 188))) + C(trypre),
        6: lambda: C(hspoll) + record(a, lambda r: g2.epi_addr(r)) + item_units(g2.epi_items()) + item_units(g2.w_items(n3, 2*n3)) + C(trypre),
        7: lambda: C(hpoll) + merge(item_units(g2.w_items(2*n3, NW1)), record(a, lambda r: g1.b1_unpack(r))) + C(trypre),
        }
    elif Opt.early:
        fill = {
        0: lambda: D(3) + item_units(cv.filter_items()) + item_units(g1.b1_items()),
        1: lambda: D(4),
        2: lambda: merge(D(5), pp[0]),
        3: lambda: merge(D(6), pp[1]),
        4: lambda: D(7) + C(pre.store_stats) + C(hwpoll),
        5: lambda: record(a, lambda r: cv.payload(r, 188)) + C(trypre),
        6: lambda: C(trypre) + C(hspoll) + C(hweval) + C(hw0) + item_units(g2.w_items(0, NW1//2)) + C(trypre),
        7: lambda: C(hpoll) + merge(item_units(g2.w_items(NW1//2, NW1)), record(a, lambda r: g1.b1_unpack(r))) + C(trypre),
        }
    else:
        fill = {
        0: lambda: D(3) + item_units(pre.items()) + item_units(cv.filter_items()) + item_units(g1.b1_items()),
        1: lambda: D(4),
        2: lambda: D(5),
        3: lambda: D(6),
        4: lambda: merge(D(7), pp[0]) + C(hwpoll),
        5: lambda: C(pre.store_stats) + pp[1],
        6: lambda: C(hspoll) + C(hweval) + C(hw0) + merge(item_units(g2.w_items(0, NW1//2)), record(a, lambda r: cv.payload(r, 188))) + C(trypre),
        7: lambda: C(trypre) + C(hpoll) + merge(item_units(g2.w_items(NW1//2, NW1)), record(a, lambda r: g1.b1_unpack(r))) + C(trypre),
        }
    g1.main(a, {}, fill)
    stamp(a, 'g1_main'); stamp(a, 'cycB', True)
    g1.epilogue_a(a)
    trypre(a)
    poll_check(a, [(VS, g1.ST, 2, g1.ST+1), (VS+1, g1.ST+2, 2, g1.ST+3)], tag='spoll')
    stamp(a, 'stats_ok')
    hkv_try(a)
    g1.epilogue(a, hmid, lambda a: None, lambda a: None, [])
    trypre(a, True)
    cv.prep_hc(a, 8)
    hkv(a)
    stamp(a, 'g1_epi')
    a.e(f's_mov_b32 s{S_PUB}, 0')
    cv.prep(a)
    after_g1 = (list(a.vm), list(a.lg))
    a.e(f's_branch {join}')
    a.label(idle)
    a.vm, a.lg = list(saved_pre[0]), list(saved_pre[1])
    w2t = W2T()
    if not Opt.lateset: pre.issue_stats(a)
    w2t.issue(a)
    if Opt.lateset:
        pre.setup(a); g2.decode(a); cv.filter_setup(a)
    cv.d_load(a)
    emit_items(a, pre.items()); emit_items(a, cv.filter_items())
    w2t.compute(a)
    stamp(a, 'w2t_st')
    a.wait_vm('w2st')
    stamp(a, 'w2t_ack')
    a.e('s_barrier')
    pre.tag(a)
    on_wave0(a, lambda a: w2t.publish(a, 10))
    pre.stats(a, True)
    pre.compute(a)
    if Opt.defer: pre.store_kv(a)
    cv.payload(a, 188)
    a.e('s_waitcnt vmcnt(0)')
    pre.publish(a, 42)
    a.e('s_barrier')
    cv.prep_hc(a, 8)
    def idlepoll(a):
        cv.flag_addr(a, VFK); g2.wflag_addr(a, VFW)
        a.e('s_sleep 32')
        poll_issue(a, VFW, 38, 1)
        poll_check(a, [(VFW, 38, 1, 38)], sleep=16)
        poll_issue(a, VFK, 36)
        poll_check(a, [(VFK, 36, 1, 36)], sleep=16)
        cv.load_kv(a, 37)
    on_wave0(a, idlepoll)
    a.e('s_barrier')
    g2.epi_addr(a); emit_items(a, g2.epi_items())
    a.e(f's_mov_b32 s{S_PUB}, 1')
    a.e(f's_mov_b32 s98, {WS_H}'); a.e('s_mov_b32 s97, 0'); a.e(f'v_mov_b32 v{g1.VHS}, 0x20000000')
    g2.w_setup(a); emit_items(a, g2.w_items(0, Opt.nw1))
    cv.prep(a)
    a.label(join)
    a.vm, a.lg = after_g1
    cv.setup_main(a)
    a.e('s_waitcnt lgkmcnt(0)')
    a.e('s_barrier')
    PRETRY = True
    stamp(a, 'conv_prep'); stamp(a, 'cycC', True)
    rem = 28 - Opt.nw1
    WB = [Opt.nw1 + (rem*i*2)//9 for i in range(5)]
    if Opt.wb0: WB = [Opt.nw1, Opt.nw1] + [Opt.nw1 + (rem*i*2)//7 for i in (1, 2, 3)]
    def trypub(a, block=False):
        lab = a.newlabel('Ltp')
        a.e(f's_cmp_lg_u32 s{S_PUB}, 0'); a.e(f's_cbranch_scc1 {lab}')
        saved = (list(a.vm), list(a.lg))
        idx = [i for i, (t, c) in enumerate(a.vm) if t == 'hst']
        if idx:
            n = len([x for x in a.vm[idx[-1]+1:] if not x[1].endswith('?')])
            if block: a.e(f's_waitcnt vmcnt({n})')
            else:
                a.e('s_getreg_b32 s90, hwreg(HW_REG_IB_STS)'); a.e('s_and_b32 s91, s90, 15'); a.e('s_lshr_b32 s90, s90, 18'); a.e('s_and_b32 s90, s90, 0x30'); a.e('s_or_b32 s90, s90, s91')
                a.e(f's_cmp_gt_u32 s90, {n}'); a.e(f's_cbranch_scc1 {lab}')
        a.vm, a.lg = saved
        g1.publish(a, 4)
        stamp(a, 'h_pub')
        a.e(f's_mov_b32 s{S_PUB}, 1')
        a.label(lab)
    trypub(a)
    ch = {(0, 12): trypub, (0, 28): trypub, (1, 4): trypub, (1, 24): trypub, (2, 20): trypub, (3, 35): lambda a: trypub(a, True)}
    def hf(a):
        def f(a):
            g2.hflag_addr(a, 216); poll_issue(a, 216, 217)
        on_wave0(a, f)
    ch[(3, Opt.hfpos)] = hf if Opt.hfpos != 35 else (lambda a: (trypub(a, True), hf(a)))
    if Opt.dbg_now: WB = [28]*5
    if Opt.dbg_notry: ch = {(3, 35): lambda a: trypub(a, True)}
    cv.main(a, ch, {0: lambda: [g1.hst_item(n) for n in range(Opt.hearly, 8)] + g2.w_items(WB[0], WB[1]), 1: lambda: g2.w_items(WB[1], WB[2]), 2: lambda: g2.w_items(WB[2], WB[3]), 3: lambda: g2.w_items(WB[3], WB[4])})
    stamp(a, 'conv_main'); stamp(a, 'cycD', True)
    def hchk(a):
        on_wave0(a, lambda a: poll_check(a, [(216, 217, 1, 217)], sleep=2))
        stamp(a, 'hflag_ok')
    g2.h_setup(a)
    hunits = item_units(g2.w_items(WB[4], 28))
    if Opt.hint:
        nh = Opt.hint
        for i in range(nh): hunits += item_units(g2.h_items(i))
        cv.epilogue(a, hunits, hchk, early_units=True)
        stamp(a, 'conv_epi')
        for i in range(nh, max(nh, Opt.hpre)): emit_items(a, g2.h_items(i))
        g2.init_acc(a)
    else:
        cv.epilogue(a, hunits, None)
        stamp(a, 'conv_epi')
        hchk(a)
        a.e('s_barrier')
        for i in range(Opt.hpre): emit_items(a, g2.h_items(i))
        g2.init_acc(a)
        g2.pre_epi(a)
        a.wait_vm('yst'); cv.publish(a, 6)
    def k0(a):
        stamp(a, 'g2_k0')
    def k8(a):
        def f(a):
            g2.yflag_addr(a, 216); poll_issue(a, 216, 217, tag='ypoll')
        on_wave0(a, f)
        lab = a.newlabel('Lfar')
        a.e('s_cmp_lg_u32 s2, 0'); a.e(f's_cbranch_scc1 {lab}')
        a.e(f'v_lshlrev_b32 v2, {FS}, v0'); a.e(f'v_add_u32 v2, {FAR}, v2')
        a.e(f'buffer_load_dword v3, v2, {sq(R_WS)}, 0 offen sc1', tag='far', optional=True)
        a.label(lab)
    def k20(a):
        stamp(a, 'g2_k20')
        def f(a):
            poll_check(a, [(216, 217, 1, 217)], tag='ypoll', sleep=2)
            g2.load_y2(a)
        on_wave0(a, f)
        stamp(a, 'yflag_ok')
    g2.main(a, {0: k0, Opt.kepi: k8, **({Opt.ky: (lambda a: (a.wait_vm('yst'), cv.publish(a, 6)))} if Opt.hint else {}), 23: k20}, 2*max(Opt.hpre, Opt.hint))
    stamp(a, 'g2_main')
    g2.epilogue(a)
    lab = a.newlabel('Lfin')
    a.e('s_cmp_lg_u32 s2, 0'); a.e(f's_cbranch_scc1 {lab}')
    poll_check(a, [(2, 3, 1, 3)], tag='far')
    a.e('s_barrier')
    a.e(f's_cmp_lg_u32 s{S_WAVE}, 0'); a.e(f's_cbranch_scc1 {lab}')
    a.e(f's_mov_b32 s90, {WS_E}')
    publish(a, ['s90'], vt=4)
    a.label(lab)
    stamp(a, 'end'); stamp(a, 'cyc1', True)
    write_stamps(a)
    a.label(end)
    a.e('s_endpgm')

def header():
    ref = open('cdna_kernels/' + NAME + '.s.ref').read().split('\n')
    hdr = []
    for ln in ref:
        if ln.startswith('; @launch') or ln.startswith('; Override') or ln.startswith('; grid=ceil'): break
        hdr.append(ln)
    return '\n'.join(hdr) + '\n'

def fused():
    name = NAME + '_kernel'
    a = Asm()
    fused_body(a)
    n = a.fix_hazards()
    out = header() + '; @launch grid=(256,1,1) block=(256,1,1) lds=163840\n'
    out += '.amdgcn_target "amdgcn-amd-amdhsa--gfx950"\n.text\n'
    out += f'.globl {name}\n.p2align 8\n.type {name},@function\n{name}:\n' + a.text()
    out += f'''.section .rodata,"a"
.p2align 6
.amdhsa_kernel {name}
  .amdhsa_next_free_vgpr 512
  .amdhsa_next_free_sgpr 102
  .amdhsa_accum_offset 256
  .amdhsa_group_segment_fixed_size 0
  .amdhsa_kernarg_size 112
  .amdhsa_user_sgpr_count 2
  .amdhsa_user_sgpr_kernarg_segment_ptr 1
  .amdhsa_system_sgpr_workgroup_id_x 1
.end_amdhsa_kernel
'''
    return out

if __name__ == '__main__':
    dst = sys.argv[1]
    for o in sys.argv[2:]:
        k, val = o.split('='); setattr(Opt, k, int(val))
    txt = fused()
    if Opt.stamps: open(dst + '.names', 'w').write(' '.join(STAMP_NAMES))
    open(dst, 'w').write(txt)
    print('wrote', dst, len(txt), 'bytes')
```
